```python
import torch

def _softmax(x, axis=-1):
    return torch.softmax(x, dim=axis)
def _gelu(x):
    return torch.nn.functional.gelu(x, approximate="tanh")
def _silu(x):
    return torch.nn.functional.silu(x)
def _sigmoid(x):
    return torch.sigmoid(x)
def _layernorm(x, axis=-1, eps=1e-5):
    m = x.mean(dim=axis, keepdim=True)
    v = x.var(dim=axis, keepdim=True, unbiased=False)
    return (x - m) / torch.sqrt(v + eps)
def _scatter_add(tgt, idx, src, axis=0):
    return tgt.clone().index_add_(axis, idx, src)
def _segment_sum(src, seg, n):
    out = torch.zeros((n,) + src.shape[1:], dtype=src.dtype)
    return out.index_add_(0, seg, src)
def _pad(x, pw):
    flat = tuple(v for pair in reversed(pw) for v in pair)
    return torch.nn.functional.pad(x, flat)

kernel_name = 'gated_mix__sliding_local_dilated__sliding_local_dilated__prompt'

def setup_inputs():

    _w = (lambda a: (lambda t: t.to(torch.bfloat16) if t.is_floating_point() else t)(torch.as_tensor(a)))
    def _A_setup():
        B, S, D = 1, 2048, 576
        return {
            "x": _w((lambda *s: torch.randn(*s, dtype=torch.bfloat16) * 0.05)(B, S, D)),
            "wqkv": _w((lambda *s: torch.randn(*s, dtype=torch.bfloat16) * 0.8)(D, 3 * D)),
            "wo": _w((lambda *s: torch.randn(*s, dtype=torch.bfloat16) * 0.05)(D, D)),
        }
    _A_in = _A_setup()

    def _B_setup():
        B, S, D = 1, 2048, 576
        return {
            "x": _w((lambda *s: torch.randn(*s, dtype=torch.bfloat16) * 0.05)(B, S, D)),
            "wqkv": _w((lambda *s: torch.randn(*s, dtype=torch.bfloat16) * 0.8)(D, 3 * D)),
            "wo": _w((lambda *s: torch.randn(*s, dtype=torch.bfloat16) * 0.05)(D, D)),
        }
    _B_in = _B_setup()

    return {
        "A_x": _A_in["x"],
        "A_wqkv": _A_in["wqkv"],
        "A_wo": _A_in["wo"],
        "B_x": _B_in["x"],
        "B_wqkv": _B_in["wqkv"],
        "B_wo": _B_in["wo"],
        "gate_w": _w((lambda *s: torch.randn(*s, dtype=torch.bfloat16) * 0.05)(576) * 16.0),
    }

def reference(A_x, A_wqkv, A_wo, B_x, B_wqkv, B_wo, gate_w):
    def _A_ref(x, wqkv, wo):
        B, S, D = x.shape
        H = 32; Dh = D // H
        W, dil = 8, 2
        qkv = (lambda x, *d: x.permute(*d))((x @ wqkv).reshape(B, S, 3, H, Dh), 2, 0, 3, 1, 4)
        q, k, v = qkv[0], qkv[1], qkv[2]
        scale = Dh ** -0.5
        pos = torch.arange(S)
        off = torch.arange(W) * dil
        idx = pos[:, None] - off[None, :]
        mask = idx >= 0
        idx_c = torch.where(mask, idx, 0).reshape(-1)
        kg = k[:, :, idx_c, :].reshape(B, H, S, W, Dh)
        vg = v[:, :, idx_c, :].reshape(B, H, S, W, Dh)
        logits = torch.einsum("bhsd,bhswd->bhsw", q, kg) * scale
        logits = torch.where(mask[None, None, :, :], logits, -1e9)
        attn = _softmax(logits, axis=-1)
        o = torch.einsum("bhsw,bhswd->bhsd", attn, vg)
        return (lambda x, *d: x.permute(*d))(o, 0, 2, 1, 3).reshape(B, S, D) @ wo

    def _B_ref(x, wqkv, wo):
        B, S, D = x.shape
        H = 32; Dh = D // H
        W, dil = 8, 2
        qkv = (lambda x, *d: x.permute(*d))((x @ wqkv).reshape(B, S, 3, H, Dh), 2, 0, 3, 1, 4)
        q, k, v = qkv[0], qkv[1], qkv[2]
        scale = Dh ** -0.5
        pos = torch.arange(S)
        off = torch.arange(W) * dil
        idx = pos[:, None] - off[None, :]
        mask = idx >= 0
        idx_c = torch.where(mask, idx, 0).reshape(-1)
        kg = k[:, :, idx_c, :].reshape(B, H, S, W, Dh)
        vg = v[:, :, idx_c, :].reshape(B, H, S, W, Dh)
        logits = torch.einsum("bhsd,bhswd->bhsw", q, kg) * scale
        logits = torch.where(mask[None, None, :, :], logits, -1e9)
        attn = _softmax(logits, axis=-1)
        o = torch.einsum("bhsw,bhswd->bhsd", attn, vg)
        return (lambda x, *d: x.permute(*d))(o, 0, 2, 1, 3).reshape(B, S, D) @ wo

    x = A_x
    g = _sigmoid((x * gate_w).sum(-1, keepdims=True))
    a = _A_ref(x, A_wqkv, A_wo)
    b = _B_ref(x, B_wqkv, B_wo)
    return g * a + (1 - g) * b
```

```python
import re

TRANS = ('v_exp_f32', 'v_log_f32', 'v_rcp_f32', 'v_rsq_f32', 'v_sqrt_f32', 'v_sin_f32', 'v_cos_f32')
NODST_S = ('s_cmp', 's_waitcnt', 's_barrier', 's_branch', 's_cbranch', 's_nop', 's_setprio', 's_endpgm', 's_sleep', 's_bitcmp')

def regs_of(tok):
    tok = tok.strip()
    tok = tok.lstrip('-')
    m = re.match(r'^abs\((.*)\)$', tok)
    if m: tok = m.group(1)
    m = re.match(r'^\|(.*)\|$', tok)
    if m: tok = m.group(1)
    m = re.match(r'^([vsa])(\d+)$', tok)
    if m: return m.group(1), {int(m.group(2))}
    m = re.match(r'^([vsa])\[(\d+):(\d+)\]$', tok)
    if m: return m.group(1), set(range(int(m.group(2)), int(m.group(3)) + 1))
    if tok == 'vcc': return 's', {106, 107}
    if tok == 'vcc_lo': return 's', {106}
    if tok == 'vcc_hi': return 's', {107}
    if tok == 'exec': return 's', {126, 127}
    if tok == 'm0': return 's', {124}
    return None, set()

class Ins:
    __slots__ = ('text', 'op', 'kind', 'vw', 'vr', 'sw', 'sr', 'states', 'srcC', 'srcAB', 'wide_store', 'lds_dma', 'dpp', 'passes', 'dfirst')

class Asm:
    def __init__(self):
        self.out = []
        self.hist = []
        self.branch_marks = {}
        self.nins = 0

    def raw(self, text):
        self.out.append(text)

    def comment(self, text):
        self.out.append('    ; ' + text)

    def label(self, name):
        if name in self.branch_marks:
            for i in self.hist[self.branch_marks[name]:]:
                i.states = 0
        self.out.append(name + ':')

    def barrier_hazards(self):
        self.e('s_nop 7'); self.e('s_nop 1')

    def parse(self, text):
        I = Ins()
        I.text = text
        t = text.split(';')[0].strip()
        sp = t.split(None, 1)
        op = sp[0]; I.op = op
        rest = sp[1] if len(sp) > 1 else ''
        ops = [o.strip() for o in re.split(r',(?![^\[]*\])', rest)] if rest else []
        mods = ''
        if ops:
            l = ops[-1].split(None, 1)
            ops[-1] = l[0]
            mods = l[1] if len(l) > 1 else ''
        I.vw, I.vr, I.sw, I.sr = set(), set(), set(), set()
        I.srcC, I.srcAB = set(), set()
        I.wide_store = False; I.lds_dma = False; I.dpp = False; I.passes = 0; I.states = 1; I.dfirst = None
        def rd(tok):
            k, s = regs_of(tok)
            if k == 'v': I.vr |= s
            elif k == 'a': I.vr |= {x + 1000 for x in s}
            elif k == 's': I.sr |= s
        def wr(tok):
            k, s = regs_of(tok)
            if k == 'v': I.vw |= s
            elif k == 'a': I.vw |= {x + 1000 for x in s}
            elif k == 's': I.sw |= s
        def vset(tok):
            k, s = regs_of(tok)
            if k == 'v': return set(s)
            if k == 'a': return {x + 1000 for x in s}
            return set()
        if op.startswith('v_mfma'):
            I.kind = 'mfma'
            wr(ops[0]); [rd(o) for o in ops[1:4]]
            I.srcAB = vset(ops[1]) | vset(ops[2]); I.srcC = vset(ops[3])
            I.passes = 8 if '32x32' in op else 4
        elif op.startswith('v_'):
            I.kind = 'trans' if op.split('_e')[0] in TRANS or op in TRANS else 'valu'
            if 'permlane' in op and 'swap' in op:
                wr(ops[0]); wr(ops[1]); rd(ops[0]); rd(ops[1]); I.kind = 'perm'
            elif op.startswith('v_cmp'):
                wr(ops[0]); [rd(o) for o in ops[1:]]
                if op.startswith('v_cmpx'): I.sw |= {126, 127}
            elif op.startswith('v_readfirstlane') or op.startswith('v_readlane'):
                wr(ops[0]); [rd(o) for o in ops[1:]]; I.kind = 'rdlane'
            elif op in ('v_add_co_u32', 'v_sub_co_u32', 'v_addc_co_u32', 'v_subb_co_u32', 'v_mad_u64_u32'):
                wr(ops[0]); wr(ops[1]); [rd(o) for o in ops[2:]]
            elif op == 'v_nop':
                pass
            else:
                wr(ops[0]); [rd(o) for o in ops[1:]]
                if op.startswith('v_fmac') or op.startswith('v_pk_fmac') or op.startswith('v_dot2c') or op.startswith('v_writelane'):
                    rd(ops[0])
            if 'dpp' in op or 'row_' in mods or 'quad_perm' in mods: I.dpp = True
        elif op.startswith('ds_'):
            I.kind = 'ds'
            if op.startswith('ds_read') or op.startswith('ds_bpermute') or op.startswith('ds_permute') or op.startswith('ds_swizzle') or '_rtn' in op:
                wr(ops[0]); [rd(o) for o in ops[1:]]
            else:
                [rd(o) for o in ops]
        elif op.startswith('buffer_') or op.startswith('global_'):
            I.kind = 'vmem'
            lds = re.search(r'\blds\b', mods) is not None or '_lds_' in op
            if lds:
                I.lds_dma = True; [rd(o) for o in ops]; I.sr |= {124}
            elif '_load' in op:
                wr(ops[0]); [rd(o) for o in ops[1:]]
            elif 'atomic' in op and re.search(r'\bsc0\b', mods):
                wr(ops[0]); [rd(o) for o in ops]
            else:
                [rd(o) for o in ops]
                if 'x4' in op or 'x3' in op:
                    I.wide_store = True
                    I.dfirst = vset(ops[0]) if op.startswith('buffer_') else vset(ops[1])
        elif op.startswith('s_'):
            I.kind = 'salu'
            if op == 's_nop':
                I.states = int(ops[0], 0) + 1
            elif any(op.startswith(p) for p in NODST_S):
                [rd(o) for o in ops]
            else:
                wr(ops[0]); [rd(o) for o in ops[1:]]
                if 'saveexec' in op: I.sw |= {126, 127}
        else:
            raise ValueError('unknown op ' + text)
        return I

    def need(self, P, C):
        n = 0
        pv = P.kind in ('valu', 'trans', 'perm', 'rdlane')
        cv = C.kind in ('valu', 'trans', 'perm', 'rdlane')
        if pv:
            if C.kind == 'mfma' and (P.vw & C.vr): n = max(n, 2)
            if C.kind == 'perm' and (P.vw & C.vr): n = max(n, 2)
            if C.kind == 'rdlane' and (P.vw & C.vr): n = max(n, 1)
            if C.dpp and (P.vw & C.vr): n = max(n, 2)
            if P.kind == 'trans' and cv and C.kind != 'trans' and (P.vw & C.vr): n = max(n, 1)
            if P.sw:
                if cv and (P.sw & C.sr): n = max(n, 4 if C.kind == 'rdlane' else 2)
                if C.kind == 'vmem' and (P.sw & C.sr): n = max(n, 5)
                if (P.sw & {126, 127}):
                    if C.kind in ('mfma', 'perm', 'rdlane'): n = max(n, 4)
                    if C.dpp: n = max(n, 5)
        if P.kind == 'mfma':
            big = 8 if P.passes == 4 else 12
            if C.kind == 'mfma':
                if P.vw & C.srcAB: n = max(n, big)
                if P.vw & C.srcC:
                    if not (P.vw == C.srcC and P.passes == C.passes): n = max(n, 6 if P.passes == 4 else 10)
                elif P.vw & C.vw:
                    n = max(n, big)
            else:
                if C.kind != 'salu' and (P.vw & (C.vr | C.vw)): n = max(n, big)
            if cv and (P.srcC & C.vw): n = max(n, 3 if P.passes == 4 else 7)
        if P.kind == 'salu' and 124 in P.sw and C.lds_dma: n = max(n, 1)
        if P.wide_store and C.kind != 'salu' and (P.dfirst & C.vw): n = max(n, 2)
        return n

    def e(self, text):
        I = self.parse(text)
        pad = 0
        dist = 0
        for P in reversed(self.hist[-40:]):
            r = self.need(P, I)
            if r - dist > pad: pad = r - dist
            dist += P.states
            if dist > 24: break
        while pad > 0:
            k = min(pad, 8)
            N = self.parse('s_nop %d' % (k - 1))
            self.hist.append(N); self.out.append('    s_nop %d' % (k - 1)); self.nins += 1
            pad -= k
        if I.op.startswith('s_cbranch') or I.op == 's_branch':
            lab = text.split()[1]
            self.branch_marks.setdefault(lab, len(self.hist) + 1)
        self.hist.append(I)
        self.out.append('    ' + text)
        self.nins += 1

    def text(self):
        return '\n'.join(self.out) + '\n'

class RegAlloc:
    def __init__(self, start, limit):
        self.next = start; self.limit = limit; self.names = {}
    def alloc(self, n=1, align=None, name=None):
        if align is None: align = 2 if n >= 2 else 1
        r = (self.next + align - 1) // align * align
        self.next = r + n
        assert self.next <= self.limit, 'out of registers'
        if name: self.names[name] = r
        return r

def v(r, n=1):
    return 'v%d' % r if n == 1 else 'v[%d:%d]' % (r, r + n - 1)
def s(r, n=1):
    return 's%d' % r if n == 1 else 's[%d:%d]' % (r, r + n - 1)
```

```python
import sys, math, struct
sys.path.insert(0, 'gen')
from asmlib import *

NAME = 'gated_mix__sliding_local_dilated__sliding_local_dilated__prompt'
OOB = 0x40000000
def f32(x): return '0x%08x' % struct.unpack('<I', struct.pack('<f', x))[0]
def lanemask(fn):
    m = 0
    for l in range(64):
        if fn(l): m |= 1 << l
    return m

def setmask(A, sr, fn):
    m = lanemask(fn)
    A.e('s_mov_b32 %s, 0x%08x' % (s(sr), m & 0xffffffff))
    A.e('s_mov_b32 %s, 0x%08x' % (s(sr + 1), m >> 32))

def srd(A, sr, nbytes):
    A.e('s_and_b32 %s, %s, 0xffff' % (s(sr + 1), s(sr + 1)))
    A.e('s_mov_b32 %s, %d' % (s(sr + 2), nbytes))
    A.e('s_mov_b32 %s, 0x00020000' % s(sr + 3))

def csel(A, dst, a, b):
    A.e('s_mov_b32 %s, %s' % (s(dst), b))
    A.e('s_cselect_b32 %s, %s, %s' % (s(dst), a, s(dst)))

OP_BYTES = 128 * 36864

def interleave(A, mf, fill, per=2):
    fi = 0
    for k, m in enumerate(mf):
        m()
        for _ in range(per):
            if fi < len(fill):
                fill[fi](); fi += 1
    while fi < len(fill):
        fill[fi](); fi += 1

def kernel1(A, label):
    e = A.e
    S = 49152
    WOFF = 18432
    GB = 3 * S
    SX, SW, S2, SO, SG = 4, 8, 12, 16, 20
    sWA, sWB = 24, 26
    sXcd, sIdx, sRb, sHgb, sHg, sBr, sWv, sRg, sP = range(28, 37)
    sOffX, sOffW, sOff2, sStep2, sWoff, sCnt, sDelta, sRing, sT0, sT1, sT2 = range(37, 48)
    sMpar, sMc0, sMc1, sFirst, sSelV, sM = 48, 50, 52, 54, 56, 58
    sC, sGs, sSt0, sSt1, sSr0, sSr1, sDm = range(60, 67)
    R = RegAlloc(1, 256)
    vLane = R.alloc(); vT = [R.alloc() for _ in range(6)]
    vD = [R.alloc() for _ in range(6)]
    vAX = [R.alloc(), R.alloc()]; vAXH = [R.alloc(), R.alloc()]
    vAW = R.alloc(); vAH = R.alloc(); vAR = [R.alloc() for _ in range(4)]
    vFlag = R.alloc(); vC512 = R.alloc(); vDl = R.alloc()
    vSelA = R.alloc(2); vSelB = R.alloc(2); vId = R.alloc(2); vCA = R.alloc(4); vCB = R.alloc(4)
    vMP0, vMC0, vMP1, vMC1, vMG0, vNeg, vBp, vXw, vXr, vXh, vStM, vStR = [R.alloc() for _ in range(12)]
    names = ['Qa', 'Qb', 'Ka', 'Kb', 'Va', 'Vb', 'R']
    acc = [{n: R.alloc(4) for n in names} for _ in range(2)]
    accH = R.alloc(4); accHR = R.alloc(4)
    acc_lo = acc[0]['Qa']; acc_hi = accHR + 4
    buf = []
    for b in range(2):
        buf.append({'W': {n: R.alloc(4) for n in names}, 'WH': R.alloc(4), 'X': [R.alloc(4), R.alloc(4)], 'XH': R.alloc(4)})
    buf_lo = buf[0]['W']['Qa']

    A.raw('.globl %s' % label); A.raw('.p2align 8'); A.raw('.type %s,@function' % label); A.raw(label + ':')
    e('s_cmp_ge_u32 s2, 256')
    e('s_cbranch_scc1 K1_END')
    e('s_load_dwordx2 %s, s[0:1], 0' % s(SX, 2))
    e('s_load_dwordx2 %s, s[0:1], 8' % s(sWA, 2))
    e('s_load_dwordx2 %s, s[0:1], 32' % s(sWB, 2))
    e('s_load_dwordx2 %s, s[0:1], 48' % s(SG, 2))
    e('s_load_dwordx2 %s, s[0:1], 72' % s(SO, 2))
    e('v_lshrrev_b32 %s, 6, v0' % v(vT[0]))
    e('v_and_b32 %s, 63, v0' % v(vLane))
    e('v_readfirstlane_b32 %s, %s' % (s(sWv), v(vT[0])))
    e('s_and_b32 %s, s2, 7' % s(sXcd))
    e('s_lshr_b32 %s, s2, 3' % s(sIdx))
    e('s_and_b32 %s, %s, 1' % (s(sT0), s(sXcd)))
    e('s_lshl_b32 %s, %s, 3' % (s(sT0), s(sT0)))
    e('s_and_b32 %s, %s, 7' % (s(sRb), s(sIdx)))
    e('s_or_b32 %s, %s, %s' % (s(sRb), s(sRb), s(sT0)))
    e('s_lshr_b32 %s, %s, 1' % (s(sT0), s(sXcd)))
    e('s_lshl_b32 %s, %s, 2' % (s(sT0), s(sT0)))
    e('s_lshr_b32 %s, %s, 3' % (s(sHgb), s(sIdx)))
    e('s_or_b32 %s, %s, %s' % (s(sHgb), s(sHgb), s(sT0)))
    e('s_and_b32 %s, %s, 7' % (s(sHg), s(sHgb)))
    e('s_lshr_b32 %s, %s, 3' % (s(sBr), s(sHgb)))
    e('s_and_b32 %s, %s, 3' % (s(sRg), s(sWv)))
    e('s_lshr_b32 %s, %s, 2' % (s(sP), s(sWv)))
    e('s_lshl_b32 %s, %s, 10' % (s(sWoff), s(sWv)))
    e('s_and_b32 %s, %s, 1' % (s(sT0), s(sWv)))
    e('s_lshl_b32 %s, %s, 2' % (s(sT0), s(sT0)))
    e('v_lshrrev_b32 %s, 4, %s' % (v(vT[0]), v(vLane)))
    e('v_add_u32 %s, %s, %s' % (v(vT[0]), s(sT0), v(vT[0])))
    e('v_and_b32 %s, 7, %s' % (v(vT[1]), v(vLane)))
    e('v_xor_b32 %s, %s, %s' % (v(vT[0]), v(vT[0]), v(vT[1])))
    e('v_lshlrev_b32 %s, 4, %s' % (v(vT[0]), v(vT[0])))
    e('s_lshl_b32 %s, %s, 7' % (s(sT0), s(sRb)))
    e('s_lshl_b32 %s, %s, 3' % (s(sT1), s(sWv)))
    e('s_add_u32 %s, %s, %s' % (s(sT0), s(sT0), s(sT1)))
    e('s_sub_u32 %s, %s, 16' % (s(sT0), s(sT0)))
    e('v_lshrrev_b32 %s, 3, %s' % (v(vT[1]), v(vLane)))
    e('v_add_u32 %s, %s, %s' % (v(vT[1]), s(sT0), v(vT[1])))
    e('s_movk_i32 %s, 1152' % s(sT1))
    for j in range(3):
        e('v_add_u32 %s, %d, %s' % (v(vT[2]), 64 * j, v(vT[1])))
        e('v_max_i32 %s, 0, %s' % (v(vT[2]), v(vT[2])))
        e('v_mad_u32_u24 %s, %s, %s, %s' % (v(vD[j]), v(vT[2]), s(sT1), v(vT[0])))
    e('s_mul_i32 %s, %s, 144' % (s(sT2), s(sHg)))
    e('s_lshl_b32 %s, %s, 6' % (s(sT0), s(sWv)))
    for j in range(2, 6):
        u, slot, ch, t3 = vT[0], vT[1], vT[2], vT[3]
        e('v_add_u32 %s, %s, %s' % (v(u), s(sT0), v(vLane)))
        e('v_add_u32 %s, %d, %s' % (v(u), 64 * (8 * j - 18), v(u)))
        e('v_max_i32 %s, 0, %s' % (v(u), v(u)))
        e('v_mul_u32_u24 %s, 2428, %s' % (v(slot), v(u)))
        e('v_lshrrev_b32 %s, 16, %s' % (v(slot), v(slot)))
        e('v_mul_u32_u24 %s, 27, %s' % (v(ch), v(slot)))
        e('v_sub_u32 %s, %s, %s' % (v(ch), v(u), v(ch)))
        e('v_and_b32 %s, 0x38, %s' % (v(t3), v(slot)))
        e('v_and_b32 %s, 1, %s' % (v(vT[4]), v(slot)))
        e('v_lshl_add_u32 %s, %s, 2, %s' % (v(t3), v(vT[4]), v(t3)))
        e('v_bfe_u32 %s, %s, 1, 2' % (v(vT[4]), v(slot)))
        e('v_add_u32 %s, %s, %s' % (v(t3), v(t3), v(vT[4])))
        e('v_mul_u32_u24 %s, 3456, %s' % (v(t3), v(t3)))
        e('v_mul_u32_u24 %s, 57, %s' % (v(vT[4]), v(ch)))
        e('v_lshrrev_b32 %s, 9, %s' % (v(vT[4]), v(vT[4])))
        e('v_mul_u32_u24 %s, 1008, %s' % (v(vT[4]), v(vT[4])))
        e('v_lshl_add_u32 %s, %s, 4, %s' % (v(vT[4]), v(ch), v(vT[4])))
        e('v_add3_u32 %s, %s, %s, %s' % (v(t3), v(t3), v(vT[4]), s(sT2)))
        if j == 2:
            e('s_cmp_lt_u32 %s, 2' % s(sWv))
            e('s_cselect_b64 %s, -1, 0' % s(sM, 2))
            e('v_cndmask_b32 %s, %s, %s, %s' % (v(vD[2]), v(t3), v(vD[2]), s(sM, 2)))
        elif j == 5:
            e('v_mov_b32 %s, 0x%x' % (v(vT[4]), OOB))
            e('v_cmp_gt_u32 vcc, 1728, %s' % v(u))
            e('v_cndmask_b32 %s, %s, %s, vcc' % (v(vD[5]), v(vT[4]), v(t3)))
        else:
            e('v_mov_b32 %s, %s' % (v(vD[j]), v(t3)))
    e('v_lshlrev_b32 %s, 2, v0' % v(vT[5]))
    e('s_waitcnt lgkmcnt(0)')
    srd(A, SX, 2048 * 1152)
    srd(A, SG, 1152)
    srd(A, SO, OP_BYTES)
    e('s_cmp_eq_u32 %s, 0' % s(sBr))
    e('s_cselect_b32 %s, %s, %s' % (s(SW), s(sWA), s(sWB)))
    e('s_cselect_b32 %s, %s, %s' % (s(SW + 1), s(sWA + 1), s(sWB + 1)))
    srd(A, SW, 576 * 3456)
    e('s_cmp_lt_u32 %s, 2' % s(sWv))
    for k in range(3):
        e('s_cselect_b32 %s, %s, %s' % (s(S2 + k), s(SX + k), s(SW + k)))
    e('s_mov_b32 %s, 0x00020000' % s(S2 + 3))
    csel(A, sStep2, '128', str(64 * 3456))
    vG = buf[1]['XH']
    e('buffer_load_dword %s, %s, %s, 0 offen' % (v(vG), v(vT[5]), s(SG, 4)))
    e('s_mov_b32 %s, 0' % s(sOffX)); e('s_mov_b32 %s, 0' % s(sOffW)); e('s_mov_b32 %s, 0' % s(sOff2))

    def dma_list(sbase):
        L = []
        for j in range(6):
            def f(j=j):
                e('s_add_u32 m0, %s, %d' % (s(sbase), 8192 * j))
                sr, so = (SX, sOffX) if j < 2 else ((S2, sOff2) if j == 2 else (SW, sOffW))
                e('buffer_load_dwordx4 %s, %s, %s offen lds' % (v(vD[j]), s(sr, 4), s(so)))
            L.append(f)
        return L
    def adv():
        e('s_add_u32 %s, %s, 128' % (s(sOffX), s(sOffX)))
        e('s_add_u32 %s, %s, %d' % (s(sOffW), s(sOffW), 64 * 3456))
        e('s_add_u32 %s, %s, %s' % (s(sOff2), s(sOff2), s(sStep2)))
    for st in range(3):
        e('s_add_u32 %s, %s, %d' % (s(sDm), s(sWoff), st * S))
        for f in dma_list(sDm): f()
        adv()
    i15, g, r4, c4 = vT[0], vT[1], vT[2], vT[3]
    e('v_and_b32 %s, 15, %s' % (v(i15), v(vLane)))
    e('v_lshrrev_b32 %s, 4, %s' % (v(g), v(vLane)))
    e('v_bfe_u32 %s, %s, 2, 2' % (v(r4), v(vLane)))
    e('v_and_b32 %s, 3, %s' % (v(c4), v(vLane)))
    e('v_lshrrev_b32 %s, 1, %s' % (v(vT[4]), v(i15)))
    e('v_xor_b32 %s, %s, %s' % (v(vT[4]), v(vT[4]), v(g)))
    e('v_lshlrev_b32 %s, 4, %s' % (v(vT[4]), v(vT[4])))
    e('v_lshl_add_u32 %s, %s, 7, %s' % (v(vAXH[0]), v(i15), v(vT[4])))
    e('v_xor_b32 %s, 64, %s' % (v(vAXH[1]), v(vAXH[0])))
    e('s_lshl_b32 %s, %s, 12' % (s(sT0), s(sRg)))
    e('s_add_u32 %s, %s, 2048' % (s(sT0), s(sT0)))
    e('v_add_u32 %s, %s, %s' % (v(vAX[0]), s(sT0), v(vAXH[0])))
    e('v_add_u32 %s, %s, %s' % (v(vAX[1]), s(sT0), v(vAXH[1])))
    e('v_lshlrev_b32 %s, 3, %s' % (v(vT[4]), v(g)))
    e('v_lshl_add_u32 %s, %s, 1, %s' % (v(vT[4]), v(r4), v(vT[4])))
    e('v_mul_u32_u24 %s, 432, %s' % (v(vT[4]), v(vT[4])))
    e('s_mul_i32 %s, %s, 72' % (s(sT0), s(sP)))
    e('s_add_u32 %s, %s, %d' % (s(sT0), s(sT0), WOFF))
    e('v_add_u32 %s, %s, %s' % (v(vT[4]), s(sT0), v(vT[4])))
    e('v_lshl_add_u32 %s, %s, 3, %s' % (v(vAW), v(c4), v(vT[4])))
    e('s_lshr_b32 %s, %s, 1' % (s(sT0), s(sRg)))
    e('s_mul_i32 %s, %s, 144' % (s(sT0), s(sT0)))
    e('s_and_b32 %s, %s, 1' % (s(sT1), s(sRg)))
    e('s_mul_i32 %s, %s, 40' % (s(sT1), s(sT1)))
    e('s_add_u32 %s, %s, %s' % (s(sT0), s(sT0), s(sT1)))
    e('s_add_u32 %s, %s, 144' % (s(sT0), s(sT0)))
    e('v_add_u32 %s, %s, %s' % (v(vAH), s(sT0), v(vAW)))
    setmask(A, sM, lambda l: (l & 3) == 1)
    e('v_mov_b32 %s, 32' % v(vT[5]))
    e('v_mov_b32 %s, %d' % (v(vDl), 320))
    e('v_cndmask_b32 %s, %s, %s, %s' % (v(vT[5]), v(vT[5]), v(vDl), s(sM, 2)))
    setmask(A, sM, lambda l: (l & 3) == 2)
    e('v_mov_b32 %s, %d' % (v(vDl), 176))
    e('v_cndmask_b32 %s, %s, %s, %s' % (v(vT[5]), v(vT[5]), v(vDl), s(sM, 2)))
    e('v_add_u32 %s, %s, %s' % (v(vT[4]), v(vT[4]), v(vT[5])))
    e('v_lshl_add_u32 %s, %s, 3, %s' % (v(vT[5]), v(g), v(r4)))
    e('v_lshlrev_b32 %s, 3, %s' % (v(vT[5]), v(vT[5])))
    setmask(A, sM, lambda l: (l & 3) == 3)
    for ks in range(2):
        for j2 in range(2):
            a = vAR[ks * 2 + j2]
            e('v_add_u32 %s, %d, %s' % (v(a), ks * 13824 + j2 * 432, v(vT[4])))
            e('v_add_u32 %s, %d, %s' % (v(vDl), GB + (32 * ks + 4 * j2) * 8, v(vT[5])))
            e('v_cndmask_b32 %s, %s, %s, %s' % (v(a), v(a), v(vDl), s(sM, 2)))
    e('v_cndmask_b32 %s, 1, 0, %s' % (v(vFlag), s(sM, 2)))
    e('v_mov_b32 %s, 512' % v(vDl))
    e('v_cndmask_b32 %s, 0, %s, %s' % (v(vC512), v(vDl), s(sM, 2)))
    lo, hi = vT[4], vT[5]
    e('v_mov_b32 %s, 0x3f80' % v(lo)); e('v_mov_b32 %s, 1.0' % v(hi))
    def sel2(dst, f_lo, f_hi):
        e('v_mov_b32 %s, 0' % v(dst))
        if f_lo:
            setmask(A, sM, f_lo); e('v_cndmask_b32 %s, %s, %s, %s' % (v(dst), v(dst), v(lo), s(sM, 2)))
        if f_hi:
            setmask(A, sM, f_hi); e('v_cndmask_b32 %s, %s, %s, %s' % (v(dst), v(dst), v(hi), s(sM, 2)))
    sel2(vSelA, lambda l: l == 16, lambda l: l == 17); sel2(vSelA + 1, None, None)
    sel2(vSelB, None, None); sel2(vSelB + 1, lambda l: l == 18, lambda l: l == 19)
    sel2(vId, lambda l: (l & 15) == 4 * (l >> 4), lambda l: (l & 15) == 4 * (l >> 4) + 1)
    sel2(vId + 1, lambda l: (l & 15) == 4 * (l >> 4) + 2, lambda l: (l & 15) == 4 * (l >> 4) + 3)
    sel2(vCA, None, lambda l: (l & 15) >= 2)
    sel2(vCB, None, lambda l: (l & 15) not in (2, 3))
    for k in range(1, 4):
        e('v_mov_b32 %s, %s' % (v(vCA + k), v(vCA))); e('v_mov_b32 %s, %s' % (v(vCB + k), v(vCB)))
    setmask(A, sMpar, lambda l: l & 1)
    setmask(A, sMc0, lambda l: 4 * (l >> 4) + (l & 1) <= (l & 15))
    setmask(A, sMc1, lambda l: 4 * (l >> 4) + 2 + (l & 1) <= (l & 15))
    e('v_mov_b32 %s, 0xffff' % v(lo)); e('v_mov_b32 %s, 0xffff0000' % v(hi))
    e('v_cndmask_b32 %s, %s, %s, %s' % (v(lo), v(lo), v(hi), s(sMpar, 2)))
    e('v_cndmask_b32 %s, 0, %s, %s' % (v(vMC0), v(lo), s(sMc0, 2)))
    e('v_cndmask_b32 %s, %s, 0, %s' % (v(vMP0), v(lo), s(sMc0, 2)))
    e('v_cndmask_b32 %s, 0, %s, %s' % (v(vMC1), v(lo), s(sMc1, 2)))
    e('v_cndmask_b32 %s, %s, 0, %s' % (v(vMP1), v(lo), s(sMc1, 2)))
    setmask(A, sM, lambda l: l < 16)
    e('v_cndmask_b32 %s, 0, -1, %s' % (v(vMG0), s(sM, 2)))
    e('v_mov_b32 %s, %s' % (v(vNeg), f32(-1e9 * math.sqrt(18.0))))
    e('v_lshlrev_b32 %s, 2, %s' % (v(vBp), v(i15)))
    e('v_add_u32 %s, 192, %s' % (v(vBp), v(vBp)))
    e('s_lshl_b32 %s, %s, 1' % (s(sT0), s(sRg)))
    e('s_add_u32 %s, %s, %s' % (s(sT0), s(sT0), s(sP)))
    e('s_mul_i32 %s, %s, 3584' % (s(sT0), s(sT0)))
    e('v_lshlrev_b32 %s, 3, %s' % (v(lo), v(vLane)))
    e('v_add_u32 %s, %s, %s' % (v(vXr), s(sT0), v(lo)))
    e('v_add_u32 %s, %d, %s' % (v(vXw), 2 * 3584, v(vXr)))
    e('s_add_u32 %s, %s, 1' % (s(sT0), s(sRg)))
    e('s_cmp_eq_u32 %s, 0' % s(sRg))
    e('s_cselect_b32 %s, 0, %s' % (s(sT0), s(sT0)))
    e('s_lshl_b32 %s, %s, 9' % (s(sT0), s(sT0)))
    e('s_mul_i32 %s, %s, 3584' % (s(sT1), s(sP)))
    e('s_add_u32 %s, %s, %s' % (s(sT0), s(sT0), s(sT1)))
    e('v_add_u32 %s, %s, %s' % (v(vXh), s(sT0), v(lo)))
    e('s_cmp_ge_u32 %s, 2' % s(sRg))
    e('s_cselect_b64 %s, -1, 0' % s(sSelV, 2))
    e('s_or_b32 %s, %s, %s' % (s(sT0), s(sRb), s(sRg)))
    e('s_cmp_eq_u32 %s, 0' % s(sT0))
    e('s_cselect_b64 %s, -1, 0' % s(sFirst, 2))
    e('s_mov_b32 %s, %s' % (s(sC), f32(18.0 ** -0.5 * math.log2(math.e))))
    e('s_cmp_eq_u32 %s, 0' % s(sBr))
    csel(A, sGs, f32(-math.log2(math.e)), f32(math.log2(math.e)))
    e('s_lshl_b32 %s, %s, 3' % (s(sT0), s(sRb)))
    e('s_lshl_b32 %s, %s, 1' % (s(sT1), s(sRg)))
    e('s_add_u32 %s, %s, %s' % (s(sT0), s(sT0), s(sT1)))
    e('s_mul_i32 %s, %s, 36864' % (s(sT0), s(sT0)))
    e('s_lshl_b32 %s, %s, 2' % (s(sT1), s(sHg)))
    e('s_lshl_b32 %s, %s, 1' % (s(sT2), s(sBr)))
    e('s_add_u32 %s, %s, %s' % (s(sT1), s(sT1), s(sT2)))
    e('s_add_u32 %s, %s, %s' % (s(sT1), s(sT1), s(sP)))
    e('s_add_u32 %s, %s, 4' % (s(sT1), s(sT1)))
    e('s_lshl_b32 %s, %s, 10' % (s(sT1), s(sT1)))
    e('s_add_u32 %s, %s, %s' % (s(sSt0), s(sT0), s(sT1)))
    e('s_add_u32 %s, %s, 36864' % (s(sSt1), s(sSt0)))
    e('s_lshl_b32 %s, %s, 8' % (s(sT1), s(sHgb)))
    e('s_lshl_b32 %s, %s, 3' % (s(sT2), s(sP)))
    e('s_add_u32 %s, %s, %s' % (s(sT1), s(sT1), s(sT2)))
    e('s_add_u32 %s, %s, %s' % (s(sSr0), s(sT0), s(sT1)))
    e('s_add_u32 %s, %s, 36864' % (s(sSr1), s(sSr0)))
    e('v_lshlrev_b32 %s, 4, %s' % (v(vStM), v(vLane)))
    e('v_mov_b32 %s, 0x%x' % (v(hi), OOB))
    e('v_cndmask_b32 %s, %s, %s, %s' % (v(vStR), v(hi), v(vStM), s(sM, 2)))
    e('s_cmp_eq_u32 %s, 0' % s(sWv))
    e('s_cselect_b64 vcc, -1, 0')
    e('s_cmp_eq_u32 %s, 5' % s(sWv))
    e('s_cselect_b64 vcc, -1, vcc')
    for r in range(acc_lo, acc_hi):
        e('v_mov_b32 %s, 0' % v(r))
    e('s_waitcnt vmcnt(18)')
    e('v_and_b32 %s, 0xffff, %s' % (v(vG + 1), v(vG)))
    e('v_lshrrev_b32 %s, 16, %s' % (v(vG + 3), v(vG)))
    e('v_lshl_or_b32 %s, %s, 16, %s' % (v(vG), v(vG + 1), v(vG + 1)))
    e('v_lshl_or_b32 %s, %s, 16, %s' % (v(vG + 2), v(vG + 3), v(vG + 3)))
    e('v_mov_b32 %s, %s' % (v(vG + 1), v(vG)))
    e('v_mov_b32 %s, %s' % (v(vG + 3), v(vG + 2)))
    e('v_lshlrev_b32 %s, 4, v0' % v(lo))
    e('v_add_u32 %s, %d, %s' % (v(lo), GB, v(lo)))
    e('ds_write_b128 %s, %s' % (v(lo), v(vG, 4)))

    toff = {'Qa': 0, 'Qb': 40, 'Ka': 144, 'Kb': 184, 'Va': 288, 'Vb': 328}
    def reads(b, ks):
        B = buf[b]; L = []
        def rx(dst, a, off): L.append(lambda: e('ds_read_b128 %s, %s offset:%d' % (v(dst, 4), v(a), off)))
        def rt(dst, a, off): L.append(lambda: e('ds_read_b64_tr_b16 %s, %s offset:%d' % (v(dst, 2), v(a), off)))
        rx(B['X'][0], vAX[ks], 0); rx(B['X'][1], vAX[ks], 2048)
        for n in names[:6]:
            for j2 in range(2):
                rt(B['W'][n] + 2 * j2, vAW, ks * 13824 + j2 * 432 + toff[n])
        for j2 in range(2): rt(B['W']['R'] + 2 * j2, vAR[ks * 2 + j2], 0)
        rx(B['XH'], vAXH[ks], 0)
        for j2 in range(2): rt(B['WH'] + 2 * j2, vAH, ks * 13824 + j2 * 432)
        return L
    lab = [0]
    def mfmas(b):
        B = buf[b]; L = []
        def mm(d, a, bb): L.append(lambda: e('v_mfma_f32_16x16x32_bf16 %s, %s, %s, %s' % (v(d, 4), v(a, 4), v(bb, 4), v(d, 4))))
        for n in names:
            for t in range(2):
                if n[0] == 'V': mm(acc[t][n], B['X'][t], B['W'][n])
                else: mm(acc[t][n], B['W'][n], B['X'][t])
        mm(accH, B['WH'], B['XH'])
        def h2():
            lab[0] += 1
            e('s_cbranch_vccz K1_S%d' % lab[0])
            e('v_mfma_f32_16x16x32_bf16 %s, %s, %s, %s' % (v(accHR, 4), v(B['W']['R'], 4), v(B['XH'], 4), v(accHR, 4)))
            A.label('K1_S%d' % lab[0])
        L.append(h2)
        return L

    e('s_mov_b32 %s, 0' % s(sCnt)); e('s_mov_b32 %s, 0' % s(sRing))
    e('s_waitcnt vmcnt(12) lgkmcnt(0)')
    e('s_barrier')
    for f in reads(0, 0): f()
    A.barrier_hazards()
    A.label('K1_LOOP')
    e('s_waitcnt lgkmcnt(0)')
    interleave(A, mfmas(0), reads(1, 1))
    e('s_cmp_eq_u32 %s, %d' % (s(sRing), 2 * S))
    csel(A, sDelta, str(-2 * S), str(S))
    e('s_add_u32 %s, %s, %s' % (s(sDm), s(sWoff), s(sRing)))
    e('s_add_u32 %s, %s, %s' % (s(sRing), s(sRing), s(sDelta)))
    e('s_cmp_ge_u32 %s, 6' % s(sCnt))
    e('s_cselect_b32 %s, 0x%x, %s' % (s(sOffX), OOB, s(sOffX)))
    e('s_cselect_b32 %s, 0x%x, %s' % (s(sOffW), OOB, s(sOffW)))
    e('s_cselect_b32 %s, 0x%x, %s' % (s(sOff2), OOB, s(sOff2)))
    e('v_mad_i32_i24 %s, %s, %s, %s' % (v(vDl), v(vFlag), s(sDelta), v(vC512)))
    e('s_waitcnt vmcnt(6) lgkmcnt(0)')
    e('s_barrier')
    for a in vAX + vAXH + [vAW, vAH]:
        e('v_add_u32 %s, %s, %s' % (v(a), s(sDelta), v(a)))
    for a in vAR:
        e('v_add_u32 %s, %s, %s' % (v(a), v(vDl), v(a)))
    rl = reads(0, 0); dl = dma_list(sDm)
    fill = []
    for k in range(len(rl)):
        if k < len(dl): fill.append(dl[k])
        fill.append(rl[k])
    interleave(A, mfmas(1), fill)
    adv()
    e('s_add_u32 %s, %s, 1' % (s(sCnt), s(sCnt)))
    e('s_cmp_lt_u32 %s, 9' % s(sCnt))
    e('s_cbranch_scc1 K1_LOOP')

    E = RegAlloc(buf_lo, 256)
    KB = {k: E.alloc(6) for k in ('P', 0, 1)}
    QB = [E.alloc(8), E.alloc(8)]
    VA = E.alloc(6); VB = E.alloc(6); VRA = E.alloc(6); VRB = E.alloc(6)
    Tq = [E.alloc(2), E.alloc(2)]
    t4 = [E.alloc(4) for _ in range(8)]
    t2 = [E.alloc(2) for _ in range(6)]
    tg = [E.alloc(), E.alloc()]
    outM = [E.alloc(4), E.alloc(4)]; outR = [E.alloc(2), E.alloc(2)]
    def pk(dst, src):
        e('v_cvt_pk_bf16_f32 %s, %s, %s' % (v(dst), v(src), v(src + 1)))
        e('v_cvt_pk_bf16_f32 %s, %s, %s' % (v(dst + 1), v(src + 2), v(src + 3)))
    def mf16(d, a, b, c):
        e('v_mfma_f32_16x16x16_bf16 %s, %s, %s, %s' % (v(d, 4), v(a, 2), v(b, 2), c))
    def mf32(d, a, b):
        e('v_mfma_f32_16x16x32_bf16 %s, %s, %s, 0' % (v(d, 4), v(a, 4), v(b, 4)))
    def remproc(src, T, kr, vra, vrb, ta, tb):
        pk(T, src)
        e('v_mov_b32 %s, 0' % v(kr)); e('v_mov_b32 %s, 0' % v(kr + 1))
        e('v_permlane32_swap_b32 %s, %s' % (v(T), v(kr)))
        e('v_permlane32_swap_b32 %s, %s' % (v(T + 1), v(kr + 1)))
        mf16(ta, T, vSelA, v(vCA, 4)); mf16(tb, T, vSelB, v(vCB, 4))
        return lambda: (pk(vra, ta), pk(vrb, tb))
    e('s_waitcnt lgkmcnt(0)')
    for t in range(2):
        e('ds_bpermute_b32 %s, %s, %s' % (v(tg[t]), v(vBp), v(acc[t]['R'])))
    fin1 = remproc(acc[1]['R'], Tq[1], KB[1] + 2, VRA + 4, VRB + 4, t4[0], t4[1])
    pk(t2[0], accH)
    mf16(t4[2], t2[0], vId, '0')
    pk(KB[1], acc[1]['Ka']); pk(KB[1] + 4, acc[1]['Kb'])
    pk(VA + 4, acc[1]['Va']); pk(VB + 4, acc[1]['Vb'])
    fin1()
    pk(t2[1], t4[2])
    for k in range(2):
        e('v_cndmask_b32 %s, %s, %s, %s' % (v(t2[0] + k), v(t2[0] + k), v(t2[1] + k), s(sSelV, 2)))
    for k, r in enumerate([KB[1], KB[1] + 2, KB[1] + 4, VA + 4, VB + 4, VRA + 4, VRB + 4]):
        e('ds_write_b64 %s, %s offset:%d' % (v(vXw), v(r, 2), 512 * k))
    e('ds_write_b64 %s, %s' % (v(vXh), v(t2[0], 2)))
    e('s_cbranch_vccz K1_NOHR')
    finh = remproc(accHR, t2[2], t2[3], t2[4], t2[5], t4[0], t4[1])
    finh()
    e('s_mul_i32 %s, %s, 3584' % (s(sT1), s(sP)))
    e('v_lshlrev_b32 %s, 3, %s' % (v(t4[2]), v(vLane)))
    e('v_add_u32 %s, %s, %s' % (v(t4[2]), s(sT1), v(t4[2])))
    e('ds_write_b64 %s, %s offset:%d' % (v(t4[2]), v(t2[3], 2), 512 * 1))
    e('ds_write_b64 %s, %s offset:%d' % (v(t4[2]), v(t2[4], 2), 512 * 5))
    e('ds_write_b64 %s, %s offset:%d' % (v(t4[2]), v(t2[5], 2), 512 * 6))
    A.label('K1_NOHR')
    fin0 = remproc(acc[0]['R'], Tq[0], KB[0] + 2, VRA + 2, VRB + 2, t4[0], t4[1])
    pk(KB[0], acc[0]['Ka']); pk(KB[0] + 4, acc[0]['Kb'])
    pk(VA + 2, acc[0]['Va']); pk(VB + 2, acc[0]['Vb'])
    fin0()
    e('s_waitcnt lgkmcnt(0)')
    e('s_barrier')
    for k, r in enumerate([KB['P'], KB['P'] + 2, KB['P'] + 4, VA, VB, VRA, VRB]):
        e('ds_read_b64 %s, %s offset:%d' % (v(r, 2), v(vXr), 512 * k))
    for t in range(2):
        pk(QB[t], acc[t]['Qa']); pk(QB[t] + 6, acc[t]['Qb'])
        e('v_and_b32 %s, %s, %s' % (v(QB[t] + 2), v(vMG0), v(Tq[t])))
        e('v_mov_b32 %s, 0' % v(QB[t] + 3)); e('v_mov_b32 %s, 0' % v(QB[t] + 4))
        e('v_and_b32 %s, %s, %s' % (v(QB[t] + 5), v(vMG0), v(Tq[t] + 1)))
        e('v_mul_f32 %s, %s, %s' % (v(tg[t]), s(sGs), v(tg[t])))
        e('v_exp_f32 %s, %s' % (v(tg[t]), v(tg[t])))
        e('v_add_f32 %s, 1.0, %s' % (v(tg[t]), v(tg[t])))

    def attn(t):
        kp = KB['P'] if t == 0 else KB[0]; kc = KB[t]
        Sp = [t4[0], t4[1]]; Sc = [t4[2], t4[3]]; P = [t4[4], t4[5]]
        for h in range(2):
            mf32(Sp[h], kp + 2 * h, QB[t] + 4 * h); mf32(Sc[h], kc + 2 * h, QB[t] + 4 * h)
        ev = [t2[0], t2[1]]; mx = [t2[2], t2[3]]
        for h in range(2):
            for k, mc in ((0, sMc0), (1, sMc1)):
                e('v_cndmask_b32 %s, %s, %s, %s' % (v(Sp[h] + 2 * k), v(Sp[h] + 2 * k), v(Sp[h] + 2 * k + 1), s(sMpar, 2)))
                e('v_cndmask_b32 %s, %s, %s, %s' % (v(Sc[h] + 2 * k), v(Sc[h] + 2 * k), v(Sc[h] + 2 * k + 1), s(sMpar, 2)))
                if t == 0:
                    e('v_cndmask_b32 %s, %s, %s, %s' % (v(Sp[h] + 2 * k), v(Sp[h] + 2 * k), v(vNeg), s(sFirst, 2)))
                e('v_cndmask_b32 %s, %s, %s, %s' % (v(ev[h] + k), v(Sp[h] + 2 * k), v(Sc[h] + 2 * k), s(mc, 2)))
            e('v_max_f32 %s, %s, %s' % (v(mx[h]), v(ev[h]), v(ev[h] + 1)))
            e('v_mov_b32 %s, %s' % (v(mx[h] + 1), v(mx[h])))
        for sw in ('v_permlane32_swap_b32', 'v_permlane16_swap_b32'):
            for h in range(2):
                e('%s %s, %s' % (sw, v(mx[h]), v(mx[h] + 1)))
            for h in range(2):
                e('v_max_f32 %s, %s, %s' % (v(mx[h]), v(mx[h]), v(mx[h] + 1)))
                if sw.startswith('v_permlane32'):
                    e('v_mov_b32 %s, %s' % (v(mx[h] + 1), v(mx[h])))
        for h in range(2):
            for k in range(2):
                e('v_sub_f32 %s, %s, %s' % (v(ev[h] + k), v(ev[h] + k), v(mx[h])))
                e('v_mul_f32 %s, %s, %s' % (v(ev[h] + k), s(sC), v(ev[h] + k)))
                e('v_exp_f32 %s, %s' % (v(ev[h] + k), v(ev[h] + k)))
        for h in range(2):
            for k, (mp, mc) in enumerate(((vMP0, vMC0), (vMP1, vMC1))):
                e('v_cvt_pk_bf16_f32 %s, %s, %s' % (v(ev[h] + k), v(ev[h] + k), v(ev[h] + k)))
                e('v_and_b32 %s, %s, %s' % (v(P[h] + k), v(mp), v(ev[h] + k)))
                e('v_and_b32 %s, %s, %s' % (v(P[h] + 2 + k), v(mc), v(ev[h] + k)))
        O = [t4[0], t4[1]]; OR = [t4[2], t4[3]]
        for h in range(2):
            mf32(OR[h], (VRA, VRB)[h] + 2 * t, P[h])
            mf32(O[h], (VA, VB)[h] + 2 * t, P[h])
        for h in range(2):
            den = OR[h] + (2 if h == 0 else 0); inv = mx[h]
            e('v_mul_f32 %s, %s, %s' % (v(inv), v(den), v(tg[t])))
            e('v_rcp_f32 %s, %s' % (v(inv), v(inv)))
        for h in range(2):
            inv = mx[h]; ro = OR[h] + (0 if h == 0 else 2)
            for k in range(2):
                e('v_mul_f32 %s, %s, %s' % (v(ro + k), v(inv), v(ro + k)))
            e('v_cvt_pk_bf16_f32 %s, %s, %s' % (v(outR[t] + h), v(ro), v(ro + 1)))
            for k in range(4):
                e('v_mul_f32 %s, %s, %s' % (v(O[h] + k), v(inv), v(O[h] + k)))
            pk(outM[t] + 2 * h, O[h])
        e('buffer_store_dwordx4 %s, %s, %s, %s offen' % (v(outM[t], 4), v(vStM), s(SO, 4), s((sSt0, sSt1)[t])))
        e('buffer_store_dwordx2 %s, %s, %s, %s offen' % (v(outR[t], 2), v(vStR), s(SO, 4), s((sSr0, sSr1)[t])))
    attn(1)
    e('s_waitcnt lgkmcnt(0)')
    attn(0)
    A.label('K1_END')
    e('s_endpgm')
    return GB + 8192

def kernel2(A, label):
    e = A.e
    S = 40960; OOFF = 16384
    SA, SB, SO, SY = 4, 8, 12, 16
    sXcd, sIdx, sL, sMb, sNb, sWv, sCt, sRgp, sT0, sT1, sT2 = range(20, 31)
    sOffW, sOffO, sWoff, sCnt, sDelta, sRing, sDm, sSt = range(31, 39)
    sM = 40
    R = RegAlloc(1, 256)
    vLane = R.alloc(); vT = [R.alloc() for _ in range(6)]
    vDW = R.alloc(); vDR = R.alloc(); vDO = [R.alloc() for _ in range(3)]
    vAW = R.alloc(); vAO = R.alloc(); vSt = R.alloc()
    acc = [R.alloc(4) for _ in range(3)]
    buf = [{'W': [R.alloc(4), R.alloc(4)], 'O': [[R.alloc(4) for _ in range(3)] for _ in range(2)]} for _ in range(2)]
    A.raw('.globl %s' % label); A.raw('.p2align 8'); A.raw('.type %s,@function' % label); A.raw(label + ':')
    e('s_cmp_ge_u32 s2, 240')
    e('s_cbranch_scc1 K2_END')
    e('s_and_b32 %s, s2, 7' % s(sXcd))
    e('s_lshr_b32 %s, s2, 3' % s(sIdx))
    e('s_mul_i32 %s, %s, 30' % (s(sL), s(sXcd)))
    e('s_add_u32 %s, %s, %s' % (s(sL), s(sL), s(sIdx)))
    e('s_cmp_ge_u32 %s, 234' % s(sL))
    e('s_cbranch_scc1 K2_END')
    e('s_load_dwordx2 %s, s[0:1], 16' % s(SA, 2))
    e('s_load_dwordx2 %s, s[0:1], 40' % s(SB, 2))
    e('s_load_dwordx2 %s, s[0:1], 72' % s(SO, 2))
    e('s_load_dwordx2 %s, s[0:1], 56' % s(SY, 2))
    e('s_mul_i32 %s, %s, 7282' % (s(sMb), s(sL)))
    e('s_lshr_b32 %s, %s, 16' % (s(sMb), s(sMb)))
    e('s_mul_i32 %s, %s, 9' % (s(sT0), s(sMb)))
    e('s_sub_u32 %s, %s, %s' % (s(sNb), s(sL), s(sT0)))
    e('v_lshrrev_b32 %s, 6, v0' % v(vT[0]))
    e('v_and_b32 %s, 63, v0' % v(vLane))
    e('v_readfirstlane_b32 %s, %s' % (s(sWv), v(vT[0])))
    e('s_and_b32 %s, %s, 3' % (s(sCt), s(sWv)))
    e('s_lshr_b32 %s, %s, 2' % (s(sRgp), s(sWv)))
    e('s_lshl_b32 %s, %s, 10' % (s(sWoff), s(sWv)))
    q = vT[0]; col = vT[1]
    e('v_lshrrev_b32 %s, 3, %s' % (v(q), v(vLane)))
    e('v_bfe_u32 %s, %s, 1, 2' % (v(vT[2]), v(vLane)))
    e('v_lshrrev_b32 %s, 4, %s' % (v(vT[3]), v(vLane)))
    e('v_xor_b32 %s, %s, %s' % (v(vT[2]), v(vT[2]), v(vT[3])))
    e('v_and_b32 %s, 1, %s' % (v(vT[3]), v(vLane)))
    e('v_lshl_add_u32 %s, %s, 1, %s' % (v(col), v(vT[2]), v(vT[3])))
    e('v_lshlrev_b32 %s, 4, %s' % (v(col), v(col)))
    e('s_lshl_b32 %s, %s, 7' % (s(sT0), s(sNb)))
    e('v_add_u32 %s, %s, %s' % (v(col), s(sT0), v(col)))
    e('s_mul_i32 %s, %s, 36' % (s(sT0), s(sRgp)))
    e('s_and_b32 %s, %s, 1' % (s(sT1), s(sWv)))
    e('s_mul_i32 %s, %s, 20' % (s(sT2), s(sT1)))
    e('s_add_u32 %s, %s, %s' % (s(sT0), s(sT0), s(sT2)))
    e('s_bfe_u32 %s, %s, 0x10001' % (s(sT2), s(sWv)))
    e('s_lshl_b32 %s, %s, 3' % (s(sM), s(sT2)))
    e('s_add_u32 %s, %s, %s' % (s(sT0), s(sT0), s(sM)))
    e('v_add_u32 %s, %s, %s' % (v(vT[2]), s(sT0), v(q)))
    e('s_movk_i32 %s, 1152' % s(sM))
    e('v_mad_u32_u24 %s, %s, %s, %s' % (v(vDW), v(vT[2]), s(sM), v(col)))
    e('s_lshl_b32 %s, %s, 2' % (s(sT0), s(sRgp)))
    e('s_lshl_b32 %s, %s, 1' % (s(sT2), s(sT2)))
    e('s_add_u32 %s, %s, %s' % (s(sT0), s(sT0), s(sT2)))
    e('s_mul_i32 %s, %s, 72' % (s(sT0), s(sT0)))
    e('s_mul_i32 %s, %s, 36' % (s(sT1), s(sT1)))
    e('s_add_u32 %s, %s, %s' % (s(sT0), s(sT0), s(sT1)))
    e('s_add_u32 %s, %s, 16' % (s(sT0), s(sT0)))
    e('v_lshrrev_b32 %s, 2, %s' % (v(vT[2]), v(q)))
    e('v_mul_u32_u24 %s, 72, %s' % (v(vT[2]), v(vT[2])))
    e('v_and_b32 %s, 3, %s' % (v(vT[3]), v(q)))
    e('v_add3_u32 %s, %s, %s, %s' % (v(vT[2]), v(vT[2]), v(vT[3]), s(sT0)))
    e('v_mad_u32_u24 %s, %s, %s, %s' % (v(vDR), v(vT[2]), s(sM), v(col)))
    e('s_mul_i32 %s, %s, 5' % (s(sT0), s(sMb)))
    e('s_add_u32 %s, %s, %s' % (s(sT0), s(sT0), s(sRgp)))
    e('s_mul_i32 %s, %s, 36864' % (s(sT0), s(sT0)))
    e('s_lshl_b32 %s, %s, 10' % (s(sT1), s(sCt)))
    e('s_add_u32 %s, %s, %s' % (s(sT0), s(sT0), s(sT1)))
    e('v_lshlrev_b32 %s, 4, %s' % (v(vT[2]), v(vLane)))
    e('v_add_u32 %s, %s, %s' % (v(vDO[0]), s(sT0), v(vT[2])))
    e('v_add_u32 %s, %d, %s' % (v(vDO[1]), 2 * 36864, v(vDO[0])))
    e('s_cmp_lt_u32 %s, 4' % s(sWv))
    e('s_cselect_b32 %s, %d, 0x%x' % (s(sT1), 4 * 36864, OOB))
    e('v_add_u32 %s, %s, %s' % (v(vDO[2]), s(sT1), v(vDO[0])))
    e('s_waitcnt lgkmcnt(0)')
    srd(A, SA, 576 * 1152); srd(A, SB, 576 * 1152); srd(A, SO, OP_BYTES); srd(A, SY, 2048 * 1152)
    def dma_list(sbase, vw):
        L = []
        for j in range(5):
            def f(j=j):
                e('s_add_u32 m0, %s, %d' % (s(sbase), 8192 * j))
                if j < 2: e('buffer_load_dwordx4 %s, %s, %s offen lds' % (v(vw), s((SA, SB)[j], 4), s(sOffW)))
                else: e('buffer_load_dwordx4 %s, %s, %s offen lds' % (v(vDO[j - 2]), s(SO, 4), s(sOffO)))
            L.append(f)
        return L
    e('s_mov_b32 %s, 0' % s(sOffW)); e('s_mov_b32 %s, 0' % s(sOffO))
    for st in range(4):
        e('s_add_u32 %s, %s, %d' % (s(sDm), s(sWoff), st * S))
        for f in dma_list(sDm, vDR if st == 0 else vDW): f()
        if st > 0: e('s_add_u32 %s, %s, %d' % (s(sOffW), s(sOffW), 72 * 1152))
        e('s_add_u32 %s, %s, 4096' % (s(sOffO), s(sOffO)))
    g, r4, c4 = vT[0], vT[1], vT[2]
    e('v_lshrrev_b32 %s, 4, %s' % (v(g), v(vLane)))
    e('v_bfe_u32 %s, %s, 2, 2' % (v(r4), v(vLane)))
    e('v_and_b32 %s, 3, %s' % (v(c4), v(vLane)))
    e('v_lshrrev_b32 %s, 1, %s' % (v(vT[3]), v(g)))
    e('v_lshlrev_b32 %s, 4, %s' % (v(vT[3]), v(vT[3])))
    e('v_and_b32 %s, 1, %s' % (v(vT[4]), v(g)))
    e('v_lshl_add_u32 %s, %s, 2, %s' % (v(vT[4]), v(vT[4]), v(r4)))
    e('v_add_u32 %s, %s, %s' % (v(vT[3]), v(vT[3]), v(vT[4])))
    e('v_lshrrev_b32 %s, 1, %s' % (v(vT[4]), v(vT[4])))
    e('v_xor_b32 %s, %s, %s' % (v(vT[4]), s(sCt), v(vT[4])))
    e('v_lshlrev_b32 %s, 5, %s' % (v(vT[4]), v(vT[4])))
    e('v_lshl_add_u32 %s, %s, 7, %s' % (v(vT[3]), v(vT[3]), v(vT[4])))
    e('v_lshl_add_u32 %s, %s, 3, %s' % (v(vAW), v(c4), v(vT[3])))
    e('s_mul_i32 %s, %s, %d' % (s(sT0), s(sRgp), 3 * 4096))
    e('s_add_u32 %s, %s, %d' % (s(sT0), s(sT0), OOFF))
    e('v_lshlrev_b32 %s, 4, %s' % (v(vAO), v(vLane)))
    e('v_add_u32 %s, %s, %s' % (v(vAO), s(sT0), v(vAO)))
    e('s_mul_i32 %s, %s, 80' % (s(sT0), s(sMb)))
    e('s_mul_i32 %s, %s, 48' % (s(sT1), s(sRgp)))
    e('s_add_u32 %s, %s, %s' % (s(sT0), s(sT0), s(sT1)))
    e('s_mul_i32 %s, %s, 1152' % (s(sT0), s(sT0)))
    e('s_lshl_b32 %s, %s, 7' % (s(sT1), s(sNb)))
    e('s_add_u32 %s, %s, %s' % (s(sT0), s(sT0), s(sT1)))
    e('s_lshl_b32 %s, %s, 5' % (s(sT1), s(sCt)))
    e('s_add_u32 %s, %s, %s' % (s(sSt), s(sT0), s(sT1)))
    e('v_and_b32 %s, 15, %s' % (v(vT[3]), v(vLane)))
    e('v_mul_u32_u24 %s, 1152, %s' % (v(vT[3]), v(vT[3])))
    e('v_lshl_add_u32 %s, %s, 3, %s' % (v(vSt), v(g), v(vT[3])))
    e('s_cmp_eq_u32 %s, 0' % s(sRgp))
    e('s_cselect_b64 vcc, -1, 0')
    for a in acc:
        for k in range(4): e('v_mov_b32 %s, 0' % v(a + k))
    def reads(b, half):
        B = buf[b]; L = []
        for k2 in range(2):
            kk = half * 2 + k2
            for j2 in range(2):
                L.append(lambda k2=k2, kk=kk, j2=j2: e('ds_read_b64_tr_b16 %s, %s offset:%d' % (v(B['W'][k2] + 2 * j2, 2), v(vAW), kk * 4096 + j2 * 1024)))
            for t in range(3):
                L.append(lambda k2=k2, kk=kk, t=t: e('ds_read_b128 %s, %s offset:%d' % (v(B['O'][k2][t], 4), v(vAO), t * 4096 + kk * 1024)))
        return L
    lab = [0]
    def mfmas(b):
        B = buf[b]; L = []
        for k2 in range(2):
            for t in range(2):
                L.append(lambda k2=k2, t=t: e('v_mfma_f32_16x16x32_bf16 %s, %s, %s, %s' % (v(acc[t], 4), v(B['W'][k2], 4), v(B['O'][k2][t], 4), v(acc[t], 4))))
        def h():
            lab[0] += 1
            e('s_cbranch_vccz K2_S%d' % lab[0])
            for k2 in range(2):
                e('v_mfma_f32_16x16x32_bf16 %s, %s, %s, %s' % (v(acc[2], 4), v(B['W'][k2], 4), v(B['O'][k2][2], 4), v(acc[2], 4)))
            A.label('K2_S%d' % lab[0])
        L.append(h)
        return L
    e('s_mov_b32 %s, 0' % s(sCnt)); e('s_mov_b32 %s, 0' % s(sRing))
    e('s_waitcnt vmcnt(15)')
    e('s_barrier')
    for f in reads(0, 0): f()
    A.barrier_hazards()
    A.label('K2_LOOP')
    e('s_waitcnt lgkmcnt(0)')
    interleave(A, mfmas(0), reads(1, 1), per=3)
    e('s_cmp_eq_u32 %s, %d' % (s(sRing), 3 * S))
    csel(A, sDelta, str(-3 * S), str(S))
    e('s_add_u32 %s, %s, %s' % (s(sDm), s(sWoff), s(sRing)))
    e('s_add_u32 %s, %s, %s' % (s(sRing), s(sRing), s(sDelta)))
    e('s_cmp_ge_u32 %s, 5' % s(sCnt))
    e('s_cselect_b32 %s, 0x%x, %s' % (s(sOffW), OOB, s(sOffW)))
    e('s_cselect_b32 %s, 0x%x, %s' % (s(sOffO), OOB, s(sOffO)))
    e('s_waitcnt vmcnt(10) lgkmcnt(0)')
    e('s_barrier')
    for a in (vAW, vAO):
        e('v_add_u32 %s, %s, %s' % (v(a), s(sDelta), v(a)))
    rl = reads(0, 0); dl = dma_list(sDm, vDW)
    fill = []
    for k in range(len(rl)):
        if k < len(dl): fill.append(dl[k])
        fill.append(rl[k])
    interleave(A, mfmas(1), fill, per=4)
    e('s_add_u32 %s, %s, %d' % (s(sOffW), s(sOffW), 72 * 1152))
    e('s_add_u32 %s, %s, 4096' % (s(sOffO), s(sOffO)))
    e('s_add_u32 %s, %s, 1' % (s(sCnt), s(sCnt)))
    e('s_cmp_lt_u32 %s, 9' % s(sCnt))
    e('s_cbranch_scc1 K2_LOOP')
    e('s_waitcnt lgkmcnt(0)')
    for t in range(3):
        if t == 2: e('s_cbranch_vccz K2_END')
        o = buf[0]['W'][0] if t != 1 else buf[0]['W'][1]
        e('v_cvt_pk_bf16_f32 %s, %s, %s' % (v(o), v(acc[t]), v(acc[t] + 1)))
        e('v_cvt_pk_bf16_f32 %s, %s, %s' % (v(o + 1), v(acc[t] + 2), v(acc[t] + 3)))
        e('buffer_store_dwordx2 %s, %s, %s, %s offen' % (v(o, 2), v(vSt), s(SY, 4), s(sSt)))
        e('s_add_u32 %s, %s, %d' % (s(sSt), s(sSt), 16 * 1152))
        if t == 0: o = None
    A.label('K2_END')
    e('s_endpgm')
    return 4 * S

def desc(label, vg=256):
    return '''.amdhsa_kernel %s
  .amdhsa_next_free_vgpr %d
  .amdhsa_next_free_sgpr 102
  .amdhsa_accum_offset %d
  .amdhsa_group_segment_fixed_size 0
  .amdhsa_kernarg_size 80
  .amdhsa_user_sgpr_count 2
  .amdhsa_user_sgpr_kernarg_segment_ptr 1
  .amdhsa_system_sgpr_workgroup_id_x 1
.end_amdhsa_kernel
''' % (label, vg, vg)

def main(path):
    A1 = Asm(); l1 = kernel1(A1, 'p1_kernel')
    A2 = Asm(); l2 = kernel2(A2, 'p2_kernel')
    hdr = '; @launch kernel=p1_kernel grid=(256,1,1) block=(512,1,1) lds=%d\n' % l1
    hdr += '; @launch kernel=p2_kernel grid=(240,1,1) block=(512,1,1) lds=%d\n' % l2
    hdr += '.amdgcn_target "amdgcn-amd-amdhsa--gfx950"\n.text\n'
    txt = hdr + A1.text() + A2.text() + '.section .rodata,"a"\n.p2align 6\n' + desc('p1_kernel') + '.p2align 6\n' + desc('p2_kernel', 128)
    open(path, 'w').write(txt)
    print('k1 instrs', A1.nins, 'k2 instrs', A2.nins)

if __name__ == '__main__':
    main(sys.argv[1] if len(sys.argv) > 1 else 'cdna_kernels/%s.s' % NAME)
```

```python
import sys, math, struct
sys.path.insert(0, 'gen')
from asmlib import *

NAME = 'gated_mix__sliding_local_dilated__sliding_local_dilated__prompt'
OOB = 0x40000000
def f32(x): return '0x%08x' % struct.unpack('<I', struct.pack('<f', x))[0]
def lanemask(fn):
    m = 0
    for l in range(64):
        if fn(l): m |= 1 << l
    return m
def setmask(A, sr, fn):
    m = lanemask(fn)
    lo, hi = m & 0xffffffff, m >> 32
    A.e('s_mov_b32 %s, 0x%08x' % (s(sr), lo))
    A.e('s_mov_b32 %s, 0x%08x' % (s(sr + 1), hi))
def mksrd(A, sr, src, nbytes):
    A.e('s_mov_b32 %s, %s' % (s(sr), s(src)))
    A.e('s_and_b32 %s, %s, 0xffff' % (s(sr + 1), s(src + 1)))
    A.e('s_mov_b32 %s, %d' % (s(sr + 2), nbytes))
    A.e('s_mov_b32 %s, 0x00020000' % s(sr + 3))

OP_BYTES = 128 * 36864
S = 46080; WOFF = 18432
WO0 = 138240
GB = WO0 + 16384
LDS = 163840
FLAG_OFF = 8 << 20
STAMP_OFF = 16 << 20

OPT = {'stamp': False}

class Stamper:
    def __init__(self, A, vreg, sreg, slane):
        self.A = A; self.v = vreg; self.s = sreg; self.sl = slane
    def start(self):
        if not OPT['stamp']: return
        e = self.A.e
        e('v_mov_b32 %s, 0' % v(self.v))
        e('s_memrealtime %s' % s(self.s, 2)); e('s_waitcnt lgkmcnt(0)')
        e('v_writelane_b32 %s, %s, 63' % (v(self.v), s(self.s)))
        e('s_mov_b32 %s, 0' % s(self.sl))
        self.mark()
    def mark(self):
        if not OPT['stamp']: return
        e = self.A.e
        e('s_memtime %s' % s(self.s, 2)); e('s_waitcnt lgkmcnt(0)')
        e('s_mov_b32 m0, %s' % s(self.sl))
        e('v_writelane_b32 %s, %s, m0' % (v(self.v), s(self.s)))
        e('s_add_u32 %s, %s, 1' % (s(self.sl), s(self.sl)))
    def finish(self, srdreg, wsreg, vtmp):
        if not OPT['stamp']: return
        e = self.A.e
        e('s_waitcnt vmcnt(0)')
        self.mark()
        e('s_memrealtime %s' % s(self.s, 2)); e('s_waitcnt lgkmcnt(0)')
        e('v_writelane_b32 %s, %s, 62' % (v(self.v), s(self.s)))
        mksrd(self.A, srdreg, wsreg, 64 << 20)
        e('s_lshl_b32 %s, s2, 11' % s(self.s))
        e('s_add_u32 %s, %s, %d' % (s(self.s), s(self.s), STAMP_OFF))
        e('v_lshlrev_b32 %s, 2, v0' % v(vtmp))
        e('buffer_store_dword %s, %s, %s, %s offen' % (v(self.v), v(vtmp), s(srdreg, 4), s(self.s)))

class DbgStamper:
    def __init__(self, A, vreg, sreg, slane):
        self.A = A; self.v = vreg; self.s = sreg; self.k = 0; self.base = 2
    def srd(self):
        mksrd(self.A, 100 - 8, 24, 256)
    def put(self, idx, inv=False):
        e = self.A.e
        e('s_and_b32 %s, s34, 3' % s(self.s))
        e('s_cbranch_scc1 DBG_%d' % idx)
        e('s_memrealtime %s' % s(self.s, 2)); e('s_waitcnt lgkmcnt(0)')
        if inv: e('s_not_b32 %s, %s' % (s(self.s), s(self.s)))
        e('v_mov_b32 %s, %s' % (v(self.v), s(self.s)))
        e('v_mov_b32 %s, 0' % v(self.v - 1))
        mksrd(self.A, 4, 24, 256)
        e('s_mov_b64 exec, 1')
        e('buffer_atomic_umax %s, %s, %s, 0 offen offset:%d sc1' % (v(self.v), v(self.v - 1), s(4, 4), 4 * idx))
        e('s_mov_b64 exec, -1')
        self.A.label('DBG_%d' % idx)
    def start(self):
        self.k = 0
        self.base = 2 if self.base == 9 else 9
        self.put(self.base, True)
        self.sel = {9: (1, 3, 6, 7), 2: (2, 3, 4, 5, 7)}[self.base]
        self.n = 0
    def mark(self):
        if self.k in self.sel:
            self.n += 1
            self.put(self.base + self.n)
        self.k += 1
    def finish(self, srdreg, wsreg, vtmp):
        self.A.e('s_waitcnt vmcnt(0)')
        self.put(self.base + len(self.sel) + 1)

class LQ:
    def __init__(self, A): self.A = A; self.q = []
    def rd(self, text, dst, n):
        self.A.e(text); self.q.append(set(range(dst, dst + n)))
    def need(self, *rs):
        regs = set()
        for r, n in rs: regs |= set(range(r, r + n))
        last = -1
        for i, d in enumerate(self.q):
            if d & regs: last = i
        if last < 0: return
        cnt = len(self.q) - 1 - last
        cnt = min(cnt, 15)
        self.A.e('s_waitcnt lgkmcnt(%d)' % cnt)
        self.q = self.q[len(self.q) - cnt:] if cnt else []
    def drain(self):
        self.A.e('s_waitcnt lgkmcnt(0)'); self.q = []

def kernel(A, label):
    e = A.e
    pX, pWA, pWoA, pWB, pWoB, pG, pOut, pDbg, pWs = 8, 10, 12, 16, 18, 20, 22, 24, 26
    sXcd, sIdx, sRb, sHgb, sHg, sBr, sWv, sRot, sT0, sT1, sT2, sT3 = range(28, 40)
    sL2, sMb, sNb, sRot2 = range(40, 44)
    SA, SB, SC, SD = 44, 48, 52, 56
    sM = 60
    sx = 62
    ST = Stamper(A, 255, 96, 98) if not OPT.get('dbg') else DbgStamper(A, 255, 96, 98)
    A.raw('.globl %s' % label); A.raw('.p2align 8'); A.raw('.type %s,@function' % label); A.raw(label + ':')
    e('s_cmp_ge_u32 s2, 256')
    e('s_cbranch_scc1 K_END')
    e('s_load_dwordx16 s[8:23], s[0:1], 0')
    e('s_load_dwordx4 s[24:27], s[0:1], 64')
    e('v_lshrrev_b32 v2, 6, v0')
    e('v_and_b32 v1, 63, v0')
    e('v_readfirstlane_b32 %s, v2' % s(sWv))
    vLane = 1
    e('s_and_b32 %s, s2, 7' % s(sXcd))
    e('s_lshr_b32 %s, s2, 3' % s(sIdx))
    e('s_and_b32 %s, %s, 7' % (s(sT0), s(sIdx)))
    e('s_lshr_b32 %s, %s, 3' % (s(sT1), s(sIdx)))
    e('s_and_b32 %s, %s, 1' % (s(sT2), s(sXcd)))
    e('s_lshr_b32 %s, %s, 1' % (s(sT3), s(sXcd)))
    e('s_lshl3_add_u32 %s, %s, %s' % (s(sRb), s(sT2), s(sT0)))
    e('s_lshl2_add_u32 %s, %s, %s' % (s(sHgb), s(sT3), s(sT1)))
    e('s_add_u32 %s, %s, %s' % (s(sT1), s(sT1), s(sT3)))
    e('s_lshl1_add_u32 %s, %s, %s' % (s(sRot), s(sT1), s(sT0)))
    e('s_lshl2_add_u32 %s, %s, %s' % (s(sRot), s(sT2), s(sRot)))
    e('s_mul_i32 %s, %s, 57' % (s(sT0), s(sRot)))
    e('s_lshr_b32 %s, %s, 9' % (s(sT0), s(sT0)))
    e('s_mul_i32 %s, %s, 9' % (s(sT0), s(sT0)))
    e('s_sub_u32 %s, %s, %s' % (s(sRot), s(sRot), s(sT0)))
    e('s_and_b32 %s, %s, 7' % (s(sHg), s(sHgb)))
    e('s_lshr_b32 %s, %s, 3' % (s(sBr), s(sHgb)))
    e('s_cmp_lt_u32 %s, 4' % s(sWv))
    e('s_cbranch_scc1 C_START')

    def phase2_ids():
        e('s_mul_i32 %s, %s, 30' % (s(sL2), s(sXcd)))
        e('s_sub_u32 %s, 31, %s' % (s(sT0), s(sIdx)))
        e('s_add_u32 %s, %s, %s' % (s(sL2), s(sL2), s(sT0)))
        e('s_cmp_ge_u32 %s, 30' % s(sT0))
        e('s_cselect_b32 %s, 255, %s' % (s(sL2), s(sL2)))
        e('s_mul_i32 %s, %s, 7282' % (s(sMb), s(sL2)))
        e('s_lshr_b32 %s, %s, 16' % (s(sMb), s(sMb)))
        e('s_mul_i32 %s, %s, 9' % (s(sT0), s(sMb)))
        e('s_sub_u32 %s, %s, %s' % (s(sNb), s(sL2), s(sT0)))
        e('s_lshl1_add_u32 %s, %s, %s' % (s(sRot2), s(sMb), s(sNb)))
        e('s_mul_i32 %s, %s, 57' % (s(sT0), s(sRot2)))
        e('s_lshr_b32 %s, %s, 9' % (s(sT0), s(sT0)))
        e('s_mul_i32 %s, %s, 9' % (s(sT0), s(sT0)))
        e('s_sub_u32 %s, %s, %s' % (s(sRot2), s(sRot2), s(sT0)))

    sJ, sKc, sXr0, sXrow, sWrow, sRing, sCnt, sLx, sLw, sSo, sEx, sCh, sPos, sStep, sWm, sWr = range(sx, sx + 16)
    sEx = sx + 16
    R = RegAlloc(2, 254)
    vT = [R.alloc() for _ in range(4)]
    vDX, vDXh, vDW, vDM, vDR, vDC = [R.alloc() for _ in range(6)]
    ST.start()
    e('s_sub_u32 %s, %s, 4' % (s(sJ), s(sWv)))
    e('s_and_b32 %s, %s, 1' % (s(sT0), s(sJ)))
    e('s_lshl_b32 %s, %s, 2' % (s(sT0), s(sT0)))
    e('v_lshrrev_b32 %s, 4, %s' % (v(vT[0]), v(vLane)))
    e('v_add_u32 %s, %s, %s' % (v(vT[0]), s(sT0), v(vT[0])))
    e('v_and_b32 %s, 7, %s' % (v(vT[1]), v(vLane)))
    e('v_xor_b32 %s, %s, %s' % (v(vT[0]), v(vT[0]), v(vT[1])))
    e('v_lshlrev_b32 %s, 4, %s' % (v(vT[0]), v(vT[0])))
    e('v_lshrrev_b32 %s, 3, %s' % (v(vT[1]), v(vLane)))
    e('s_movk_i32 %s, 1152' % s(sT1))
    e('v_mad_u32_u24 %s, %s, %s, %s' % (v(vDX), v(vT[1]), s(sT1), v(vT[0])))
    e('s_lshl_b32 %s, %s, 7' % (s(sT0), s(sRb)))
    e('s_lshl3_add_u32 %s, %s, %s' % (s(sT0), s(sJ), s(sT0)))
    e('s_sub_u32 %s, %s, 16' % (s(sT0), s(sT0)))
    e('s_mul_i32 %s, %s, 1152' % (s(sXrow), s(sT0)))
    e('s_max_i32 %s, %s, 0' % (s(sXr0), s(sXrow)))
    e('s_cmp_lt_i32 %s, 0' % s(sT0))
    e('s_cselect_b64 %s, -1, 0' % s(sM, 2))
    e('v_cndmask_b32 %s, %s, %s, %s' % (v(vDXh), v(vDX), v(vT[0]), s(sM, 2)))
    e('v_subrev_u32 %s, 27, %s' % (v(vT[0]), v(vLane)))
    e('v_cmp_lt_u32 vcc, 26, %s' % v(vLane))
    e('v_cndmask_b32 %s, %s, %s, vcc' % (v(vT[0]), v(vLane), v(vT[0])))
    e('v_mov_b32 %s, %d' % (v(vT[2]), 4 * 3456))
    e('v_cndmask_b32 %s, 0, %s, vcc' % (v(vT[2]), v(vT[2])))
    e('v_mul_u32_u24 %s, 57, %s' % (v(vT[1]), v(vT[0])))
    e('v_lshrrev_b32 %s, 9, %s' % (v(vT[1]), v(vT[1])))
    e('v_mul_u32_u24 %s, 1008, %s' % (v(vT[1]), v(vT[1])))
    e('v_lshl_add_u32 %s, %s, 4, %s' % (v(vT[1]), v(vT[0]), v(vT[1])))
    e('s_mul_i32 %s, %s, 144' % (s(sT0), s(sHg)))
    e('v_add3_u32 %s, %s, %s, %s' % (v(vDW), v(vT[1]), v(vT[2]), s(sT0)))
    e('s_mul_i32 %s, %s, 3456' % (s(sWrow), s(sJ)))
    e('s_lshl_b32 %s, %s, 10' % (s(sLx), s(sJ)))
    e('s_mul_i32 %s, %s, 864' % (s(sLw), s(sJ)))
    e('s_add_u32 %s, %s, %d' % (s(sLw), s(sLw), WOFF))
    setmask(A, sEx, lambda l: l < 54)
    e('s_mov_b32 %s, %s' % (s(sKc), s(sRot)))
    e('s_mov_b32 %s, 0' % s(sRing))
    e('s_mov_b32 %s, 0' % s(sCnt))
    e('s_waitcnt lgkmcnt(0)')
    mksrd(A, SA, pX, 2048 * 1152)
    e('s_cmp_eq_u32 %s, 0' % s(sBr))
    e('s_cselect_b32 %s, %s, %s' % (s(sT0), s(pWA), s(pWB)))
    e('s_cselect_b32 %s, %s, %s' % (s(sT1), s(pWA + 1), s(pWB + 1)))
    mksrd(A, SB, sT0, 576 * 3456)
    ST.mark()
    A.label('L_LOOP')
    e('s_cmp_lt_u32 %s, 2' % s(sCnt))
    e('s_cbranch_scc1 L_ISSUE')
    e('s_waitcnt vmcnt(12)')
    e('s_barrier')
    A.label('L_ISSUE')
    e('s_lshl_b32 %s, %s, 7' % (s(sT0), s(sKc)))
    e('s_add_u32 %s, %s, %s' % (s(sT1), s(sRing), s(sLx)))
    for q in range(5):
        if q == 4:
            e('s_cmp_ge_u32 %s, 2' % s(sJ))
            e('s_cbranch_scc1 L_NOX4')
        if q == 0:
            e('s_add_u32 %s, %s, %s' % (s(sSo), s(sXr0), s(sT0)))
            e('s_mov_b32 m0, %s' % s(sT1))
            e('buffer_load_dwordx4 %s, %s, %s offen lds' % (v(vDXh), s(SA, 4), s(sSo)))
            e('s_add_u32 %s, %s, %s' % (s(sT0), s(sXrow), s(sT0)))
        else:
            e('s_add_u32 %s, %s, %d' % (s(sSo), s(sT0), 32 * 1152 * q))
            e('s_add_u32 m0, %s, %d' % (s(sT1), 4096 * q))
            e('buffer_load_dwordx4 %s, %s, %s offen lds' % (v(vDX), s(SA, 4), s(sSo)))
    A.label('L_NOX4')
    e('s_mul_i32 %s, %s, %d' % (s(sT0), s(sKc), 64 * 3456))
    e('s_add_u32 %s, %s, %s' % (s(sT0), s(sT0), s(sWrow)))
    e('s_add_u32 %s, %s, %s' % (s(sT1), s(sRing), s(sLw)))
    e('s_mov_b64 exec, %s' % s(sEx, 2))
    for q in range(8):
        e('s_add_u32 %s, %s, %d' % (s(sSo), s(sT0), 8 * 3456 * q))
        e('s_add_u32 m0, %s, %d' % (s(sT1), 3456 * q))
        e('buffer_load_dwordx4 %s, %s, %s offen lds' % (v(vDW), s(SB, 4), s(sSo)))
    e('s_mov_b64 exec, -1')
    e('s_add_u32 %s, %s, 1' % (s(sKc), s(sKc)))
    e('s_cmp_eq_u32 %s, 9' % s(sKc))
    e('s_cselect_b32 %s, 0, %s' % (s(sKc), s(sKc)))
    e('s_add_u32 %s, %s, %d' % (s(sRing), s(sRing), S))
    e('s_cmp_eq_u32 %s, %d' % (s(sRing), 3 * S))
    e('s_cselect_b32 %s, 0, %s' % (s(sRing), s(sRing)))
    e('s_add_u32 %s, %s, 1' % (s(sCnt), s(sCnt)))
    e('s_cmp_lt_u32 %s, 9' % s(sCnt))
    e('s_cbranch_scc1 L_LOOP')
    ST.mark()
    phase2_ids()
    e('s_cmp_ge_u32 %s, 234' % s(sL2))
    e('s_cbranch_scc1 L_NOP2')
    mksrd(A, SA, pWoA, 576 * 1152)
    mksrd(A, SB, pWoB, 576 * 1152)
    q_, col = vT[0], vT[1]
    e('v_lshrrev_b32 %s, 3, %s' % (v(q_), v(vLane)))
    e('v_bfe_u32 %s, %s, 1, 2' % (v(vT[2]), v(vLane)))
    e('v_lshrrev_b32 %s, 4, %s' % (v(vT[3]), v(vLane)))
    e('v_xor_b32 %s, %s, %s' % (v(vT[2]), v(vT[2]), v(vT[3])))
    e('v_and_b32 %s, 1, %s' % (v(vT[3]), v(vLane)))
    e('v_lshl_add_u32 %s, %s, 1, %s' % (v(col), v(vT[2]), v(vT[3])))
    e('v_lshlrev_b32 %s, 4, %s' % (v(col), v(col)))
    e('s_lshl_b32 %s, %s, 7' % (s(sT0), s(sNb)))
    e('v_add_u32 %s, %s, %s' % (v(col), s(sT0), v(col)))
    e('s_movk_i32 %s, 1152' % s(sT1))
    e('v_mad_u32_u24 %s, %s, %s, %s' % (v(vDM), v(q_), s(sT1), v(col)))
    e('v_lshrrev_b32 %s, 2, %s' % (v(vT[2]), v(q_)))
    e('v_mul_u32_u24 %s, 68, %s' % (v(vT[2]), v(vT[2])))
    e('v_add_u32 %s, %s, %s' % (v(vT[2]), v(vT[2]), v(q_)))
    e('v_mad_u32_u24 %s, %s, %s, %s' % (v(vDR), v(vT[2]), s(sT1), v(col)))
    e('s_and_b32 %s, %s, 1' % (s(sT0), s(sJ)))
    e('s_lshr_b32 %s, %s, 1' % (s(sT2), s(sJ)))
    e('s_mul_i32 %s, %s, 20' % (s(sWm), s(sT0)))
    e('s_lshl3_add_u32 %s, %s, %s' % (s(sWm), s(sT2), s(sWm)))
    e('s_sub_u32 %s, %s, 72' % (s(sWm), s(sWm)))
    e('s_mul_i32 %s, %s, 1152' % (s(sWm), s(sWm)))
    e('s_mul_i32 %s, %s, 36' % (s(sWr), s(sT0)))
    e('s_mul_i32 %s, %s, 144' % (s(sT2), s(sT2)))
    e('s_add_u32 %s, %s, %s' % (s(sWr), s(sWr), s(sT2)))
    e('s_add_u32 %s, %s, 16' % (s(sWr), s(sWr)))
    e('s_mul_i32 %s, %s, 1152' % (s(sWr), s(sWr)))
    e('s_mov_b32 %s, %s' % (s(sCh), s(sRot2)))
    e('s_add_u32 %s, %s, %d' % (s(sPos), s(sLx), WO0))
    e('s_mov_b32 %s, 0' % s(sCnt))
    A.label('L_WO')
    e('s_cmp_eq_u32 %s, 1' % s(sCnt))
    e('s_cbranch_scc0 L_G1')
    e('s_waitcnt vmcnt(16)')
    e('s_barrier')
    A.label('L_G1')
    e('s_cmp_eq_u32 %s, 3' % s(sCnt))
    e('s_cbranch_scc0 L_G2')
    e('s_waitcnt vmcnt(12)')
    e('s_barrier')
    A.label('L_G2')
    e('s_cmp_eq_u32 %s, 6' % s(sCnt))
    e('s_cbranch_scc0 L_G3')
    e('s_barrier')
    A.label('L_G3')
    e('s_mul_i32 %s, %s, %d' % (s(sT0), s(sCh), 72 * 1152))
    e('s_add_u32 %s, %s, %s' % (s(sT0), s(sT0), s(sWm)))
    e('s_cmp_eq_u32 %s, 0' % s(sCh))
    e('s_cselect_b32 %s, %s, %s' % (s(sT0), s(sWr), s(sT0)))
    e('s_cselect_b64 %s, -1, 0' % s(sM, 2))
    e('s_mov_b32 %s, %d' % (s(sStep), 36 * 1152))
    e('s_cselect_b32 %s, %d, %s' % (s(sStep), 288 * 1152, s(sStep)))
    e('v_cndmask_b32 %s, %s, %s, %s' % (v(vDC), v(vDM), v(vDR), s(sM, 2)))
    e('s_add_u32 %s, %s, %s' % (s(sT1), s(sT0), s(sStep)))
    for k2 in range(4):
        e('s_add_u32 m0, %s, %d' % (s(sPos), 4096 * k2))
        e('buffer_load_dwordx4 %s, %s, %s offen lds' % (v(vDC), s(SA if k2 < 2 else SB, 4), s(sT0 if k2 % 2 == 0 else sT1)))
    e('s_add_u32 %s, %s, 1' % (s(sCh), s(sCh)))
    e('s_cmp_eq_u32 %s, 9' % s(sCh))
    e('s_cselect_b32 %s, 0, %s' % (s(sCh), s(sCh)))
    e('s_add_u32 %s, %s, 16384' % (s(sPos), s(sPos)))
    e('s_cmp_eq_u32 %s, 0' % s(sCnt))
    e('s_cselect_b32 %s, %s, %s' % (s(sPos), s(sLx), s(sPos)))
    e('s_add_u32 %s, %s, 1' % (s(sCnt), s(sCnt)))
    e('s_cmp_lt_u32 %s, 9' % s(sCnt))
    e('s_cbranch_scc1 L_WO')
    ST.mark()
    sCp, sKh, sSt = sx, sx + 1, sx + 2
    e('s_and_b32 %s, %s, 1' % (s(sT0), s(sJ)))
    e('s_lshr_b32 %s, %s, 1' % (s(sKh), s(sJ)))
    e('s_mov_b32 %s, %s' % (s(sCp), s(sT0)))
    vWa = [R.alloc() for _ in range(3)]; vWb = [R.alloc() for _ in range(3)]
    vOa = [R.alloc() for _ in range(3)]; vSt = R.alloc(); vXa = R.alloc()
    acc2 = [[R.alloc(4) for c2 in range(2)] for t in range(5)]
    Of = [[R.alloc(4) for t in range(5)] for b in range(2)]
    Wr = [[[R.alloc(4) for c2 in range(2)] for kb in range(2)] for i in range(9)]
    g, r4, c4 = vT[0], vT[1], vT[2]
    e('v_lshrrev_b32 %s, 4, %s' % (v(g), v(vLane)))
    e('v_bfe_u32 %s, %s, 2, 2' % (v(r4), v(vLane)))
    e('v_and_b32 %s, 3, %s' % (v(c4), v(vLane)))
    t3, t4_ = vT[3], vDC
    e('v_lshrrev_b32 %s, 1, %s' % (v(t3), v(g)))
    e('v_lshlrev_b32 %s, 4, %s' % (v(t3), v(t3)))
    e('v_and_b32 %s, 1, %s' % (v(t4_), v(g)))
    e('v_lshl_add_u32 %s, %s, 2, %s' % (v(t4_), v(t4_), v(r4)))
    e('v_add_u32 %s, %s, %s' % (v(t3), v(t3), v(t4_)))
    e('v_lshrrev_b32 %s, 1, %s' % (v(t4_), v(t4_)))
    e('s_lshl_b32 %s, %s, 1' % (s(sT0), s(sCp)))
    e('v_xor_b32 %s, %s, %s' % (v(t4_), s(sT0), v(t4_)))
    e('v_lshlrev_b32 %s, 5, %s' % (v(t4_), v(t4_)))
    e('v_lshl_add_u32 %s, %s, 7, %s' % (v(t3), v(t3), v(t4_)))
    e('v_lshl_add_u32 %s, %s, 3, %s' % (v(t3), v(c4), v(t3)))
    e('s_lshl_b32 %s, %s, 13' % (s(sT0), s(sKh)))
    e('v_add_u32 %s, %s, %s' % (v(vWa[0]), s(sT0), v(t3)))
    e('v_xor_b32 %s, 32, %s' % (v(vWb[0]), v(vWa[0])))
    for k in (1, 2):
        e('v_add_u32 %s, %d, %s' % (v(vWa[k]), 65536 * k, v(vWa[0])))
        e('v_add_u32 %s, %d, %s' % (v(vWb[k]), 65536 * k, v(vWb[0])))
    e('s_lshl_b32 %s, %s, 11' % (s(sT0), s(sKh)))
    e('v_lshlrev_b32 %s, 4, %s' % (v(t3), v(vLane)))
    e('v_add_u32 %s, %s, %s' % (v(vOa[0]), s(sT0), v(t3)))
    for k in (1, 2):
        e('v_add_u32 %s, %d, %s' % (v(vOa[k]), 61440 * k, v(vOa[0])))
    e('s_mul_i32 %s, %s, 10240' % (s(sT0), s(sCp)))
    e('s_add_u32 %s, %s, 40960' % (s(sT0), s(sT0)))
    e('v_add_u32 %s, %s, %s' % (v(vXa), s(sT0), v(t3)))
    e('s_mul_i32 %s, %s, %d' % (s(sSt), s(sMb), 80 * 1152))
    e('s_lshl_b32 %s, %s, 7' % (s(sT0), s(sNb)))
    e('s_add_u32 %s, %s, %s' % (s(sSt), s(sSt), s(sT0)))
    e('s_lshl_b32 %s, %s, 6' % (s(sT0), s(sCp)))
    e('s_add_u32 %s, %s, %s' % (s(sSt), s(sSt), s(sT0)))
    e('v_and_b32 %s, 15, %s' % (v(t3), v(vLane)))
    e('v_mul_u32_u24 %s, 1152, %s' % (v(t3), v(t3)))
    e('v_and_b32 %s, 1, %s' % (v(t4_), v(g)))
    e('v_lshl_add_u32 %s, %s, 5, %s' % (v(t3), v(t4_), v(t3)))
    e('v_lshrrev_b32 %s, 1, %s' % (v(t4_), v(g)))
    e('v_lshl_add_u32 %s, %s, 4, %s' % (v(vSt), v(t4_), v(t3)))
    mksrd(A, SC, pOut, 2048 * 1152)
    for t in range(5):
        for c2 in range(2):
            for k in range(4): e('v_mov_b32 %s, 0' % v(acc2[t][c2] + k))
    e('s_waitcnt vmcnt(0)')
    ST.mark()
    e('s_barrier')
    ST.mark()
    for i in range(9):
        pos = WO0 if i == 0 else 16384 * (i - 1)
        for kb in range(2):
            for c2 in range(2):
                for j2 in range(2):
                    off = pos + kb * 4096 + j2 * 1024
                    e('ds_read_b64_tr_b16 %s, %s offset:%d' % (v(Wr[i][kb][c2] + 2 * j2, 2), v((vWa, vWb)[c2][off >> 16]), off & 65535))
    e('s_waitcnt lgkmcnt(0)')
    ST.mark()
    e('s_barrier')
    ST.mark()
    Q = LQ(A)
    def oread(i, kb, t):
        off = 20480 * (i % 8) + t * 4096 + kb * 1024
        k = off // 61440
        Q.rd('ds_read_b128 %s, %s offset:%d' % (v(Of[kb][t], 4), v(vOa[k]), off - 61440 * k), Of[kb][t], 4)
    def omf(i, kb, fills):
        for t in range(5):
            Q.need((Of[kb][t], 4))
            for c2 in range(2):
                e('v_mfma_f32_16x16x32_bf16 %s, %s, %s, %s' % (v(acc2[t][c2], 4), v(Wr[i][kb][c2], 4), v(Of[kb][t], 4), v(acc2[t][c2], 4)))
                if fills: fills.pop(0)()
        while fills: fills.pop(0)()
    e('s_barrier')
    for t in range(5): oread(0, 0, t)
    for i in range(9):
        omf(i, 0, [lambda t=t: oread(i, 1, t) for t in range(5)])
        if i < 8:
            fl = [lambda: None, lambda: (Q.drain(), e('s_barrier'))] + [lambda t=t: oread(i + 1, 0, t) for t in range(5)]
        else: fl = []
        omf(i, 1, fl)
    ST.mark()
    def finish(own, other, lab):
        for t in other:
            for c2 in range(2):
                e('ds_write_b128 %s, %s offset:%d' % (v(vXa), v(acc2[t][c2], 4), (2 * t + c2) * 1024))
        e('s_waitcnt lgkmcnt(0)')
        e('s_barrier')
        if lab == 'b':
            e('s_cmp_eq_u32 %s, 25' % s(sMb))
            e('s_cbranch_scc1 L_DONE')
        tmp = [Of[0][0], Of[0][1], Of[0][2], Of[0][3], Of[0][4], Of[1][0]]
        Q.q = []
        for n, t in enumerate(own):
            for c2 in range(2):
                Q.rd('ds_read_b128 %s, %s offset:%d' % (v(tmp[2 * n + c2], 4), v(vXa), (2 * t + c2) * 1024), tmp[2 * n + c2], 4)
        for n, t in enumerate(own):
            o = Of[1][1 + n]
            for c2 in range(2):
                Q.need((tmp[2 * n + c2], 4))
                for k in range(4):
                    e('v_add_f32 %s, %s, %s' % (v(acc2[t][c2] + k), v(acc2[t][c2] + k), v(tmp[2 * n + c2] + k)))
                e('v_cvt_pk_bf16_f32 %s, %s, %s' % (v(o + 2 * c2), v(acc2[t][c2]), v(acc2[t][c2] + 1)))
                e('v_cvt_pk_bf16_f32 %s, %s, %s' % (v(o + 2 * c2 + 1), v(acc2[t][c2] + 2), v(acc2[t][c2] + 3)))
            e('v_permlane16_swap_b32 %s, %s' % (v(o), v(o + 2)))
            e('v_permlane16_swap_b32 %s, %s' % (v(o + 1), v(o + 3)))
            e('s_add_u32 %s, %s, %d' % (s(sT0), s(sSt), t * 16 * 1152))
            e('buffer_store_dwordx4 %s, %s, %s, %s offen' % (v(o, 4), v(vSt), s(SC, 4), s(sT0)))
    e('s_cmp_eq_u32 %s, 0' % s(sKh))
    e('s_cbranch_scc0 L_FIN1')
    finish([0, 1, 2], [3, 4], 'a')
    e('s_branch L_DONE')
    A.label('L_FIN1')
    A.barrier_hazards()
    finish([3, 4], [0, 1, 2], 'b')
    A.label('L_DONE')
    ST.finish(SD, pWs, vT[0])
    e('s_endpgm')
    A.label('L_NOP2')
    e('s_waitcnt vmcnt(12)')
    e('s_barrier')
    e('s_waitcnt vmcnt(0)')
    e('s_barrier')
    e('s_endpgm')

    A.label('C_START')
    A.hist = []
    sRg, sP, sCnt, sRing, sDelta, sC, sGs, sSt0, sSr0, sNlo, sNhi, sSpin, sCh, sOb, sLd = range(sx, sx + 15)
    sMpar, sMc0, sMc1, sFirst = 78, 80, 82, 84
    sG = [86, 88, 90, 92]
    SO, SG_, SDb, SF = SA, SB, SC, SD
    R = RegAlloc(2, 254)
    vT = [R.alloc() for _ in range(6)]
    vAX = [R.alloc(), R.alloc()]
    vAW = R.alloc(); vAR = [R.alloc() for _ in range(4)]
    vFlag = R.alloc(); vC512 = R.alloc(); vDl = R.alloc()
    vSel = R.alloc(2); vN = R.alloc(2)
    vPP0, vPC0, vPP1, vPC1, vMG0, vNeg, vBp, vStM, vStR, vZ = [R.alloc() for _ in range(10)]
    names = ['Ka', 'Kb', 'Va', 'Vb', 'R', 'Qa', 'Qb']
    acc = [{n: R.alloc(4) for n in (names[:5] if t == 0 else names)} for t in range(5)]
    acc_lo = acc[0]['Ka']; acc_hi = acc[4]['Qb'] + 4
    Wf = {n: R.alloc(4) for n in names}
    Xf = [[R.alloc(4) for t in range(5)] for b in range(2)]
    buf_lo = Wf['Ka']
    ST.start()
    e('s_and_b32 %s, %s, 1' % (s(sRg), s(sWv)))
    e('s_lshr_b32 %s, %s, 1' % (s(sP), s(sWv)))
    e('v_lshlrev_b32 %s, 3, v0' % v(vT[5]))
    e('v_mov_b32 %s, 0' % v(vZ))
    e('s_waitcnt lgkmcnt(0)')
    mksrd(A, SG_, pG, 1152)
    vG = Xf[1][0]
    e('buffer_load_dwordx2 %s, %s, %s, 0 offen' % (v(vG, 2), v(vT[5]), s(SG_, 4)))
    mksrd(A, SDb, pDbg, 256)
    e('s_or_b32 %s, s2, %s' % (s(sT0), s(sWv)))
    e('s_cmp_eq_u32 %s, 0' % s(sT0))
    e('s_cbranch_scc0 C_NONONCE')
    e('s_memrealtime %s' % s(sM, 2))
    e('s_waitcnt lgkmcnt(0)')
    e('s_or_b32 %s, %s, 1' % (s(sM), s(sM)))
    e('v_mov_b32 %s, %s' % (v(vN), s(sM)))
    e('v_mov_b32 %s, %s' % (v(vN + 1), s(sM + 1)))
    e('buffer_store_dwordx2 %s, %s, %s, 0 offen sc1' % (v(vN, 2), v(vZ), s(SDb, 4)))
    A.label('C_NONONCE')
    mksrd(A, SO, pWs, OP_BYTES)
    e('s_add_u32 %s, %s, %d' % (s(sT0), s(pWs), FLAG_OFF))
    e('s_addc_u32 %s, %s, 0' % (s(sT1), s(pWs + 1)))
    mksrd(A, SF, sT0, 32768)
    i15, g, r4, c4 = vT[0], vT[1], vT[2], vT[3]
    e('v_and_b32 %s, 15, %s' % (v(i15), v(vLane)))
    e('v_lshrrev_b32 %s, 4, %s' % (v(g), v(vLane)))
    e('v_bfe_u32 %s, %s, 2, 2' % (v(r4), v(vLane)))
    e('v_and_b32 %s, 3, %s' % (v(c4), v(vLane)))
    e('v_lshrrev_b32 %s, 1, %s' % (v(vT[4]), v(i15)))
    e('v_xor_b32 %s, %s, %s' % (v(vT[4]), v(vT[4]), v(g)))
    e('v_lshlrev_b32 %s, 4, %s' % (v(vT[4]), v(vT[4])))
    e('v_lshl_add_u32 %s, %s, 7, %s' % (v(vT[4]), v(i15), v(vT[4])))
    e('s_lshl_b32 %s, %s, 13' % (s(sT0), s(sRg)))
    e('v_add_u32 %s, %s, %s' % (v(vAX[0]), s(sT0), v(vT[4])))
    e('v_xor_b32 %s, 64, %s' % (v(vAX[1]), v(vAX[0])))
    e('v_lshlrev_b32 %s, 3, %s' % (v(vT[4]), v(g)))
    e('v_lshl_add_u32 %s, %s, 1, %s' % (v(vT[4]), v(r4), v(vT[4])))
    e('v_mul_u32_u24 %s, 432, %s' % (v(vT[4]), v(vT[4])))
    e('s_mul_i32 %s, %s, 72' % (s(sT0), s(sP)))
    e('s_add_u32 %s, %s, %d' % (s(sT0), s(sT0), WOFF))
    e('v_add_u32 %s, %s, %s' % (v(vT[4]), s(sT0), v(vT[4])))
    e('v_lshl_add_u32 %s, %s, 3, %s' % (v(vAW), v(c4), v(vT[4])))
    setmask(A, sM, lambda l: (l & 3) == 1)
    e('v_mov_b32 %s, 32' % v(vT[5]))
    e('v_mov_b32 %s, %d' % (v(vDl), 320))
    e('v_cndmask_b32 %s, %s, %s, %s' % (v(vT[5]), v(vT[5]), v(vDl), s(sM, 2)))
    setmask(A, sM, lambda l: (l & 3) == 2)
    e('v_mov_b32 %s, %d' % (v(vDl), 176))
    e('v_cndmask_b32 %s, %s, %s, %s' % (v(vT[5]), v(vT[5]), v(vDl), s(sM, 2)))
    e('v_add_u32 %s, %s, %s' % (v(vT[4]), v(vT[4]), v(vT[5])))
    e('v_lshl_add_u32 %s, %s, 3, %s' % (v(vT[5]), v(g), v(r4)))
    e('v_lshlrev_b32 %s, 3, %s' % (v(vT[5]), v(vT[5])))
    setmask(A, sM, lambda l: (l & 3) == 3)
    for ks in range(2):
        for j2 in range(2):
            a = vAR[ks * 2 + j2]
            e('v_add_u32 %s, %d, %s' % (v(a), ks * 13824 + j2 * 432, v(vT[4])))
            e('v_add_u32 %s, %d, %s' % (v(vDl), GB + (32 * ks + 4 * j2) * 8, v(vT[5])))
            e('v_cndmask_b32 %s, %s, %s, %s' % (v(a), v(a), v(vDl), s(sM, 2)))
    e('v_cndmask_b32 %s, 1, 0, %s' % (v(vFlag), s(sM, 2)))
    e('v_mov_b32 %s, 512' % v(vDl))
    e('v_cndmask_b32 %s, 0, %s, %s' % (v(vC512), v(vDl), s(sM, 2)))
    lo, hi = vT[4], vT[5]
    e('v_mov_b32 %s, 0x3f80' % v(lo)); e('v_mov_b32 %s, 1.0' % v(hi))
    def sel2(dst, f_lo, f_hi):
        e('v_mov_b32 %s, 0' % v(dst))
        if f_lo:
            setmask(A, sM, f_lo); e('v_cndmask_b32 %s, %s, %s, %s' % (v(dst), v(dst), v(lo), s(sM, 2)))
        if f_hi:
            setmask(A, sM, f_hi); e('v_cndmask_b32 %s, %s, %s, %s' % (v(dst), v(dst), v(hi), s(sM, 2)))
    sel2(vSel, lambda l: ((l >> 4) == 1 and (l & 7) == 0) or ((l >> 4) == 2 and (l & 3) >= 2), lambda l: (l >> 4) == 1 and (l & 7) == 1)
    sel2(vSel + 1, lambda l: (l >> 4) == 1 and (l & 7) == 4, lambda l: (l >> 4) == 1 and (l & 7) == 5)
    setmask(A, sMpar, lambda l: l & 1)
    setmask(A, sMc0, lambda l: 4 * (l >> 4) + (l & 1) <= (l & 15))
    setmask(A, sMc1, lambda l: 4 * (l >> 4) + 2 + (l & 1) <= (l & 15))
    e('v_mov_b32 %s, 0x0c0c0302' % v(lo)); e('v_mov_b32 %s, 0x03020c0c' % v(hi))
    e('v_cndmask_b32 %s, %s, %s, %s' % (v(lo), v(lo), v(hi), s(sMpar, 2)))
    e('v_mov_b32 %s, 0x0c0c0c0c' % v(hi))
    e('v_cndmask_b32 %s, %s, %s, %s' % (v(vPC0), v(hi), v(lo), s(sMc0, 2)))
    e('v_cndmask_b32 %s, %s, %s, %s' % (v(vPP0), v(lo), v(hi), s(sMc0, 2)))
    e('v_cndmask_b32 %s, %s, %s, %s' % (v(vPC1), v(hi), v(lo), s(sMc1, 2)))
    e('v_cndmask_b32 %s, %s, %s, %s' % (v(vPP1), v(lo), v(hi), s(sMc1, 2)))
    for k in range(4): setmask(A, sG[k], lambda l: (l >> 4) == k)
    e('v_cndmask_b32 %s, 0, -1, %s' % (v(vMG0), s(sG[0], 2)))
    e('v_mov_b32 %s, %s' % (v(vNeg), f32(-1e9 * math.sqrt(18.0))))
    e('v_lshlrev_b32 %s, 2, %s' % (v(vBp), v(i15)))
    e('v_add_u32 %s, 192, %s' % (v(vBp), v(vBp)))
    e('s_or_b32 %s, %s, %s' % (s(sT0), s(sRb), s(sRg)))
    e('s_cmp_eq_u32 %s, 0' % s(sT0))
    e('s_cselect_b64 %s, -1, 0' % s(sFirst, 2))
    e('s_mov_b32 %s, %s' % (s(sC), f32(18.0 ** -0.5 * math.log2(math.e))))
    e('s_cmp_eq_u32 %s, 0' % s(sBr))
    e('s_mov_b32 %s, %s' % (s(sGs), f32(math.log2(math.e))))
    e('s_cselect_b32 %s, %s, %s' % (s(sGs), f32(-math.log2(math.e)), s(sGs)))
    e('s_lshl_b32 %s, %s, 3' % (s(sT0), s(sRb)))
    e('s_lshl2_add_u32 %s, %s, %s' % (s(sT0), s(sRg), s(sT0)))
    e('s_mul_i32 %s, %s, 36864' % (s(sT0), s(sT0)))
    e('s_lshl_b32 %s, %s, 2' % (s(sT1), s(sHg)))
    e('s_lshl1_add_u32 %s, %s, %s' % (s(sT1), s(sBr), s(sT1)))
    e('s_add_u32 %s, %s, %s' % (s(sT1), s(sT1), s(sP)))
    e('s_add_u32 %s, %s, 4' % (s(sT1), s(sT1)))
    e('s_lshl_b32 %s, %s, 10' % (s(sT1), s(sT1)))
    e('s_add_u32 %s, %s, %s' % (s(sSt0), s(sT0), s(sT1)))
    e('s_lshl_b32 %s, %s, 8' % (s(sT1), s(sHgb)))
    e('s_lshl3_add_u32 %s, %s, %s' % (s(sT1), s(sP), s(sT1)))
    e('s_add_u32 %s, %s, %s' % (s(sSr0), s(sT0), s(sT1)))
    e('v_lshlrev_b32 %s, 4, %s' % (v(vStM), v(vLane)))
    e('v_lshrrev_b32 %s, 1, %s' % (v(lo), v(g)))
    e('v_mul_u32_u24 %s, 36864, %s' % (v(lo), v(lo)))
    e('v_lshl_add_u32 %s, %s, 4, %s' % (v(lo), v(i15), v(lo)))
    e('v_and_b32 %s, 1, %s' % (v(hi), v(g)))
    e('v_lshl_add_u32 %s, %s, 2, %s' % (v(vStR), v(hi), v(lo)))
    phase2_ids()
    for r in range(acc_lo, acc_hi):
        e('v_mov_b32 %s, 0' % v(r))
    e('s_lshl_b32 %s, %s, 4' % (s(sT0), s(sRot)))
    e('v_subrev_u32 %s, %s, v0' % (v(lo), s(sT0)))
    e('v_add_u32 %s, 144, %s' % (v(hi), v(lo)))
    e('v_cmp_gt_i32 vcc, 0, %s' % v(lo))
    e('v_cndmask_b32 %s, %s, %s, vcc' % (v(lo), v(lo), v(hi)))
    e('v_mov_b32 %s, 144' % v(hi))
    e('v_cmp_gt_u32 vcc, 144, v0')
    e('v_cndmask_b32 %s, %s, %s, vcc' % (v(lo), v(hi), v(lo)))
    e('v_lshlrev_b32 %s, 5, %s' % (v(lo), v(lo)))
    e('v_add_u32 %s, %d, %s' % (v(lo), GB, v(lo)))
    ST.mark()
    e('s_waitcnt vmcnt(0)')
    gq = Xf[1][1]
    e('s_mov_b32 %s, 0x01000100' % s(sT0)); e('s_mov_b32 %s, 0x03020302' % s(sT1))
    for k in range(2):
        e('v_perm_b32 %s, %s, %s, %s' % (v(gq + 4 * k), v(vG + k), v(vG + k), s(sT0)))
        e('v_perm_b32 %s, %s, %s, %s' % (v(gq + 4 * k + 2), v(vG + k), v(vG + k), s(sT1)))
        e('v_mov_b32 %s, %s' % (v(gq + 4 * k + 1), v(gq + 4 * k)))
        e('v_mov_b32 %s, %s' % (v(gq + 4 * k + 3), v(gq + 4 * k + 2)))
    e('ds_write_b128 %s, %s' % (v(lo), v(gq, 4)))
    e('ds_write_b128 %s, %s offset:16' % (v(lo), v(gq + 4, 4)))
    e('s_mov_b32 %s, 0' % s(sCnt)); e('s_mov_b32 %s, 0' % s(sRing))
    e('s_waitcnt lgkmcnt(0)')
    ST.mark()
    e('s_barrier')
    ST.mark()
    toff = {'Qa': 0, 'Qb': 40, 'Ka': 144, 'Kb': 184, 'Va': 288, 'Vb': 328}
    Q = LQ(A)
    def xread(ks, t):
        Q.rd('ds_read_b128 %s, %s offset:%d' % (v(Xf[ks][t], 4), v(vAX[ks]), 2048 * t), Xf[ks][t], 4)
    def wread(ks, n):
        for j2 in range(2):
            if n == 'R': Q.rd('ds_read_b64_tr_b16 %s, %s' % (v(Wf[n] + 2 * j2, 2), v(vAR[ks * 2 + j2])), Wf[n] + 2 * j2, 2)
            else: Q.rd('ds_read_b64_tr_b16 %s, %s offset:%d' % (v(Wf[n] + 2 * j2, 2), v(vAW), ks * 13824 + j2 * 432 + toff[n]), Wf[n] + 2 * j2, 2)
    def group(ks, n, fills=None):
        for t in range(5):
            if n not in acc[t]: continue
            Q.need((Wf[n], 4), (Xf[ks][t], 4))
            d = acc[t][n]
            a, b = (Xf[ks][t], Wf[n]) if n[0] == 'V' else (Wf[n], Xf[ks][t])
            e('v_mfma_f32_16x16x32_bf16 %s, %s, %s, %s' % (v(d, 4), v(a, 4), v(b, 4), v(d, 4)))
            if fills: fills.pop(0)()
        while fills: fills.pop(0)()
    for t in range(5): xread(0, t)
    for n in names: wread(0, n)
    entry_q = [set(x) for x in Q.q]
    A.barrier_hazards()
    A.label('C_LOOP')
    for k, n in enumerate(names):
        group(0, n, [lambda t=t: xread(1, t) for t in range(5)] if k == 0 else None)
        wread(1, n)
    e('s_cmp_eq_u32 %s, %d' % (s(sRing), 2 * S))
    e('s_mov_b32 %s, %d' % (s(sDelta), S))
    e('s_cselect_b32 %s, %d, %s' % (s(sDelta), -2 * S, s(sDelta)))
    e('s_add_u32 %s, %s, %s' % (s(sRing), s(sRing), s(sDelta)))
    e('v_mad_i32_i24 %s, %s, %s, %s' % (v(vDl), v(vFlag), s(sDelta), v(vC512)))
    upd = [lambda a=a: e('v_add_u32 %s, %s, %s' % (v(a), s(sDelta), v(a))) for a in vAX + [vAW]]
    upd += [lambda a=a: e('v_add_u32 %s, %s, %s' % (v(a), v(vDl), v(a))) for a in vAR]
    for k, n in enumerate(names):
        group(1, n, upd if k == 0 else None)
        if k == 0:
            e('buffer_load_dwordx2 %s, %s, %s, 0 offen sc1' % (v(vN, 2), v(vZ), s(SDb, 4)))
            Q.drain()
            e('s_barrier')
            for t in range(5): xread(0, t)
        wread(0, n)
    assert [set(x) for x in Q.q] == entry_q[len(entry_q) - len(Q.q):], 'queue mismatch'
    e('s_add_u32 %s, %s, 1' % (s(sCnt), s(sCnt)))
    e('s_cmp_lt_u32 %s, 9' % s(sCnt))
    e('s_cbranch_scc1 C_LOOP')
    ST.mark()
    Q.drain()
    E = RegAlloc(buf_lo, 254)
    KB = [E.alloc(6) for _ in range(5)]
    VA = E.alloc(10); VB = E.alloc(10); VR = E.alloc(10)
    tg = [E.alloc() for _ in range(4)]
    Tq = [E.alloc(2) for _ in range(5)]
    def pk(dst, src):
        e('v_cvt_pk_bf16_f32 %s, %s, %s' % (v(dst), v(src), v(src + 1)))
        e('v_cvt_pk_bf16_f32 %s, %s, %s' % (v(dst + 1), v(src + 2), v(src + 3)))
    for t in range(4):
        e('ds_bpermute_b32 %s, %s, %s' % (v(tg[t]), v(vBp), v(acc[t + 1]['R'])))
    e('s_mov_b32 %s, 0x3f803f80' % s(sT0))
    for t in range(5):
        pk(Tq[t], acc[t]['R'])
        e('v_mov_b32 %s, %s' % (v(KB[t] + 2), s(sT0))); e('v_mov_b32 %s, %s' % (v(KB[t] + 3), s(sT0)))
    e('s_waitcnt lgkmcnt(0)')
    for t in range(5):
        e('v_permlane32_swap_b32 %s, %s' % (v(Tq[t]), v(KB[t] + 2)))
        e('v_permlane32_swap_b32 %s, %s' % (v(Tq[t] + 1), v(KB[t] + 3)))
    for t in range(5):
        e('v_mfma_f32_16x16x16_bf16 %s, %s, %s, 0' % (v(acc[t]['R'], 4), v(Tq[t], 2), v(vSel, 2)))
        pk(KB[t], acc[t]['Ka']); pk(KB[t] + 4, acc[t]['Kb'])
    QB = [None] + [acc[t]['Ka'] for t in range(1, 5)]
    for t in range(1, 5):
        assert acc[t]['Kb'] == acc[t]['Ka'] + 4
        pk(QB[t], acc[t]['Qa']); pk(QB[t] + 6, acc[t]['Qb'])
        e('v_and_b32 %s, %s, %s' % (v(QB[t] + 2), v(vMG0), v(Tq[t])))
        e('v_mov_b32 %s, 0' % v(QB[t] + 3)); e('v_mov_b32 %s, 0' % v(QB[t] + 4))
        e('v_and_b32 %s, %s, %s' % (v(QB[t] + 5), v(vMG0), v(Tq[t] + 1)))
    def mf32(d, a, b):
        e('v_mfma_f32_16x16x32_bf16 %s, %s, %s, 0' % (v(d, 4), v(a, 4), v(b, 4)))
    def vconv(t):
        pk(VA + 2 * t, acc[t]['Va']); pk(VB + 2 * t, acc[t]['Vb']); pk(VR + 2 * t, acc[t]['R'])
    def attn(ts, Sreg, pre):
        units = [(t, h) for t in ts for h in range(2)]
        Sp = Sreg[0:4]; Sc = Sreg[4:8]
        for u, (t, h) in enumerate(units):
            mf32(Sp[u], KB[t - 1] + 2 * h, QB[t] + 4 * h); mf32(Sc[u], KB[t] + 2 * h, QB[t] + 4 * h)
        pre()
        for u, (t, h) in enumerate(units):
            for k, mc in ((0, sMc0), (1, sMc1)):
                e('v_cndmask_b32 %s, %s, %s, %s' % (v(Sp[u] + 2 * k), v(Sp[u] + 2 * k), v(Sp[u] + 2 * k + 1), s(sMpar, 2)))
                e('v_cndmask_b32 %s, %s, %s, %s' % (v(Sc[u] + 2 * k), v(Sc[u] + 2 * k), v(Sc[u] + 2 * k + 1), s(sMpar, 2)))
                if t == 1:
                    e('v_cndmask_b32 %s, %s, %s, %s' % (v(Sp[u] + 2 * k), v(Sp[u] + 2 * k), v(vNeg), s(sFirst, 2)))
                e('v_cndmask_b32 %s, %s, %s, %s' % (v(Sp[u] + 2 * k), v(Sp[u] + 2 * k), v(Sc[u] + 2 * k), s(mc, 2)))
            e('v_max_f32 %s, %s, %s' % (v(Sp[u] + 1), v(Sp[u]), v(Sp[u] + 2)))
        m = [Sp[u] + 1 for u in range(4)]
        e('v_permlane32_swap_b32 %s, %s' % (v(m[0]), v(m[1])))
        e('v_permlane32_swap_b32 %s, %s' % (v(m[2]), v(m[3])))
        e('v_max_f32 %s, %s, %s' % (v(m[0]), v(m[0]), v(m[1])))
        e('v_max_f32 %s, %s, %s' % (v(m[2]), v(m[2]), v(m[3])))
        e('v_permlane16_swap_b32 %s, %s' % (v(m[0]), v(m[2])))
        e('v_max_f32 %s, %s, %s' % (v(m[0]), v(m[0]), v(m[2])))
        e('v_mul_f32 %s, %s, %s' % (v(m[0]), s(sC), v(m[0])))
        e('v_mov_b32 %s, %s' % (v(m[2]), v(m[0])))
        e('v_permlane16_swap_b32 %s, %s' % (v(m[0]), v(m[2])))
        e('v_mov_b32 %s, %s' % (v(m[1]), v(m[0])))
        e('v_mov_b32 %s, %s' % (v(m[3]), v(m[2])))
        e('v_permlane32_swap_b32 %s, %s' % (v(m[0]), v(m[1])))
        e('v_permlane32_swap_b32 %s, %s' % (v(m[2]), v(m[3])))
        for u in range(4):
            for k in range(2):
                e('v_fma_f32 %s, %s, %s, -%s' % (v(Sp[u] + 2 * k), v(Sp[u] + 2 * k), s(sC), v(m[u])))
        for u in range(4):
            for k in range(2):
                e('v_exp_f32 %s, %s' % (v(Sp[u] + 2 * k), v(Sp[u] + 2 * k)))
        P = Sc
        for u in range(4):
            for k, (pp, pc) in enumerate(((vPP0, vPC0), (vPP1, vPC1))):
                e('v_perm_b32 %s, %s, %s, %s' % (v(P[u] + k), v(Sp[u] + 2 * k), v(Sp[u] + 2 * k), v(pp)))
                e('v_perm_b32 %s, %s, %s, %s' % (v(P[u] + 2 + k), v(Sp[u] + 2 * k), v(Sp[u] + 2 * k), v(pc)))
        OR = Sp; O = [QB[t] + 4 * h for (t, h) in units]
        for u, (t, h) in enumerate(units):
            mf32(OR[u], VR + 2 * (t - 1), P[u])
        for u, (t, h) in enumerate(units):
            mf32(O[u], (VA, VB)[h] + 2 * (t - 1), P[u])
        for u, (t, h) in enumerate(units):
            e('v_mul_f32 %s, %s, %s' % (v(OR[u] + 2), v(OR[u] + 2), v(tg[t - 1])))
        for u in range(4):
            e('v_rcp_f32 %s, %s' % (v(OR[u] + 2), v(OR[u] + 2)))
        outR = P[0]
        for u, (t, h) in enumerate(units):
            for k in range(4):
                e('v_mul_f32 %s, %s, %s' % (v(O[u] + k), v(OR[u] + 2), v(O[u] + k)))
            o = P[2 + (u >> 1)]
            pk(o + 2 * h, O[u])
            if h == 1:
                e('s_add_u32 %s, %s, %d' % (s(sT0), s(sSt0), 36864 * (t - 1)))
                e('buffer_store_dwordx4 %s, %s, %s, %s offen sc1' % (v(o, 4), v(vStM), s(SO, 4), s(sT0)))
        for u in range(4):
            e('s_mov_b64 exec, %s' % s(sG[u], 2))
            e('v_mul_f32 %s, %s, %s' % (v(OR[u]), v(OR[u] + 2), v(OR[u])))
            e('v_mul_f32 %s, %s, %s' % (v(OR[u] + 1), v(OR[u] + 2), v(OR[u] + 1)))
            e('v_cvt_pk_bf16_f32 %s, %s, %s' % (v(outR), v(OR[u]), v(OR[u] + 1)))
        e('s_mov_b64 exec, -1')
        e('s_add_u32 %s, %s, %d' % (s(sT0), s(sSr0), 36864 * (ts[0] - 1)))
        e('buffer_store_dword %s, %s, %s, %s offen sc1' % (v(outR), v(vStR), s(SO, 4), s(sT0)))
    S1 = [acc[t][n] for t in range(1, 5) for n in ('Qa', 'Qb')]
    def pre1():
        for t in range(5): vconv(t)
        for t in range(4):
            e('v_mul_f32 %s, %s, %s' % (v(tg[t]), s(sGs), v(tg[t])))
            e('v_exp_f32 %s, %s' % (v(tg[t]), v(tg[t])))
        for t in range(4):
            e('v_add_f32 %s, 1.0, %s' % (v(tg[t]), v(tg[t])))
    attn([1, 2], S1, pre1)
    S2 = [acc[t][n] for t in range(0, 3) for n in ('Va', 'Vb', 'R')][:8]
    attn([3, 4], S2, lambda: None)
    ST.mark()
    e('s_lshl4_add_u32 %s, %s, %s' % (s(sT0), s(sRb), s(sHgb)))
    e('s_lshl_b32 %s, %s, 7' % (s(sT0), s(sT0)))
    e('s_lshl3_add_u32 %s, %s, %s' % (s(sT0), s(sWv), s(sT0)))
    e('s_mov_b32 %s, 0' % s(sSpin))
    A.label('C_NSPIN')
    e('s_waitcnt vmcnt(0)')
    e('v_readfirstlane_b32 %s, %s' % (s(sNlo), v(vN)))
    e('v_readfirstlane_b32 %s, %s' % (s(sNhi), v(vN + 1)))
    e('s_cmp_lg_u32 %s, 0' % s(sNlo))
    e('s_cbranch_scc1 C_NOK')
    e('buffer_load_dwordx2 %s, %s, %s, 0 offen sc1' % (v(vN, 2), v(vZ), s(SDb, 4)))
    e('s_add_u32 %s, %s, 1' % (s(sSpin), s(sSpin)))
    e('s_cmp_lt_u32 %s, 100000' % s(sSpin))
    e('s_cbranch_scc1 C_NSPIN')
    e('s_waitcnt vmcnt(0)')
    A.label('C_NOK')
    e('s_mov_b64 exec, 1')
    e('buffer_store_dwordx2 %s, %s, %s, %s offen sc1' % (v(vN, 2), v(vZ), s(SF, 4), s(sT0)))
    e('s_mov_b64 exec, -1')
    ST.mark()
    e('s_cmp_ge_u32 %s, 234' % s(sL2))
    e('s_cbranch_scc1 C_DONE')
    e('s_barrier')
    e('s_cmp_eq_u32 %s, 0' % s(sWv))
    e('s_cbranch_scc0 C_NOPOLL')
    pv = acc[0]['Ka']; pa = acc[0]['Kb']
    e('s_mul_i32 %s, %s, 80' % (s(sT0), s(sMb)))
    e('s_add_u32 %s, %s, 79' % (s(sT1), s(sT0)))
    e('s_lshr_b32 %s, %s, 7' % (s(sT0), s(sT0)))
    e('s_lshr_b32 %s, %s, 7' % (s(sT1), s(sT1)))
    e('s_min_u32 %s, %s, 15' % (s(sT1), s(sT1)))
    e('s_sub_u32 %s, %s, %s' % (s(sT1), s(sT1), s(sT0)))
    e('s_lshl_b32 %s, %s, 11' % (s(sT0), s(sT0)))
    e('s_lshl_b32 %s, %s, 11' % (s(sT1), s(sT1)))
    e('v_and_b32 %s, 15, %s' % (v(pa), v(vLane)))
    e('v_lshlrev_b32 %s, 7, %s' % (v(pa), v(pa)))
    e('v_bfe_u32 %s, %s, 4, 1' % (v(pa + 1), v(vLane)))
    e('v_mad_u32_u24 %s, %s, %s, %s' % (v(pa), v(pa + 1), s(sT1), v(pa)))
    e('v_lshrrev_b32 %s, 5, %s' % (v(pa + 1), v(vLane)))
    e('v_lshl_add_u32 %s, %s, 4, %s' % (v(pa), v(pa + 1), v(pa)))
    e('s_mov_b32 %s, 0' % s(sSpin))
    A.label('C_POLL')
    e('buffer_load_dwordx4 %s, %s, %s, %s offen sc1' % (v(pv, 4), v(pa), s(SF, 4), s(sT0)))
    e('s_waitcnt vmcnt(0)')
    e('v_xor_b32 %s, %s, %s' % (v(pv), s(sNlo), v(pv)))
    e('v_xor_b32 %s, %s, %s' % (v(pv + 1), s(sNhi), v(pv + 1)))
    e('v_xor_b32 %s, %s, %s' % (v(pv + 2), s(sNlo), v(pv + 2)))
    e('v_xor_b32 %s, %s, %s' % (v(pv + 3), s(sNhi), v(pv + 3)))
    e('v_or3_b32 %s, %s, %s, %s' % (v(pv), v(pv), v(pv + 1), v(pv + 2)))
    e('v_or_b32 %s, %s, %s' % (v(pv), v(pv), v(pv + 3)))
    e('v_cmp_ne_u32 vcc, 0, %s' % v(pv))
    e('s_add_u32 %s, %s, 1' % (s(sSpin), s(sSpin)))
    e('s_cbranch_vccz C_NOPOLL')
    e('s_cmp_lt_u32 %s, 100000' % s(sSpin))
    e('s_cbranch_scc1 C_POLL')
    A.label('C_NOPOLL')
    e('s_mul_i32 %s, %s, %d' % (s(sOb), s(sMb), 5 * 36864))
    e('s_lshl_b32 %s, %s, 10' % (s(sLd), s(sWv)))
    e('s_add_u32 %s, %s, %s' % (s(sOb), s(sOb), s(sLd)))
    e('s_mov_b32 %s, %s' % (s(sCh), s(sRot2)))
    e('s_mov_b32 %s, 0' % s(sCnt))
    ST.mark()
    e('s_barrier')
    ST.mark()
    A.label('C_OL')
    e('s_cmp_lt_u32 %s, 3' % s(sCnt))
    e('s_cbranch_scc1 C_OI')
    e('s_waitcnt vmcnt(10)')
    e('s_barrier')
    A.label('C_OI')
    e('s_lshl_b32 %s, %s, 12' % (s(sT0), s(sCh)))
    e('s_add_u32 %s, %s, %s' % (s(sT0), s(sT0), s(sOb)))
    for t in range(5):
        e('s_add_u32 %s, %s, %d' % (s(sT1), s(sT0), 36864 * t))
        e('s_add_u32 m0, %s, %d' % (s(sLd), 4096 * t))
        e('buffer_load_dwordx4 %s, %s, %s offen sc1 lds' % (v(vStM), s(SO, 4), s(sT1)))
    e('s_add_u32 %s, %s, 1' % (s(sCh), s(sCh)))
    e('s_cmp_eq_u32 %s, 9' % s(sCh))
    e('s_cselect_b32 %s, 0, %s' % (s(sCh), s(sCh)))
    e('s_add_u32 %s, %s, 20480' % (s(sLd), s(sLd)))
    e('s_cmp_eq_u32 %s, 7' % s(sCnt))
    e('s_cselect_b32 %s, %d, 0' % (s(sT0), 8 * 20480))
    e('s_sub_u32 %s, %s, %s' % (s(sLd), s(sLd), s(sT0)))
    e('s_add_u32 %s, %s, 1' % (s(sCnt), s(sCnt)))
    e('s_cmp_lt_u32 %s, 9' % s(sCnt))
    e('s_cbranch_scc1 C_OL')
    for n in (10, 5, 0):
        e('s_waitcnt vmcnt(%d)' % n)
        e('s_barrier')
    A.label('C_DONE')
    ST.finish(SD, pWs, vT[0])
    A.label('K_END')
    e('s_endpgm')

def desc(label, vg=256):
    return '''.amdhsa_kernel %s
  .amdhsa_next_free_vgpr %d
  .amdhsa_next_free_sgpr 102
  .amdhsa_accum_offset %d
  .amdhsa_group_segment_fixed_size 0
  .amdhsa_kernarg_size 80
  .amdhsa_user_sgpr_count 2
  .amdhsa_user_sgpr_kernarg_segment_ptr 1
  .amdhsa_system_sgpr_workgroup_id_x 1
.end_amdhsa_kernel
''' % (label, vg, vg)

def main(path):
    A = Asm(); lab = NAME + '_kernel'
    kernel(A, lab)
    hdr = '; @launch grid=(256,1,1) block=(512,1,1) lds=%d\n' % LDS
    hdr += '.amdgcn_target "amdgcn-amd-amdhsa--gfx950"\n.text\n'
    txt = hdr + A.text() + '.section .rodata,"a"\n.p2align 6\n' + desc(lab)
    open(path, 'w').write(txt)
    print('instrs', A.nins)

if __name__ == '__main__':
    for a in sys.argv[2:]:
        if '=' in a:
            k, val = a.split('='); OPT[k] = int(val)
        else: OPT[a] = True
    main(sys.argv[1] if len(sys.argv) > 1 else 'g2.s')
```

```python
import sys, math, struct
sys.path.insert(0, 'gen')
from asmlib import *

NAME = 'gated_mix__sliding_local_dilated__sliding_local_dilated__prompt'
OOB = 0x40000000
def f32(x): return '0x%08x' % struct.unpack('<I', struct.pack('<f', x))[0]
def lanemask(fn):
    m = 0
    for l in range(64):
        if fn(l): m |= 1 << l
    return m
def setmask(A, sr, fn):
    m = lanemask(fn)
    lo, hi = m & 0xffffffff, m >> 32
    A.e('s_mov_b32 %s, 0x%08x' % (s(sr), lo))
    A.e('s_mov_b32 %s, 0x%08x' % (s(sr + 1), hi))
def mksrd(A, sr, src, nbytes):
    A.e('s_mov_b32 %s, %s' % (s(sr), s(src)))
    A.e('s_and_b32 %s, %s, 0xffff' % (s(sr + 1), s(src + 1)))
    A.e('s_mov_b32 %s, %d' % (s(sr + 2), nbytes))
    A.e('s_mov_b32 %s, 0x00020000' % s(sr + 3))

OP_BYTES = 128 * 36864
S = 46080; WOFF = 18432
WO0 = 138240
GB = WO0 + 16384
LDS = 163840
FLAG_OFF = 8 << 20
STAMP_OFF = 16 << 20

OPT = {'stamp': False}

class Stamper:
    def __init__(self, A, vreg, sreg, slane):
        self.A = A; self.v = vreg; self.s = sreg; self.sl = slane
    def start(self):
        if not OPT['stamp']: return
        e = self.A.e
        e('v_mov_b32 %s, 0' % v(self.v))
        e('s_memrealtime %s' % s(self.s, 2)); e('s_waitcnt lgkmcnt(0)')
        e('v_writelane_b32 %s, %s, 63' % (v(self.v), s(self.s)))
        e('s_mov_b32 %s, 0' % s(self.sl))
        self.mark()
    def mark(self):
        if not OPT['stamp']: return
        e = self.A.e
        e('s_memtime %s' % s(self.s, 2)); e('s_waitcnt lgkmcnt(0)')
        e('s_mov_b32 m0, %s' % s(self.sl))
        e('v_writelane_b32 %s, %s, m0' % (v(self.v), s(self.s)))
        e('s_add_u32 %s, %s, 1' % (s(self.sl), s(self.sl)))
    def finish(self, srdreg, wsreg, vtmp):
        if not OPT['stamp']: return
        e = self.A.e
        e('s_waitcnt vmcnt(0)')
        self.mark()
        e('s_memrealtime %s' % s(self.s, 2)); e('s_waitcnt lgkmcnt(0)')
        e('v_writelane_b32 %s, %s, 62' % (v(self.v), s(self.s)))
        mksrd(self.A, srdreg, wsreg, 64 << 20)
        e('s_lshl_b32 %s, s2, 11' % s(self.s))
        e('s_add_u32 %s, %s, %d' % (s(self.s), s(self.s), STAMP_OFF))
        e('v_lshlrev_b32 %s, 2, v0' % v(vtmp))
        e('buffer_store_dword %s, %s, %s, %s offen' % (v(self.v), v(vtmp), s(srdreg, 4), s(self.s)))

class DbgStamper:
    def __init__(self, A, vreg, sreg, slane):
        self.A = A; self.v = vreg; self.s = sreg; self.k = 0; self.base = 2
    def srd(self):
        mksrd(self.A, 100 - 8, 24, 256)
    def put(self, idx, inv=False):
        e = self.A.e
        e('s_and_b32 %s, s34, 3' % s(self.s))
        e('s_cbranch_scc1 DBG_%d' % idx)
        e('s_bfe_u32 %s, s2, 0x30003' % s(self.s))
        e('s_cmp_eq_u32 %s, 5' % s(self.s))
        e('s_cbranch_scc0 DBG_%d' % idx)
        e('s_memrealtime %s' % s(self.s, 2)); e('s_waitcnt lgkmcnt(0)')
        if inv: e('s_not_b32 %s, %s' % (s(self.s), s(self.s)))
        e('v_mov_b32 %s, %s' % (v(self.v), s(self.s)))
        e('v_mov_b32 %s, 0' % v(self.v - 1))
        mksrd(self.A, 4, 24, 256)
        e('s_mov_b64 exec, 1')
        e('buffer_atomic_umax %s, %s, %s, 0 offen offset:%d sc1' % (v(self.v), v(self.v - 1), s(4, 4), 4 * idx))
        e('s_mov_b64 exec, -1')
        self.A.label('DBG_%d' % idx)
    def start(self):
        self.k = 0
        self.base = 2 if self.base == 9 else 9
        self.put(self.base, True)
        self.sel = {9: (1, 3, 6, 7), 2: (2, 3, 4, 5, 7)}[self.base]
        self.n = 0
    def mark(self):
        if self.k in self.sel:
            self.n += 1
            self.put(self.base + self.n)
        self.k += 1
    def finish(self, srdreg, wsreg, vtmp):
        self.A.e('s_waitcnt vmcnt(0)')
        self.put(self.base + len(self.sel) + 1)

class LQ:
    def __init__(self, A): self.A = A; self.q = []
    def rd(self, text, dst, n):
        self.A.e(text); self.q.append(set(range(dst, dst + n)))
    def need(self, *rs):
        regs = set()
        for r, n in rs: regs |= set(range(r, r + n))
        last = -1
        for i, d in enumerate(self.q):
            if d & regs: last = i
        if last < 0: return
        cnt = len(self.q) - 1 - last
        cnt = min(cnt, 15)
        self.A.e('s_waitcnt lgkmcnt(%d)' % cnt)
        self.q = self.q[len(self.q) - cnt:] if cnt else []
    def drain(self):
        self.A.e('s_waitcnt lgkmcnt(0)'); self.q = []

def kernel(A, label):
    e = A.e
    pX, pWA, pWoA, pWB, pWoB, pG, pOut, pDbg, pWs = 8, 10, 12, 16, 18, 20, 22, 24, 26
    sXcd, sIdx, sRb, sHgb, sHg, sBr, sWv, sRot, sT0, sT1, sT2, sT3 = range(28, 40)
    sL2, sMb, sNb, sRot2 = range(40, 44)
    SA, SB, SC, SD = 44, 48, 52, 56
    sM = 60
    sx = 62
    ST = Stamper(A, 255, 96, 98) if not OPT.get('dbg') else DbgStamper(A, 255, 96, 98)
    A.raw('.globl %s' % label); A.raw('.p2align 8'); A.raw('.type %s,@function' % label); A.raw(label + ':')
    e('s_cmp_ge_u32 s2, 256')
    e('s_cbranch_scc1 K_END')
    e('s_load_dwordx16 s[8:23], s[0:1], 0')
    e('s_load_dwordx4 s[24:27], s[0:1], 64')
    e('v_lshrrev_b32 v2, 6, v0')
    e('v_and_b32 v1, 63, v0')
    e('v_readfirstlane_b32 %s, v2' % s(sWv))
    vLane = 1
    e('s_and_b32 %s, s2, 7' % s(sXcd))
    e('s_lshr_b32 %s, s2, 3' % s(sIdx))
    e('s_and_b32 %s, %s, 7' % (s(sT0), s(sIdx)))
    e('s_lshr_b32 %s, %s, 3' % (s(sT1), s(sIdx)))
    e('s_and_b32 %s, %s, 1' % (s(sT2), s(sXcd)))
    e('s_lshr_b32 %s, %s, 1' % (s(sT3), s(sXcd)))
    e('s_lshl3_add_u32 %s, %s, %s' % (s(sRb), s(sT2), s(sT0)))
    e('s_lshl2_add_u32 %s, %s, %s' % (s(sHgb), s(sT3), s(sT1)))
    e('s_add_u32 %s, %s, %s' % (s(sT1), s(sT1), s(sT3)))
    e('s_lshl1_add_u32 %s, %s, %s' % (s(sRot), s(sT1), s(sT0)))
    e('s_lshl2_add_u32 %s, %s, %s' % (s(sRot), s(sT2), s(sRot)))
    e('s_mul_i32 %s, %s, 57' % (s(sT0), s(sRot)))
    e('s_lshr_b32 %s, %s, 9' % (s(sT0), s(sT0)))
    e('s_mul_i32 %s, %s, 9' % (s(sT0), s(sT0)))
    e('s_sub_u32 %s, %s, %s' % (s(sRot), s(sRot), s(sT0)))
    e('s_and_b32 %s, %s, 7' % (s(sHg), s(sHgb)))
    e('s_lshr_b32 %s, %s, 3' % (s(sBr), s(sHgb)))
    e('s_cmp_lt_u32 %s, 4' % s(sWv))
    e('s_cbranch_scc1 C_START')

    def phase2_ids():
        e('s_mul_i32 %s, %s, 30' % (s(sL2), s(sXcd)))
        e('s_sub_u32 %s, 31, %s' % (s(sT0), s(sIdx)))
        e('s_add_u32 %s, %s, %s' % (s(sL2), s(sL2), s(sT0)))
        e('s_cmp_ge_u32 %s, 30' % s(sT0))
        e('s_cselect_b32 %s, 255, %s' % (s(sL2), s(sL2)))
        e('s_mul_i32 %s, %s, 7282' % (s(sMb), s(sL2)))
        e('s_lshr_b32 %s, %s, 16' % (s(sMb), s(sMb)))
        e('s_mul_i32 %s, %s, 9' % (s(sT0), s(sMb)))
        e('s_sub_u32 %s, %s, %s' % (s(sNb), s(sL2), s(sT0)))
        e('s_lshl1_add_u32 %s, %s, %s' % (s(sRot2), s(sMb), s(sNb)))
        e('s_mul_i32 %s, %s, 57' % (s(sT0), s(sRot2)))
        e('s_lshr_b32 %s, %s, 9' % (s(sT0), s(sT0)))
        e('s_mul_i32 %s, %s, 9' % (s(sT0), s(sT0)))
        e('s_sub_u32 %s, %s, %s' % (s(sRot2), s(sRot2), s(sT0)))

    sJ, sKc, sXr0, sXrow, sWrow, sRing, sCnt, sLx, sLw, sSo, sEx, sCh, sPos, sStep, sWm, sWr = range(sx, sx + 16)
    sEx = sx + 16
    R = RegAlloc(2, 254)
    vT = [R.alloc() for _ in range(4)]
    vDX, vDXh, vDW, vDM, vDR, vDC = [R.alloc() for _ in range(6)]
    ST.start()
    e('s_sub_u32 %s, %s, 4' % (s(sJ), s(sWv)))
    e('s_and_b32 %s, %s, 1' % (s(sT0), s(sJ)))
    e('s_lshl_b32 %s, %s, 2' % (s(sT0), s(sT0)))
    e('v_lshrrev_b32 %s, 4, %s' % (v(vT[0]), v(vLane)))
    e('v_add_u32 %s, %s, %s' % (v(vT[0]), s(sT0), v(vT[0])))
    e('v_and_b32 %s, 7, %s' % (v(vT[1]), v(vLane)))
    e('v_xor_b32 %s, %s, %s' % (v(vT[0]), v(vT[0]), v(vT[1])))
    e('v_lshlrev_b32 %s, 4, %s' % (v(vT[0]), v(vT[0])))
    e('v_lshrrev_b32 %s, 3, %s' % (v(vT[1]), v(vLane)))
    e('s_movk_i32 %s, 1152' % s(sT1))
    e('v_mad_u32_u24 %s, %s, %s, %s' % (v(vDX), v(vT[1]), s(sT1), v(vT[0])))
    e('s_lshl_b32 %s, %s, 7' % (s(sT0), s(sRb)))
    e('s_lshl3_add_u32 %s, %s, %s' % (s(sT0), s(sJ), s(sT0)))
    e('s_sub_u32 %s, %s, 16' % (s(sT0), s(sT0)))
    e('s_mul_i32 %s, %s, 1152' % (s(sXrow), s(sT0)))
    e('s_max_i32 %s, %s, 0' % (s(sXr0), s(sXrow)))
    e('s_cmp_lt_i32 %s, 0' % s(sT0))
    e('s_cselect_b64 %s, -1, 0' % s(sM, 2))
    e('v_cndmask_b32 %s, %s, %s, %s' % (v(vDXh), v(vDX), v(vT[0]), s(sM, 2)))
    e('v_subrev_u32 %s, 27, %s' % (v(vT[0]), v(vLane)))
    e('v_cmp_lt_u32 vcc, 26, %s' % v(vLane))
    e('v_cndmask_b32 %s, %s, %s, vcc' % (v(vT[0]), v(vLane), v(vT[0])))
    e('v_mov_b32 %s, %d' % (v(vT[2]), 4 * 3456))
    e('v_cndmask_b32 %s, 0, %s, vcc' % (v(vT[2]), v(vT[2])))
    e('v_mul_u32_u24 %s, 57, %s' % (v(vT[1]), v(vT[0])))
    e('v_lshrrev_b32 %s, 9, %s' % (v(vT[1]), v(vT[1])))
    e('v_mul_u32_u24 %s, 1008, %s' % (v(vT[1]), v(vT[1])))
    e('v_lshl_add_u32 %s, %s, 4, %s' % (v(vT[1]), v(vT[0]), v(vT[1])))
    e('s_mul_i32 %s, %s, 144' % (s(sT0), s(sHg)))
    e('v_add3_u32 %s, %s, %s, %s' % (v(vDW), v(vT[1]), v(vT[2]), s(sT0)))
    e('s_mul_i32 %s, %s, 3456' % (s(sWrow), s(sJ)))
    e('s_lshl_b32 %s, %s, 10' % (s(sLx), s(sJ)))
    e('s_mul_i32 %s, %s, 864' % (s(sLw), s(sJ)))
    e('s_add_u32 %s, %s, %d' % (s(sLw), s(sLw), WOFF))
    setmask(A, sEx, lambda l: l < 54)
    e('s_mov_b32 %s, %s' % (s(sKc), s(sRot)))
    e('s_mov_b32 %s, 0' % s(sRing))
    e('s_mov_b32 %s, 0' % s(sCnt))
    e('s_waitcnt lgkmcnt(0)')
    mksrd(A, SA, pX, 2048 * 1152)
    e('s_cmp_eq_u32 %s, 0' % s(sBr))
    e('s_cselect_b32 %s, %s, %s' % (s(sT0), s(pWA), s(pWB)))
    e('s_cselect_b32 %s, %s, %s' % (s(sT1), s(pWA + 1), s(pWB + 1)))
    mksrd(A, SB, sT0, 576 * 3456)
    ST.mark()
    A.label('L_LOOP')
    e('s_cmp_lt_u32 %s, 2' % s(sCnt))
    e('s_cbranch_scc1 L_ISSUE')
    e('s_waitcnt vmcnt(12)')
    e('s_barrier')
    A.label('L_ISSUE')
    e('s_lshl_b32 %s, %s, 7' % (s(sT0), s(sKc)))
    e('s_add_u32 %s, %s, %s' % (s(sT1), s(sRing), s(sLx)))
    for q in range(5):
        if q == 4:
            e('s_cmp_ge_u32 %s, 2' % s(sJ))
            e('s_cbranch_scc1 L_NOX4')
        if q == 0:
            e('s_add_u32 %s, %s, %s' % (s(sSo), s(sXr0), s(sT0)))
            e('s_mov_b32 m0, %s' % s(sT1))
            e('buffer_load_dwordx4 %s, %s, %s offen lds' % (v(vDXh), s(SA, 4), s(sSo)))
            e('s_add_u32 %s, %s, %s' % (s(sT0), s(sXrow), s(sT0)))
        else:
            e('s_add_u32 %s, %s, %d' % (s(sSo), s(sT0), 32 * 1152 * q))
            e('s_add_u32 m0, %s, %d' % (s(sT1), 4096 * q))
            e('buffer_load_dwordx4 %s, %s, %s offen lds' % (v(vDX), s(SA, 4), s(sSo)))
    A.label('L_NOX4')
    e('s_mul_i32 %s, %s, %d' % (s(sT0), s(sKc), 64 * 3456))
    e('s_add_u32 %s, %s, %s' % (s(sT0), s(sT0), s(sWrow)))
    e('s_add_u32 %s, %s, %s' % (s(sT1), s(sRing), s(sLw)))
    e('s_mov_b64 exec, %s' % s(sEx, 2))
    for q in range(8):
        e('s_add_u32 %s, %s, %d' % (s(sSo), s(sT0), 8 * 3456 * q))
        e('s_add_u32 m0, %s, %d' % (s(sT1), 3456 * q))
        e('buffer_load_dwordx4 %s, %s, %s offen lds' % (v(vDW), s(SB, 4), s(sSo)))
    e('s_mov_b64 exec, -1')
    e('s_add_u32 %s, %s, 1' % (s(sKc), s(sKc)))
    e('s_cmp_eq_u32 %s, 9' % s(sKc))
    e('s_cselect_b32 %s, 0, %s' % (s(sKc), s(sKc)))
    e('s_add_u32 %s, %s, %d' % (s(sRing), s(sRing), S))
    e('s_cmp_eq_u32 %s, %d' % (s(sRing), 3 * S))
    e('s_cselect_b32 %s, 0, %s' % (s(sRing), s(sRing)))
    e('s_add_u32 %s, %s, 1' % (s(sCnt), s(sCnt)))
    e('s_cmp_lt_u32 %s, 9' % s(sCnt))
    e('s_cbranch_scc1 L_LOOP')
    ST.mark()
    phase2_ids()
    e('s_cmp_ge_u32 %s, 234' % s(sL2))
    e('s_cbranch_scc1 L_NOP2')
    mksrd(A, SA, pWoA, 576 * 1152)
    mksrd(A, SB, pWoB, 576 * 1152)
    q_, col = vT[0], vT[1]
    e('v_lshrrev_b32 %s, 3, %s' % (v(q_), v(vLane)))
    e('v_bfe_u32 %s, %s, 1, 2' % (v(vT[2]), v(vLane)))
    e('v_lshrrev_b32 %s, 4, %s' % (v(vT[3]), v(vLane)))
    e('v_xor_b32 %s, %s, %s' % (v(vT[2]), v(vT[2]), v(vT[3])))
    e('v_and_b32 %s, 1, %s' % (v(vT[3]), v(vLane)))
    e('v_lshl_add_u32 %s, %s, 1, %s' % (v(col), v(vT[2]), v(vT[3])))
    e('v_lshlrev_b32 %s, 4, %s' % (v(col), v(col)))
    e('s_lshl_b32 %s, %s, 7' % (s(sT0), s(sNb)))
    e('v_add_u32 %s, %s, %s' % (v(col), s(sT0), v(col)))
    e('s_movk_i32 %s, 1152' % s(sT1))
    e('v_mad_u32_u24 %s, %s, %s, %s' % (v(vDM), v(q_), s(sT1), v(col)))
    e('v_lshrrev_b32 %s, 2, %s' % (v(vT[2]), v(q_)))
    e('v_mul_u32_u24 %s, 68, %s' % (v(vT[2]), v(vT[2])))
    e('v_add_u32 %s, %s, %s' % (v(vT[2]), v(vT[2]), v(q_)))
    e('v_mad_u32_u24 %s, %s, %s, %s' % (v(vDR), v(vT[2]), s(sT1), v(col)))
    e('s_and_b32 %s, %s, 1' % (s(sT0), s(sJ)))
    e('s_lshr_b32 %s, %s, 1' % (s(sT2), s(sJ)))
    e('s_mul_i32 %s, %s, 20' % (s(sWm), s(sT0)))
    e('s_lshl3_add_u32 %s, %s, %s' % (s(sWm), s(sT2), s(sWm)))
    e('s_sub_u32 %s, %s, 72' % (s(sWm), s(sWm)))
    e('s_mul_i32 %s, %s, 1152' % (s(sWm), s(sWm)))
    e('s_mul_i32 %s, %s, 36' % (s(sWr), s(sT0)))
    e('s_mul_i32 %s, %s, 144' % (s(sT2), s(sT2)))
    e('s_add_u32 %s, %s, %s' % (s(sWr), s(sWr), s(sT2)))
    e('s_add_u32 %s, %s, 16' % (s(sWr), s(sWr)))
    e('s_mul_i32 %s, %s, 1152' % (s(sWr), s(sWr)))
    e('s_mov_b32 %s, %s' % (s(sCh), s(sRot2)))
    e('s_add_u32 %s, %s, %d' % (s(sPos), s(sLx), WO0))
    e('s_mov_b32 %s, 0' % s(sCnt))
    A.label('L_WO')
    e('s_cmp_eq_u32 %s, 1' % s(sCnt))
    e('s_cbranch_scc0 L_G1')
    e('s_waitcnt vmcnt(16)')
    e('s_barrier')
    A.label('L_G1')
    e('s_cmp_eq_u32 %s, 3' % s(sCnt))
    e('s_cbranch_scc0 L_G2')
    e('s_waitcnt vmcnt(12)')
    e('s_barrier')
    A.label('L_G2')
    e('s_cmp_eq_u32 %s, 6' % s(sCnt))
    e('s_cbranch_scc0 L_G3')
    e('s_barrier')
    A.label('L_G3')
    e('s_mul_i32 %s, %s, %d' % (s(sT0), s(sCh), 72 * 1152))
    e('s_add_u32 %s, %s, %s' % (s(sT0), s(sT0), s(sWm)))
    e('s_cmp_eq_u32 %s, 0' % s(sCh))
    e('s_cselect_b32 %s, %s, %s' % (s(sT0), s(sWr), s(sT0)))
    e('s_cselect_b64 %s, -1, 0' % s(sM, 2))
    e('s_mov_b32 %s, %d' % (s(sStep), 36 * 1152))
    e('s_cselect_b32 %s, %d, %s' % (s(sStep), 288 * 1152, s(sStep)))
    e('v_cndmask_b32 %s, %s, %s, %s' % (v(vDC), v(vDM), v(vDR), s(sM, 2)))
    e('s_add_u32 %s, %s, %s' % (s(sT1), s(sT0), s(sStep)))
    for k2 in range(4):
        e('s_add_u32 m0, %s, %d' % (s(sPos), 4096 * k2))
        e('buffer_load_dwordx4 %s, %s, %s offen lds' % (v(vDC), s(SA if k2 < 2 else SB, 4), s(sT0 if k2 % 2 == 0 else sT1)))
    e('s_add_u32 %s, %s, 1' % (s(sCh), s(sCh)))
    e('s_cmp_eq_u32 %s, 9' % s(sCh))
    e('s_cselect_b32 %s, 0, %s' % (s(sCh), s(sCh)))
    e('s_add_u32 %s, %s, 16384' % (s(sPos), s(sPos)))
    e('s_cmp_eq_u32 %s, 0' % s(sCnt))
    e('s_cselect_b32 %s, %s, %s' % (s(sPos), s(sLx), s(sPos)))
    e('s_add_u32 %s, %s, 1' % (s(sCnt), s(sCnt)))
    e('s_cmp_lt_u32 %s, 9' % s(sCnt))
    e('s_cbranch_scc1 L_WO')
    ST.mark()
    sCp, sKh, sSt = sx, sx + 1, sx + 2
    e('s_and_b32 %s, %s, 1' % (s(sT0), s(sJ)))
    e('s_lshr_b32 %s, %s, 1' % (s(sKh), s(sJ)))
    e('s_mov_b32 %s, %s' % (s(sCp), s(sT0)))
    vWa = [R.alloc() for _ in range(3)]; vWb = [R.alloc() for _ in range(3)]
    vOa = [R.alloc() for _ in range(3)]; vSt = R.alloc(); vXa = R.alloc()
    acc2 = [[R.alloc(4) for c2 in range(2)] for t in range(5)]
    Of = [[R.alloc(4) for t in range(5)] for b in range(2)]
    Wr = [[[R.alloc(4) for c2 in range(2)] for kb in range(2)] for i in range(9)]
    g, r4, c4 = vT[0], vT[1], vT[2]
    e('v_lshrrev_b32 %s, 4, %s' % (v(g), v(vLane)))
    e('v_bfe_u32 %s, %s, 2, 2' % (v(r4), v(vLane)))
    e('v_and_b32 %s, 3, %s' % (v(c4), v(vLane)))
    t3, t4_ = vT[3], vDC
    e('v_lshrrev_b32 %s, 1, %s' % (v(t3), v(g)))
    e('v_lshlrev_b32 %s, 4, %s' % (v(t3), v(t3)))
    e('v_and_b32 %s, 1, %s' % (v(t4_), v(g)))
    e('v_lshl_add_u32 %s, %s, 2, %s' % (v(t4_), v(t4_), v(r4)))
    e('v_add_u32 %s, %s, %s' % (v(t3), v(t3), v(t4_)))
    e('v_lshrrev_b32 %s, 1, %s' % (v(t4_), v(t4_)))
    e('s_lshl_b32 %s, %s, 1' % (s(sT0), s(sCp)))
    e('v_xor_b32 %s, %s, %s' % (v(t4_), s(sT0), v(t4_)))
    e('v_lshlrev_b32 %s, 5, %s' % (v(t4_), v(t4_)))
    e('v_lshl_add_u32 %s, %s, 7, %s' % (v(t3), v(t3), v(t4_)))
    e('v_lshl_add_u32 %s, %s, 3, %s' % (v(t3), v(c4), v(t3)))
    e('s_lshl_b32 %s, %s, 13' % (s(sT0), s(sKh)))
    e('v_add_u32 %s, %s, %s' % (v(vWa[0]), s(sT0), v(t3)))
    e('v_xor_b32 %s, 32, %s' % (v(vWb[0]), v(vWa[0])))
    for k in (1, 2):
        e('v_add_u32 %s, %d, %s' % (v(vWa[k]), 65536 * k, v(vWa[0])))
        e('v_add_u32 %s, %d, %s' % (v(vWb[k]), 65536 * k, v(vWb[0])))
    e('s_lshl_b32 %s, %s, 11' % (s(sT0), s(sKh)))
    e('v_lshlrev_b32 %s, 4, %s' % (v(t3), v(vLane)))
    e('v_add_u32 %s, %s, %s' % (v(vOa[0]), s(sT0), v(t3)))
    for k in (1, 2):
        e('v_add_u32 %s, %d, %s' % (v(vOa[k]), 61440 * k, v(vOa[0])))
    e('s_mul_i32 %s, %s, 10240' % (s(sT0), s(sCp)))
    e('s_add_u32 %s, %s, 40960' % (s(sT0), s(sT0)))
    e('v_add_u32 %s, %s, %s' % (v(vXa), s(sT0), v(t3)))
    e('s_mul_i32 %s, %s, %d' % (s(sSt), s(sMb), 80 * 1152))
    e('s_lshl_b32 %s, %s, 7' % (s(sT0), s(sNb)))
    e('s_add_u32 %s, %s, %s' % (s(sSt), s(sSt), s(sT0)))
    e('s_lshl_b32 %s, %s, 6' % (s(sT0), s(sCp)))
    e('s_add_u32 %s, %s, %s' % (s(sSt), s(sSt), s(sT0)))
    e('v_and_b32 %s, 15, %s' % (v(t3), v(vLane)))
    e('v_mul_u32_u24 %s, 1152, %s' % (v(t3), v(t3)))
    e('v_and_b32 %s, 1, %s' % (v(t4_), v(g)))
    e('v_lshl_add_u32 %s, %s, 5, %s' % (v(t3), v(t4_), v(t3)))
    e('v_lshrrev_b32 %s, 1, %s' % (v(t4_), v(g)))
    e('v_lshl_add_u32 %s, %s, 4, %s' % (v(vSt), v(t4_), v(t3)))
    mksrd(A, SC, pOut, 2048 * 1152)
    for t in range(5):
        for c2 in range(2):
            for k in range(4): e('v_mov_b32 %s, 0' % v(acc2[t][c2] + k))
    e('s_waitcnt vmcnt(0)')
    ST.mark()
    e('s_barrier')
    ST.mark()
    for i in range(9):
        pos = WO0 if i == 0 else 16384 * (i - 1)
        for kb in range(2):
            for c2 in range(2):
                for j2 in range(2):
                    off = pos + kb * 4096 + j2 * 1024
                    e('ds_read_b64_tr_b16 %s, %s offset:%d' % (v(Wr[i][kb][c2] + 2 * j2, 2), v((vWa, vWb)[c2][off >> 16]), off & 65535))
    e('s_waitcnt lgkmcnt(0)')
    ST.mark()
    e('s_barrier')
    ST.mark()
    Q = LQ(A)
    def oread(i, kb, t):
        off = 20480 * (i % 8) + t * 4096 + kb * 1024
        k = off // 61440
        Q.rd('ds_read_b128 %s, %s offset:%d' % (v(Of[kb][t], 4), v(vOa[k]), off - 61440 * k), Of[kb][t], 4)
    def omf(i, kb, fills):
        for t in range(5):
            Q.need((Of[kb][t], 4))
            for c2 in range(2):
                e('v_mfma_f32_16x16x32_bf16 %s, %s, %s, %s' % (v(acc2[t][c2], 4), v(Wr[i][kb][c2], 4), v(Of[kb][t], 4), v(acc2[t][c2], 4)))
                if fills: fills.pop(0)()
        while fills: fills.pop(0)()
    e('s_barrier')
    for t in range(5): oread(0, 0, t)
    for i in range(9):
        omf(i, 0, [lambda t=t: oread(i, 1, t) for t in range(5)])
        if i < 8:
            fl = [lambda: None, lambda: (Q.drain(), e('s_barrier'))] + [lambda t=t: oread(i + 1, 0, t) for t in range(5)]
        else: fl = []
        omf(i, 1, fl)
    ST.mark()
    def finish(own, other, lab):
        for t in other:
            for c2 in range(2):
                e('ds_write_b128 %s, %s offset:%d' % (v(vXa), v(acc2[t][c2], 4), (2 * t + c2) * 1024))
        e('s_waitcnt lgkmcnt(0)')
        e('s_barrier')
        if lab == 'b':
            e('s_cmp_eq_u32 %s, 25' % s(sMb))
            e('s_cbranch_scc1 L_DONE')
        tmp = [Of[0][0], Of[0][1], Of[0][2], Of[0][3], Of[0][4], Of[1][0]]
        Q.q = []
        for n, t in enumerate(own):
            for c2 in range(2):
                Q.rd('ds_read_b128 %s, %s offset:%d' % (v(tmp[2 * n + c2], 4), v(vXa), (2 * t + c2) * 1024), tmp[2 * n + c2], 4)
        for n, t in enumerate(own):
            o = Of[1][1 + n]
            for c2 in range(2):
                Q.need((tmp[2 * n + c2], 4))
                for k in range(4):
                    e('v_add_f32 %s, %s, %s' % (v(acc2[t][c2] + k), v(acc2[t][c2] + k), v(tmp[2 * n + c2] + k)))
                e('v_cvt_pk_bf16_f32 %s, %s, %s' % (v(o + 2 * c2), v(acc2[t][c2]), v(acc2[t][c2] + 1)))
                e('v_cvt_pk_bf16_f32 %s, %s, %s' % (v(o + 2 * c2 + 1), v(acc2[t][c2] + 2), v(acc2[t][c2] + 3)))
            e('v_permlane16_swap_b32 %s, %s' % (v(o), v(o + 2)))
            e('v_permlane16_swap_b32 %s, %s' % (v(o + 1), v(o + 3)))
            e('s_add_u32 %s, %s, %d' % (s(sT0), s(sSt), t * 16 * 1152))
            e('buffer_store_dwordx4 %s, %s, %s, %s offen' % (v(o, 4), v(vSt), s(SC, 4), s(sT0)))
    e('s_cmp_eq_u32 %s, 0' % s(sKh))
    e('s_cbranch_scc0 L_FIN1')
    finish([0, 1, 2], [3, 4], 'a')
    e('s_branch L_DONE')
    A.label('L_FIN1')
    A.barrier_hazards()
    finish([3, 4], [0, 1, 2], 'b')
    A.label('L_DONE')
    ST.finish(SD, pWs, vT[0])
    e('s_endpgm')
    A.label('L_NOP2')
    e('s_waitcnt vmcnt(12)')
    e('s_barrier')
    e('s_waitcnt vmcnt(0)')
    e('s_barrier')
    e('s_endpgm')

    A.label('C_START')
    A.hist = []
    sRg, sP, sCnt, sRing, sDelta, sC, sGs, sSt0, sSr0, sNlo, sNhi, sSpin, sCh, sOb, sLd = range(sx, sx + 15)
    sMpar, sMc0, sMc1, sFirst = 78, 80, 82, 84
    sG = [86, 88, 90, 92]
    SO, SG_, SDb, SF = SA, SB, SC, SD
    R = RegAlloc(2, 254)
    vT = [R.alloc() for _ in range(6)]
    vAX = [R.alloc(), R.alloc()]
    vAW = R.alloc(); vAR = [R.alloc() for _ in range(4)]
    vFlag = R.alloc(); vC512 = R.alloc(); vDl = R.alloc()
    vSel = R.alloc(2); vN = R.alloc(2)
    vPP0, vPC0, vPP1, vPC1, vMG0, vNeg, vBp, vStM, vStR, vZ = [R.alloc() for _ in range(10)]
    names = ['Ka', 'Kb', 'Va', 'Vb', 'R', 'Qa', 'Qb']
    acc = [{n: R.alloc(4) for n in (names[:5] if t == 0 else names)} for t in range(5)]
    acc_lo = acc[0]['Ka']; acc_hi = acc[4]['Qb'] + 4
    Wf = {n: R.alloc(4) for n in names}
    Xf = [[R.alloc(4) for t in range(5)] for b in range(2)]
    buf_lo = Wf['Ka']
    ST.start()
    e('s_and_b32 %s, %s, 1' % (s(sRg), s(sWv)))
    e('s_lshr_b32 %s, %s, 1' % (s(sP), s(sWv)))
    e('v_lshlrev_b32 %s, 3, v0' % v(vT[5]))
    e('v_mov_b32 %s, 0' % v(vZ))
    e('s_waitcnt lgkmcnt(0)')
    mksrd(A, SG_, pG, 1152)
    vG = Xf[1][0]
    e('buffer_load_dwordx2 %s, %s, %s, 0 offen' % (v(vG, 2), v(vT[5]), s(SG_, 4)))
    mksrd(A, SDb, pDbg, 256)
    e('s_or_b32 %s, s2, %s' % (s(sT0), s(sWv)))
    e('s_cmp_eq_u32 %s, 0' % s(sT0))
    e('s_cbranch_scc0 C_NONONCE')
    e('s_memrealtime %s' % s(sM, 2))
    e('s_waitcnt lgkmcnt(0)')
    e('s_or_b32 %s, %s, 1' % (s(sM), s(sM)))
    e('v_mov_b32 %s, %s' % (v(vN), s(sM)))
    e('v_mov_b32 %s, %s' % (v(vN + 1), s(sM + 1)))
    e('buffer_store_dwordx2 %s, %s, %s, 0 offen offset:128 sc1' % (v(vN, 2), v(vZ), s(SDb, 4)))
    A.label('C_NONONCE')
    mksrd(A, SO, pWs, OP_BYTES)
    e('s_add_u32 %s, %s, %d' % (s(sT0), s(pWs), FLAG_OFF))
    e('s_addc_u32 %s, %s, 0' % (s(sT1), s(pWs + 1)))
    mksrd(A, SF, sT0, 32768)
    i15, g, r4, c4 = vT[0], vT[1], vT[2], vT[3]
    e('v_and_b32 %s, 15, %s' % (v(i15), v(vLane)))
    e('v_lshrrev_b32 %s, 4, %s' % (v(g), v(vLane)))
    e('v_bfe_u32 %s, %s, 2, 2' % (v(r4), v(vLane)))
    e('v_and_b32 %s, 3, %s' % (v(c4), v(vLane)))
    e('v_lshrrev_b32 %s, 1, %s' % (v(vT[4]), v(i15)))
    e('v_xor_b32 %s, %s, %s' % (v(vT[4]), v(vT[4]), v(g)))
    e('v_lshlrev_b32 %s, 4, %s' % (v(vT[4]), v(vT[4])))
    e('v_lshl_add_u32 %s, %s, 7, %s' % (v(vT[4]), v(i15), v(vT[4])))
    e('s_lshl_b32 %s, %s, 13' % (s(sT0), s(sRg)))
    e('v_add_u32 %s, %s, %s' % (v(vAX[0]), s(sT0), v(vT[4])))
    e('v_xor_b32 %s, 64, %s' % (v(vAX[1]), v(vAX[0])))
    e('v_lshlrev_b32 %s, 3, %s' % (v(vT[4]), v(g)))
    e('v_lshl_add_u32 %s, %s, 1, %s' % (v(vT[4]), v(r4), v(vT[4])))
    e('v_mul_u32_u24 %s, 432, %s' % (v(vT[4]), v(vT[4])))
    e('s_mul_i32 %s, %s, 72' % (s(sT0), s(sP)))
    e('s_add_u32 %s, %s, %d' % (s(sT0), s(sT0), WOFF))
    e('v_add_u32 %s, %s, %s' % (v(vT[4]), s(sT0), v(vT[4])))
    e('v_lshl_add_u32 %s, %s, 3, %s' % (v(vAW), v(c4), v(vT[4])))
    setmask(A, sM, lambda l: (l & 3) == 1)
    e('v_mov_b32 %s, 32' % v(vT[5]))
    e('v_mov_b32 %s, %d' % (v(vDl), 320))
    e('v_cndmask_b32 %s, %s, %s, %s' % (v(vT[5]), v(vT[5]), v(vDl), s(sM, 2)))
    setmask(A, sM, lambda l: (l & 3) == 2)
    e('v_mov_b32 %s, %d' % (v(vDl), 176))
    e('v_cndmask_b32 %s, %s, %s, %s' % (v(vT[5]), v(vT[5]), v(vDl), s(sM, 2)))
    e('v_add_u32 %s, %s, %s' % (v(vT[4]), v(vT[4]), v(vT[5])))
    e('v_lshl_add_u32 %s, %s, 3, %s' % (v(vT[5]), v(g), v(r4)))
    e('v_lshlrev_b32 %s, 3, %s' % (v(vT[5]), v(vT[5])))
    setmask(A, sM, lambda l: (l & 3) == 3)
    for ks in range(2):
        for j2 in range(2):
            a = vAR[ks * 2 + j2]
            e('v_add_u32 %s, %d, %s' % (v(a), ks * 13824 + j2 * 432, v(vT[4])))
            e('v_add_u32 %s, %d, %s' % (v(vDl), GB + (32 * ks + 4 * j2) * 8, v(vT[5])))
            e('v_cndmask_b32 %s, %s, %s, %s' % (v(a), v(a), v(vDl), s(sM, 2)))
    e('v_cndmask_b32 %s, 1, 0, %s' % (v(vFlag), s(sM, 2)))
    e('v_mov_b32 %s, 512' % v(vDl))
    e('v_cndmask_b32 %s, 0, %s, %s' % (v(vC512), v(vDl), s(sM, 2)))
    lo, hi = vT[4], vT[5]
    e('v_mov_b32 %s, 0x3f80' % v(lo)); e('v_mov_b32 %s, 1.0' % v(hi))
    def sel2(dst, f_lo, f_hi):
        e('v_mov_b32 %s, 0' % v(dst))
        if f_lo:
            setmask(A, sM, f_lo); e('v_cndmask_b32 %s, %s, %s, %s' % (v(dst), v(dst), v(lo), s(sM, 2)))
        if f_hi:
            setmask(A, sM, f_hi); e('v_cndmask_b32 %s, %s, %s, %s' % (v(dst), v(dst), v(hi), s(sM, 2)))
    sel2(vSel, lambda l: ((l >> 4) == 1 and (l & 7) == 0) or ((l >> 4) == 2 and (l & 3) >= 2), lambda l: (l >> 4) == 1 and (l & 7) == 1)
    sel2(vSel + 1, lambda l: (l >> 4) == 1 and (l & 7) == 4, lambda l: (l >> 4) == 1 and (l & 7) == 5)
    setmask(A, sMpar, lambda l: l & 1)
    setmask(A, sMc0, lambda l: 4 * (l >> 4) + (l & 1) <= (l & 15))
    setmask(A, sMc1, lambda l: 4 * (l >> 4) + 2 + (l & 1) <= (l & 15))
    e('v_mov_b32 %s, 0x0c0c0302' % v(lo)); e('v_mov_b32 %s, 0x03020c0c' % v(hi))
    e('v_cndmask_b32 %s, %s, %s, %s' % (v(lo), v(lo), v(hi), s(sMpar, 2)))
    e('v_mov_b32 %s, 0x0c0c0c0c' % v(hi))
    e('v_cndmask_b32 %s, %s, %s, %s' % (v(vPC0), v(hi), v(lo), s(sMc0, 2)))
    e('v_cndmask_b32 %s, %s, %s, %s' % (v(vPP0), v(lo), v(hi), s(sMc0, 2)))
    e('v_cndmask_b32 %s, %s, %s, %s' % (v(vPC1), v(hi), v(lo), s(sMc1, 2)))
    e('v_cndmask_b32 %s, %s, %s, %s' % (v(vPP1), v(lo), v(hi), s(sMc1, 2)))
    for k in range(4): setmask(A, sG[k], lambda l: (l >> 4) == k)
    e('v_cndmask_b32 %s, 0, -1, %s' % (v(vMG0), s(sG[0], 2)))
    e('v_mov_b32 %s, %s' % (v(vNeg), f32(-1e9 * math.sqrt(18.0))))
    e('v_lshlrev_b32 %s, 2, %s' % (v(vBp), v(i15)))
    e('v_add_u32 %s, 192, %s' % (v(vBp), v(vBp)))
    e('s_or_b32 %s, %s, %s' % (s(sT0), s(sRb), s(sRg)))
    e('s_cmp_eq_u32 %s, 0' % s(sT0))
    e('s_cselect_b64 %s, -1, 0' % s(sFirst, 2))
    e('s_mov_b32 %s, %s' % (s(sC), f32(18.0 ** -0.5 * math.log2(math.e))))
    e('s_cmp_eq_u32 %s, 0' % s(sBr))
    e('s_mov_b32 %s, %s' % (s(sGs), f32(math.log2(math.e))))
    e('s_cselect_b32 %s, %s, %s' % (s(sGs), f32(-math.log2(math.e)), s(sGs)))
    e('s_lshl_b32 %s, %s, 3' % (s(sT0), s(sRb)))
    e('s_lshl2_add_u32 %s, %s, %s' % (s(sT0), s(sRg), s(sT0)))
    e('s_mul_i32 %s, %s, 36864' % (s(sT0), s(sT0)))
    e('s_lshl_b32 %s, %s, 2' % (s(sT1), s(sHg)))
    e('s_lshl1_add_u32 %s, %s, %s' % (s(sT1), s(sBr), s(sT1)))
    e('s_add_u32 %s, %s, %s' % (s(sT1), s(sT1), s(sP)))
    e('s_add_u32 %s, %s, 4' % (s(sT1), s(sT1)))
    e('s_lshl_b32 %s, %s, 10' % (s(sT1), s(sT1)))
    e('s_add_u32 %s, %s, %s' % (s(sSt0), s(sT0), s(sT1)))
    e('s_lshl_b32 %s, %s, 8' % (s(sT1), s(sHgb)))
    e('s_lshl3_add_u32 %s, %s, %s' % (s(sT1), s(sP), s(sT1)))
    e('s_add_u32 %s, %s, %s' % (s(sSr0), s(sT0), s(sT1)))
    e('v_lshlrev_b32 %s, 4, %s' % (v(vStM), v(vLane)))
    e('v_lshrrev_b32 %s, 1, %s' % (v(lo), v(g)))
    e('v_mul_u32_u24 %s, 36864, %s' % (v(lo), v(lo)))
    e('v_lshl_add_u32 %s, %s, 4, %s' % (v(lo), v(i15), v(lo)))
    e('v_and_b32 %s, 1, %s' % (v(hi), v(g)))
    e('v_lshl_add_u32 %s, %s, 2, %s' % (v(vStR), v(hi), v(lo)))
    phase2_ids()
    for r in range(acc_lo, acc_hi):
        e('v_mov_b32 %s, 0' % v(r))
    e('s_lshl_b32 %s, %s, 4' % (s(sT0), s(sRot)))
    e('v_subrev_u32 %s, %s, v0' % (v(lo), s(sT0)))
    e('v_add_u32 %s, 144, %s' % (v(hi), v(lo)))
    e('v_cmp_gt_i32 vcc, 0, %s' % v(lo))
    e('v_cndmask_b32 %s, %s, %s, vcc' % (v(lo), v(lo), v(hi)))
    e('v_mov_b32 %s, 144' % v(hi))
    e('v_cmp_gt_u32 vcc, 144, v0')
    e('v_cndmask_b32 %s, %s, %s, vcc' % (v(lo), v(hi), v(lo)))
    e('v_lshlrev_b32 %s, 5, %s' % (v(lo), v(lo)))
    e('v_add_u32 %s, %d, %s' % (v(lo), GB, v(lo)))
    ST.mark()
    e('s_waitcnt vmcnt(0)')
    gq = Xf[1][1]
    e('s_mov_b32 %s, 0x01000100' % s(sT0)); e('s_mov_b32 %s, 0x03020302' % s(sT1))
    for k in range(2):
        e('v_perm_b32 %s, %s, %s, %s' % (v(gq + 4 * k), v(vG + k), v(vG + k), s(sT0)))
        e('v_perm_b32 %s, %s, %s, %s' % (v(gq + 4 * k + 2), v(vG + k), v(vG + k), s(sT1)))
        e('v_mov_b32 %s, %s' % (v(gq + 4 * k + 1), v(gq + 4 * k)))
        e('v_mov_b32 %s, %s' % (v(gq + 4 * k + 3), v(gq + 4 * k + 2)))
    e('ds_write_b128 %s, %s' % (v(lo), v(gq, 4)))
    e('ds_write_b128 %s, %s offset:16' % (v(lo), v(gq + 4, 4)))
    e('s_mov_b32 %s, 0' % s(sCnt)); e('s_mov_b32 %s, 0' % s(sRing))
    e('s_waitcnt lgkmcnt(0)')
    ST.mark()
    e('s_barrier')
    ST.mark()
    toff = {'Qa': 0, 'Qb': 40, 'Ka': 144, 'Kb': 184, 'Va': 288, 'Vb': 328}
    Q = LQ(A)
    def xread(ks, t):
        Q.rd('ds_read_b128 %s, %s offset:%d' % (v(Xf[ks][t], 4), v(vAX[ks]), 2048 * t), Xf[ks][t], 4)
    def wread(ks, n):
        for j2 in range(2):
            if n == 'R': Q.rd('ds_read_b64_tr_b16 %s, %s' % (v(Wf[n] + 2 * j2, 2), v(vAR[ks * 2 + j2])), Wf[n] + 2 * j2, 2)
            else: Q.rd('ds_read_b64_tr_b16 %s, %s offset:%d' % (v(Wf[n] + 2 * j2, 2), v(vAW), ks * 13824 + j2 * 432 + toff[n]), Wf[n] + 2 * j2, 2)
    def group(ks, n, fills=None):
        for t in range(5):
            if n not in acc[t]: continue
            Q.need((Wf[n], 4), (Xf[ks][t], 4))
            d = acc[t][n]
            a, b = (Xf[ks][t], Wf[n]) if n[0] == 'V' else (Wf[n], Xf[ks][t])
            e('v_mfma_f32_16x16x32_bf16 %s, %s, %s, %s' % (v(d, 4), v(a, 4), v(b, 4), v(d, 4)))
            if fills: fills.pop(0)()
        while fills: fills.pop(0)()
    for t in range(5): xread(0, t)
    for n in names: wread(0, n)
    entry_q = [set(x) for x in Q.q]
    A.barrier_hazards()
    A.label('C_LOOP')
    for k, n in enumerate(names):
        group(0, n, [lambda t=t: xread(1, t) for t in range(5)] if k == 0 else None)
        wread(1, n)
    e('s_cmp_eq_u32 %s, %d' % (s(sRing), 2 * S))
    e('s_mov_b32 %s, %d' % (s(sDelta), S))
    e('s_cselect_b32 %s, %d, %s' % (s(sDelta), -2 * S, s(sDelta)))
    e('s_add_u32 %s, %s, %s' % (s(sRing), s(sRing), s(sDelta)))
    e('v_mad_i32_i24 %s, %s, %s, %s' % (v(vDl), v(vFlag), s(sDelta), v(vC512)))
    upd = [lambda a=a: e('v_add_u32 %s, %s, %s' % (v(a), s(sDelta), v(a))) for a in vAX + [vAW]]
    upd += [lambda a=a: e('v_add_u32 %s, %s, %s' % (v(a), v(vDl), v(a))) for a in vAR]
    for k, n in enumerate(names):
        group(1, n, upd if k == 0 else None)
        if k == 0:
            e('buffer_load_dwordx2 %s, %s, %s, 0 offen offset:128 sc1' % (v(vN, 2), v(vZ), s(SDb, 4)))
            Q.drain()
            e('s_barrier')
            for t in range(5): xread(0, t)
        wread(0, n)
    assert [set(x) for x in Q.q] == entry_q[len(entry_q) - len(Q.q):], 'queue mismatch'
    e('s_add_u32 %s, %s, 1' % (s(sCnt), s(sCnt)))
    e('s_cmp_lt_u32 %s, 9' % s(sCnt))
    e('s_cbranch_scc1 C_LOOP')
    ST.mark()
    Q.drain()
    E = RegAlloc(buf_lo, 254)
    KB = [E.alloc(6) for _ in range(5)]
    VA = E.alloc(10); VB = E.alloc(10); VR = E.alloc(10)
    tg = [E.alloc() for _ in range(4)]
    Tq = [E.alloc(2) for _ in range(5)]
    def pk(dst, src):
        e('v_cvt_pk_bf16_f32 %s, %s, %s' % (v(dst), v(src), v(src + 1)))
        e('v_cvt_pk_bf16_f32 %s, %s, %s' % (v(dst + 1), v(src + 2), v(src + 3)))
    for t in range(4):
        e('ds_bpermute_b32 %s, %s, %s' % (v(tg[t]), v(vBp), v(acc[t + 1]['R'])))
    e('s_mov_b32 %s, 0x3f803f80' % s(sT0))
    for t in range(5):
        pk(Tq[t], acc[t]['R'])
        e('v_mov_b32 %s, %s' % (v(KB[t] + 2), s(sT0))); e('v_mov_b32 %s, %s' % (v(KB[t] + 3), s(sT0)))
    e('s_waitcnt lgkmcnt(0)')
    for t in range(5):
        e('v_permlane32_swap_b32 %s, %s' % (v(Tq[t]), v(KB[t] + 2)))
        e('v_permlane32_swap_b32 %s, %s' % (v(Tq[t] + 1), v(KB[t] + 3)))
    for t in range(5):
        e('v_mfma_f32_16x16x16_bf16 %s, %s, %s, 0' % (v(acc[t]['R'], 4), v(Tq[t], 2), v(vSel, 2)))
        pk(KB[t], acc[t]['Ka']); pk(KB[t] + 4, acc[t]['Kb'])
    QB = [None] + [acc[t]['Ka'] for t in range(1, 5)]
    for t in range(1, 5):
        assert acc[t]['Kb'] == acc[t]['Ka'] + 4
        pk(QB[t], acc[t]['Qa']); pk(QB[t] + 6, acc[t]['Qb'])
        e('v_and_b32 %s, %s, %s' % (v(QB[t] + 2), v(vMG0), v(Tq[t])))
        e('v_mov_b32 %s, 0' % v(QB[t] + 3)); e('v_mov_b32 %s, 0' % v(QB[t] + 4))
        e('v_and_b32 %s, %s, %s' % (v(QB[t] + 5), v(vMG0), v(Tq[t] + 1)))
    def mf32(d, a, b):
        e('v_mfma_f32_16x16x32_bf16 %s, %s, %s, 0' % (v(d, 4), v(a, 4), v(b, 4)))
    def vconv(t):
        pk(VA + 2 * t, acc[t]['Va']); pk(VB + 2 * t, acc[t]['Vb']); pk(VR + 2 * t, acc[t]['R'])
    def attn(ts, Sreg, pre):
        units = [(t, h) for t in ts for h in range(2)]
        Sp = Sreg[0:4]; Sc = Sreg[4:8]
        for u, (t, h) in enumerate(units):
            mf32(Sp[u], KB[t - 1] + 2 * h, QB[t] + 4 * h); mf32(Sc[u], KB[t] + 2 * h, QB[t] + 4 * h)
        pre()
        for u, (t, h) in enumerate(units):
            for k, mc in ((0, sMc0), (1, sMc1)):
                e('v_cndmask_b32 %s, %s, %s, %s' % (v(Sp[u] + 2 * k), v(Sp[u] + 2 * k), v(Sp[u] + 2 * k + 1), s(sMpar, 2)))
                e('v_cndmask_b32 %s, %s, %s, %s' % (v(Sc[u] + 2 * k), v(Sc[u] + 2 * k), v(Sc[u] + 2 * k + 1), s(sMpar, 2)))
                if t == 1:
                    e('v_cndmask_b32 %s, %s, %s, %s' % (v(Sp[u] + 2 * k), v(Sp[u] + 2 * k), v(vNeg), s(sFirst, 2)))
                e('v_cndmask_b32 %s, %s, %s, %s' % (v(Sp[u] + 2 * k), v(Sp[u] + 2 * k), v(Sc[u] + 2 * k), s(mc, 2)))
            e('v_max_f32 %s, %s, %s' % (v(Sp[u] + 1), v(Sp[u]), v(Sp[u] + 2)))
        m = [Sp[u] + 1 for u in range(4)]
        e('v_permlane32_swap_b32 %s, %s' % (v(m[0]), v(m[1])))
        e('v_permlane32_swap_b32 %s, %s' % (v(m[2]), v(m[3])))
        e('v_max_f32 %s, %s, %s' % (v(m[0]), v(m[0]), v(m[1])))
        e('v_max_f32 %s, %s, %s' % (v(m[2]), v(m[2]), v(m[3])))
        e('v_permlane16_swap_b32 %s, %s' % (v(m[0]), v(m[2])))
        e('v_max_f32 %s, %s, %s' % (v(m[0]), v(m[0]), v(m[2])))
        e('v_mul_f32 %s, %s, %s' % (v(m[0]), s(sC), v(m[0])))
        e('v_mov_b32 %s, %s' % (v(m[2]), v(m[0])))
        e('v_permlane16_swap_b32 %s, %s' % (v(m[0]), v(m[2])))
        e('v_mov_b32 %s, %s' % (v(m[1]), v(m[0])))
        e('v_mov_b32 %s, %s' % (v(m[3]), v(m[2])))
        e('v_permlane32_swap_b32 %s, %s' % (v(m[0]), v(m[1])))
        e('v_permlane32_swap_b32 %s, %s' % (v(m[2]), v(m[3])))
        for u in range(4):
            for k in range(2):
                e('v_fma_f32 %s, %s, %s, -%s' % (v(Sp[u] + 2 * k), v(Sp[u] + 2 * k), s(sC), v(m[u])))
        for u in range(4):
            for k in range(2):
                e('v_exp_f32 %s, %s' % (v(Sp[u] + 2 * k), v(Sp[u] + 2 * k)))
        P = Sc
        for u in range(4):
            for k, (pp, pc) in enumerate(((vPP0, vPC0), (vPP1, vPC1))):
                e('v_perm_b32 %s, %s, %s, %s' % (v(P[u] + k), v(Sp[u] + 2 * k), v(Sp[u] + 2 * k), v(pp)))
                e('v_perm_b32 %s, %s, %s, %s' % (v(P[u] + 2 + k), v(Sp[u] + 2 * k), v(Sp[u] + 2 * k), v(pc)))
        OR = Sp; O = [QB[t] + 4 * h for (t, h) in units]
        for u, (t, h) in enumerate(units):
            mf32(OR[u], VR + 2 * (t - 1), P[u])
        for u, (t, h) in enumerate(units):
            mf32(O[u], (VA, VB)[h] + 2 * (t - 1), P[u])
        for u, (t, h) in enumerate(units):
            e('v_mul_f32 %s, %s, %s' % (v(OR[u] + 2), v(OR[u] + 2), v(tg[t - 1])))
        for u in range(4):
            e('v_rcp_f32 %s, %s' % (v(OR[u] + 2), v(OR[u] + 2)))
        outR = P[0]
        for u, (t, h) in enumerate(units):
            for k in range(4):
                e('v_mul_f32 %s, %s, %s' % (v(O[u] + k), v(OR[u] + 2), v(O[u] + k)))
            o = P[2 + (u >> 1)]
            pk(o + 2 * h, O[u])
            if h == 1:
                e('s_add_u32 %s, %s, %d' % (s(sT0), s(sSt0), 36864 * (t - 1)))
                e('buffer_store_dwordx4 %s, %s, %s, %s offen sc1' % (v(o, 4), v(vStM), s(SO, 4), s(sT0)))
        for u in range(4):
            e('s_mov_b64 exec, %s' % s(sG[u], 2))
            e('v_mul_f32 %s, %s, %s' % (v(OR[u]), v(OR[u] + 2), v(OR[u])))
            e('v_mul_f32 %s, %s, %s' % (v(OR[u] + 1), v(OR[u] + 2), v(OR[u] + 1)))
            e('v_cvt_pk_bf16_f32 %s, %s, %s' % (v(outR), v(OR[u]), v(OR[u] + 1)))
        e('s_mov_b64 exec, -1')
        e('s_add_u32 %s, %s, %d' % (s(sT0), s(sSr0), 36864 * (ts[0] - 1)))
        e('buffer_store_dword %s, %s, %s, %s offen sc1' % (v(outR), v(vStR), s(SO, 4), s(sT0)))
    S1 = [acc[t][n] for t in range(1, 5) for n in ('Qa', 'Qb')]
    def pre1():
        for t in range(5): vconv(t)
        for t in range(4):
            e('v_mul_f32 %s, %s, %s' % (v(tg[t]), s(sGs), v(tg[t])))
            e('v_exp_f32 %s, %s' % (v(tg[t]), v(tg[t])))
        for t in range(4):
            e('v_add_f32 %s, 1.0, %s' % (v(tg[t]), v(tg[t])))
    attn([1, 2], S1, pre1)
    S2 = [acc[t][n] for t in range(0, 3) for n in ('Va', 'Vb', 'R')][:8]
    attn([3, 4], S2, lambda: None)
    ST.mark()
    e('s_lshl4_add_u32 %s, %s, %s' % (s(sT0), s(sRb), s(sHgb)))
    e('s_lshl_b32 %s, %s, 7' % (s(sT0), s(sT0)))
    e('s_lshl3_add_u32 %s, %s, %s' % (s(sT0), s(sWv), s(sT0)))
    e('s_mov_b32 %s, 0' % s(sSpin))
    A.label('C_NSPIN')
    e('s_waitcnt vmcnt(0)')
    e('v_readfirstlane_b32 %s, %s' % (s(sNlo), v(vN)))
    e('v_readfirstlane_b32 %s, %s' % (s(sNhi), v(vN + 1)))
    e('s_cmp_lg_u32 %s, 0' % s(sNlo))
    e('s_cbranch_scc1 C_NOK')
    e('buffer_load_dwordx2 %s, %s, %s, 0 offen offset:128 sc1' % (v(vN, 2), v(vZ), s(SDb, 4)))
    e('s_add_u32 %s, %s, 1' % (s(sSpin), s(sSpin)))
    e('s_cmp_lt_u32 %s, 100000' % s(sSpin))
    e('s_cbranch_scc1 C_NSPIN')
    e('s_waitcnt vmcnt(0)')
    A.label('C_NOK')
    e('s_mov_b64 exec, 1')
    e('buffer_store_dwordx2 %s, %s, %s, %s offen sc1' % (v(vN, 2), v(vZ), s(SF, 4), s(sT0)))
    e('s_mov_b64 exec, -1')
    ST.mark()
    e('s_cmp_ge_u32 %s, 234' % s(sL2))
    e('s_cbranch_scc1 C_DONE')
    e('s_barrier')
    e('s_cmp_eq_u32 %s, 0' % s(sWv))
    e('s_cbranch_scc0 C_NOPOLL')
    pv = acc[0]['Ka']; pa = acc[0]['Kb']
    e('s_mul_i32 %s, %s, 80' % (s(sT0), s(sMb)))
    e('s_add_u32 %s, %s, 79' % (s(sT1), s(sT0)))
    e('s_lshr_b32 %s, %s, 7' % (s(sT0), s(sT0)))
    e('s_lshr_b32 %s, %s, 7' % (s(sT1), s(sT1)))
    e('s_min_u32 %s, %s, 15' % (s(sT1), s(sT1)))
    e('s_sub_u32 %s, %s, %s' % (s(sT1), s(sT1), s(sT0)))
    e('s_lshl_b32 %s, %s, 11' % (s(sT0), s(sT0)))
    e('s_lshl_b32 %s, %s, 11' % (s(sT1), s(sT1)))
    e('v_and_b32 %s, 15, %s' % (v(pa), v(vLane)))
    e('v_lshlrev_b32 %s, 7, %s' % (v(pa), v(pa)))
    e('v_bfe_u32 %s, %s, 4, 1' % (v(pa + 1), v(vLane)))
    e('v_mad_u32_u24 %s, %s, %s, %s' % (v(pa), v(pa + 1), s(sT1), v(pa)))
    e('v_lshrrev_b32 %s, 5, %s' % (v(pa + 1), v(vLane)))
    e('v_lshl_add_u32 %s, %s, 4, %s' % (v(pa), v(pa + 1), v(pa)))
    e('s_mov_b32 %s, 0' % s(sSpin))
    A.label('C_POLL')
    e('buffer_load_dwordx4 %s, %s, %s, %s offen sc1' % (v(pv, 4), v(pa), s(SF, 4), s(sT0)))
    e('s_waitcnt vmcnt(0)')
    e('v_xor_b32 %s, %s, %s' % (v(pv), s(sNlo), v(pv)))
    e('v_xor_b32 %s, %s, %s' % (v(pv + 1), s(sNhi), v(pv + 1)))
    e('v_xor_b32 %s, %s, %s' % (v(pv + 2), s(sNlo), v(pv + 2)))
    e('v_xor_b32 %s, %s, %s' % (v(pv + 3), s(sNhi), v(pv + 3)))
    e('v_or3_b32 %s, %s, %s, %s' % (v(pv), v(pv), v(pv + 1), v(pv + 2)))
    e('v_or_b32 %s, %s, %s' % (v(pv), v(pv), v(pv + 3)))
    e('v_cmp_ne_u32 vcc, 0, %s' % v(pv))
    e('s_add_u32 %s, %s, 1' % (s(sSpin), s(sSpin)))
    e('s_cbranch_vccz C_NOPOLL')
    e('s_cmp_lt_u32 %s, 100000' % s(sSpin))
    e('s_cbranch_scc1 C_POLL')
    A.label('C_NOPOLL')
    e('s_mul_i32 %s, %s, %d' % (s(sOb), s(sMb), 5 * 36864))
    e('s_lshl_b32 %s, %s, 10' % (s(sLd), s(sWv)))
    e('s_add_u32 %s, %s, %s' % (s(sOb), s(sOb), s(sLd)))
    e('s_mov_b32 %s, %s' % (s(sCh), s(sRot2)))
    e('s_mov_b32 %s, 0' % s(sCnt))
    ST.mark()
    e('s_barrier')
    ST.mark()
    A.label('C_OL')
    e('s_cmp_lt_u32 %s, 3' % s(sCnt))
    e('s_cbranch_scc1 C_OI')
    e('s_waitcnt vmcnt(10)')
    e('s_barrier')
    A.label('C_OI')
    e('s_lshl_b32 %s, %s, 12' % (s(sT0), s(sCh)))
    e('s_add_u32 %s, %s, %s' % (s(sT0), s(sT0), s(sOb)))
    for t in range(5):
        e('s_add_u32 %s, %s, %d' % (s(sT1), s(sT0), 36864 * t))
        e('s_add_u32 m0, %s, %d' % (s(sLd), 4096 * t))
        e('buffer_load_dwordx4 %s, %s, %s offen sc1 lds' % (v(vStM), s(SO, 4), s(sT1)))
    e('s_add_u32 %s, %s, 1' % (s(sCh), s(sCh)))
    e('s_cmp_eq_u32 %s, 9' % s(sCh))
    e('s_cselect_b32 %s, 0, %s' % (s(sCh), s(sCh)))
    e('s_add_u32 %s, %s, 20480' % (s(sLd), s(sLd)))
    e('s_cmp_eq_u32 %s, 7' % s(sCnt))
    e('s_cselect_b32 %s, %d, 0' % (s(sT0), 8 * 20480))
    e('s_sub_u32 %s, %s, %s' % (s(sLd), s(sLd), s(sT0)))
    e('s_add_u32 %s, %s, 1' % (s(sCnt), s(sCnt)))
    e('s_cmp_lt_u32 %s, 9' % s(sCnt))
    e('s_cbranch_scc1 C_OL')
    for n in (10, 5, 0):
        e('s_waitcnt vmcnt(%d)' % n)
        e('s_barrier')
    A.label('C_DONE')
    ST.finish(SD, pWs, vT[0])
    A.label('K_END')
    e('s_endpgm')

def desc(label, vg=256):
    return '''.amdhsa_kernel %s
  .amdhsa_next_free_vgpr %d
  .amdhsa_next_free_sgpr 102
  .amdhsa_accum_offset %d
  .amdhsa_group_segment_fixed_size 0
  .amdhsa_kernarg_size 80
  .amdhsa_user_sgpr_count 2
  .amdhsa_user_sgpr_kernarg_segment_ptr 1
  .amdhsa_system_sgpr_workgroup_id_x 1
.end_amdhsa_kernel
''' % (label, vg, vg)

def main(path):
    A = Asm(); lab = NAME + '_kernel'
    kernel(A, lab)
    hdr = '; @launch grid=(256,1,1) block=(512,1,1) lds=%d\n' % LDS
    hdr += '.amdgcn_target "amdgcn-amd-amdhsa--gfx950"\n.text\n'
    txt = hdr + A.text() + '.section .rodata,"a"\n.p2align 6\n' + desc(lab)
    open(path, 'w').write(txt)
    print('instrs', A.nins)

if __name__ == '__main__':
    for a in sys.argv[2:]:
        if '=' in a:
            k, val = a.split('='); OPT[k] = int(val)
        else: OPT[a] = True
    main(sys.argv[1] if len(sys.argv) > 1 else 'g2.s')
```

```python
import sys, math, struct, os
sys.path.insert(0, 'gen')
from asmlib import *

NAME = 'gated_mix__sliding_local_dilated__sliding_local_dilated__prompt'
OOB = 0x40000000
def f32(x): return '0x%08x' % struct.unpack('<I', struct.pack('<f', x))[0]
def lanemask(fn):
    m = 0
    for l in range(64):
        if fn(l): m |= 1 << l
    return m
def setmask(A, sr, fn):
    m = lanemask(fn)
    lo, hi = m & 0xffffffff, m >> 32
    A.e('s_mov_b32 %s, 0x%08x' % (s(sr), lo))
    A.e('s_mov_b32 %s, 0x%08x' % (s(sr + 1), hi))
def mksrd(A, sr, src, nbytes):
    A.e('s_mov_b32 %s, %s' % (s(sr), s(src)))
    A.e('s_and_b32 %s, %s, 0xffff' % (s(sr + 1), s(src + 1)))
    A.e('s_mov_b32 %s, %d' % (s(sr + 2), nbytes))
    A.e('s_mov_b32 %s, 0x00020000' % s(sr + 3))

OP_BYTES = 128 * 36864
S = 46080; WOFF = 18432
WO0 = 138240
GB = WO0 + 16384
LDS = 163840
NT = 6
CHB = 4096 * NT
MODEW = GB + 4672
NONCE = 192
SPIN = int(os.environ.get('SPIN', 200000))
FLAG_OFF = 12 << 20
GOFF = 5 << 20
STAMP_OFF = 16 << 20

OPT = {'stamp': False}

class Stamper:
    def __init__(self, A, vreg, sreg, slane):
        self.A = A; self.v = vreg; self.s = sreg; self.sl = slane
    def start(self):
        if not OPT['stamp']: return
        e = self.A.e
        e('v_mov_b32 %s, 0' % v(self.v))
        e('s_memrealtime %s' % s(self.s, 2)); e('s_waitcnt lgkmcnt(0)')
        e('v_writelane_b32 %s, %s, 63' % (v(self.v), s(self.s)))
        e('s_mov_b32 %s, 0' % s(self.sl))
        self.mark()
    def mark(self):
        if not OPT['stamp']: return
        e = self.A.e
        e('s_memtime %s' % s(self.s, 2)); e('s_waitcnt lgkmcnt(0)')
        e('s_mov_b32 m0, %s' % s(self.sl))
        e('v_writelane_b32 %s, %s, m0' % (v(self.v), s(self.s)))
        e('s_add_u32 %s, %s, 1' % (s(self.sl), s(self.sl)))
    def finish(self, srdreg, wsreg, vtmp, wait=True):
        if not OPT['stamp']: return
        e = self.A.e
        if wait: e('s_waitcnt vmcnt(0)')
        self.mark()
        e('s_memrealtime %s' % s(self.s, 2)); e('s_waitcnt lgkmcnt(0)')
        e('v_writelane_b32 %s, %s, 62' % (v(self.v), s(self.s)))
        mksrd(self.A, srdreg, wsreg, 64 << 20)
        e('s_lshl_b32 %s, s2, 11' % s(self.s))
        e('s_add_u32 %s, %s, %d' % (s(self.s), s(self.s), STAMP_OFF))
        e('v_lshlrev_b32 %s, 2, v0' % v(vtmp))
        e('buffer_store_dword %s, %s, %s, %s offen' % (v(self.v), v(vtmp), s(srdreg, 4), s(self.s)))

class DbgStamper:
    def __init__(self, A, vreg, sreg, slane):
        self.A = A; self.v = vreg; self.s = sreg; self.k = 0; self.base = 2
    def srd(self):
        mksrd(self.A, 100 - 8, 24, 256)
    def put(self, idx, inv=False):
        e = self.A.e
        e('s_and_b32 %s, s34, 3' % s(self.s))
        e('s_cbranch_scc1 DBG_%d' % idx)
        e('s_bfe_u32 %s, s2, 0x30003' % s(self.s))
        e('s_cmp_eq_u32 %s, 5' % s(self.s))
        e('s_cbranch_scc0 DBG_%d' % idx)
        e('s_memrealtime %s' % s(self.s, 2)); e('s_waitcnt lgkmcnt(0)')
        if inv: e('s_not_b32 %s, %s' % (s(self.s), s(self.s)))
        e('v_mov_b32 %s, %s' % (v(self.v), s(self.s)))
        e('v_mov_b32 %s, 0' % v(self.v - 1))
        mksrd(self.A, 4, 24, 256)
        e('s_mov_b64 exec, 1')
        e('buffer_atomic_umax %s, %s, %s, 0 offen offset:%d sc1' % (v(self.v), v(self.v - 1), s(4, 4), 4 * idx))
        e('s_mov_b64 exec, -1')
        self.A.label('DBG_%d' % idx)
    def start(self):
        self.k = 0
        self.base = 2 if self.base == 9 else 9
        self.put(self.base, True)
        self.sel = {9: (1, 3, 6, 7), 2: (2, 3, 4, 5, 7)}[self.base]
        self.n = 0
    def mark(self):
        if self.k in self.sel:
            self.n += 1
            self.put(self.base + self.n)
        self.k += 1
    def finish(self, srdreg, wsreg, vtmp):
        self.A.e('s_waitcnt vmcnt(0)')
        self.put(self.base + len(self.sel) + 1)

class LQ:
    def __init__(self, A): self.A = A; self.q = []
    def rd(self, text, dst, n):
        self.A.e(text); self.q.append(set(range(dst, dst + n)))
    def need(self, *rs):
        regs = set()
        for r, n in rs: regs |= set(range(r, r + n))
        last = -1
        for i, d in enumerate(self.q):
            if d & regs: last = i
        if last < 0: return
        cnt = len(self.q) - 1 - last
        cnt = min(cnt, 15)
        self.A.e('s_waitcnt lgkmcnt(%d)' % cnt)
        self.q = self.q[len(self.q) - cnt:] if cnt else []
    def drain(self):
        self.A.e('s_waitcnt lgkmcnt(0)'); self.q = []

def kernel(A, label):
    e = A.e
    pX, pWA, pWoA, pWB, pWoB, pG, pOut, pDbg, pWs = 8, 10, 12, 16, 18, 20, 22, 24, 26
    sXcd, sIdx, sRb, sHgb, sHg, sBr, sWv, sRot, sT0, sT1, sT2, sT3 = range(28, 40)
    sL2, sMb, sNb, sRot2 = range(40, 44)
    SA, SB, SC, SD = 44, 48, 52, 56
    sM = 60
    sx = 62
    ST = Stamper(A, 255, 96, 98) if not OPT.get('dbg') else DbgStamper(A, 255, 96, 98)
    A.raw('.globl %s' % label); A.raw('.p2align 8'); A.raw('.type %s,@function' % label); A.raw(label + ':')
    e('s_cmp_ge_u32 s2, 256')
    e('s_cbranch_scc1 K_END')
    e('s_load_dwordx16 s[8:23], s[0:1], 0')
    e('s_load_dwordx4 s[24:27], s[0:1], 64')
    e('v_lshrrev_b32 v2, 6, v0')
    e('v_and_b32 v1, 63, v0')
    e('v_readfirstlane_b32 %s, v2' % s(sWv))
    vLane = 1
    if OPT.get('perm'):
        e('s_bfe_u32 %s, s2, 0x%x' % (s(sT0), (OPT['perm'] << 16) | 3))
        e('s_xor_b32 s2, s2, %s' % s(sT0))
    e('s_and_b32 %s, s2, 7' % s(sXcd))
    e('s_lshr_b32 %s, s2, 3' % s(sIdx))
    e('s_and_b32 %s, %s, 1' % (s(sT0), s(sIdx)))
    e('s_lshl1_add_u32 %s, %s, %s' % (s(sRb), s(sXcd), s(sT0)))
    e('s_lshr_b32 %s, %s, 1' % (s(sHgb), s(sIdx)))
    e('s_add_u32 %s, %s, %s' % (s(sRot), s(sXcd), s(sHgb)))
    e('s_mul_i32 %s, %s, 57' % (s(sT0), s(sRot)))
    e('s_lshr_b32 %s, %s, 9' % (s(sT0), s(sT0)))
    e('s_mul_i32 %s, %s, 9' % (s(sT0), s(sT0)))
    e('s_sub_u32 %s, %s, %s' % (s(sRot), s(sRot), s(sT0)))
    e('s_and_b32 %s, %s, 7' % (s(sHg), s(sHgb)))
    e('s_lshr_b32 %s, %s, 3' % (s(sBr), s(sHgb)))
    e('s_cmp_lt_u32 %s, 4' % s(sWv))
    e('s_cbranch_scc1 C_START')

    def phase2_ids():
        e('s_mul_i32 %s, %s, 57' % (s(sL2), s(sIdx)))
        e('s_lshr_b32 %s, %s, 9' % (s(sL2), s(sL2)))
        e('s_mul_i32 %s, %s, 9' % (s(sT0), s(sL2)))
        e('s_sub_u32 %s, %s, %s' % (s(sNb), s(sIdx), s(sT0)))
        e('s_mul_i32 %s, %s, 5' % (s(sT0), s(sL2)))
        e('s_lshl4_add_u32 %s, %s, %s' % (s(sMb), s(sXcd), s(sT0)))
        e('s_mul_i32 %s, %s, 3' % (s(sT0), s(sL2)))
        e('s_add_u32 %s, %s, %s' % (s(sRot2), s(sT0), s(sNb)))
        e('s_add_u32 %s, %s, %s' % (s(sRot2), s(sRot2), s(sXcd)))
        e('s_mul_i32 %s, %s, 57' % (s(sT0), s(sRot2)))
        e('s_lshr_b32 %s, %s, 9' % (s(sT0), s(sT0)))
        e('s_mul_i32 %s, %s, 9' % (s(sT0), s(sT0)))
        e('s_sub_u32 %s, %s, %s' % (s(sRot2), s(sRot2), s(sT0)))
    def xcc_ids(sLf, sOk):
        e('s_getreg_b32 %s, hwreg(HW_REG_XCC_ID, 0, 4)' % s(sLf))
        e('s_cmp_lt_u32 %s, 8' % s(sLf))
        e('s_cselect_b32 %s, 1, 0' % s(sOk))
        e('s_min_u32 %s, %s, 8' % (s(sLf), s(sLf)))
        e('s_lshl_b32 %s, %s, 15' % (s(sLf), s(sLf)))
        e('s_add_u32 %s, %s, 32768' % (s(sLf), s(sLf)))
    def flag_srd(sr):
        e('s_add_u32 %s, %s, %d' % (s(sT0), s(pWs), FLAG_OFF))
        e('s_addc_u32 %s, %s, 0' % (s(sT1), s(pWs + 1)))
        mksrd(A, sr, sT0, 10 * 32768)

    sJ, sKc, sXr0, sXrow, sWrow, sRing, sCnt, sLx, sLw, sSo, sEx, sCh, sPos, sStep, sWm, sWr = range(sx, sx + 16)
    sEx = sx + 16
    R = RegAlloc(2, 254)
    vT = [R.alloc() for _ in range(4)]
    vDX, vDXh, vDW, vDM, vDR, vDC = [R.alloc() for _ in range(6)]
    sLf, sOk, sMode = range(sx + 18, sx + 21)
    vLN = 100; vLZ = 104; vSn = 106
    ST.start()
    e('s_sub_u32 %s, %s, 4' % (s(sJ), s(sWv)))
    e('s_and_b32 %s, %s, 1' % (s(sT0), s(sJ)))
    e('s_lshl_b32 %s, %s, 2' % (s(sT0), s(sT0)))
    e('v_lshrrev_b32 %s, 4, %s' % (v(vT[0]), v(vLane)))
    e('v_add_u32 %s, %s, %s' % (v(vT[0]), s(sT0), v(vT[0])))
    e('v_and_b32 %s, 7, %s' % (v(vT[1]), v(vLane)))
    e('v_xor_b32 %s, %s, %s' % (v(vT[0]), v(vT[0]), v(vT[1])))
    e('v_lshlrev_b32 %s, 4, %s' % (v(vT[0]), v(vT[0])))
    e('v_lshrrev_b32 %s, 3, %s' % (v(vT[1]), v(vLane)))
    e('s_movk_i32 %s, 1152' % s(sT1))
    e('v_mad_u32_u24 %s, %s, %s, %s' % (v(vDX), v(vT[1]), s(sT1), v(vT[0])))
    e('s_lshl_b32 %s, %s, 7' % (s(sT0), s(sRb)))
    e('s_lshl3_add_u32 %s, %s, %s' % (s(sT0), s(sJ), s(sT0)))
    e('s_sub_u32 %s, %s, 16' % (s(sT0), s(sT0)))
    e('s_mul_i32 %s, %s, 1152' % (s(sXrow), s(sT0)))
    e('s_max_i32 %s, %s, 0' % (s(sXr0), s(sXrow)))
    e('s_cmp_lt_i32 %s, 0' % s(sT0))
    e('s_cselect_b64 %s, -1, 0' % s(sM, 2))
    e('v_cndmask_b32 %s, %s, %s, %s' % (v(vDXh), v(vDX), v(vT[0]), s(sM, 2)))
    e('v_subrev_u32 %s, 27, %s' % (v(vT[0]), v(vLane)))
    e('v_cmp_lt_u32 vcc, 26, %s' % v(vLane))
    e('v_cndmask_b32 %s, %s, %s, vcc' % (v(vT[0]), v(vLane), v(vT[0])))
    e('v_mov_b32 %s, %d' % (v(vT[2]), 4 * 3456))
    e('v_cndmask_b32 %s, 0, %s, vcc' % (v(vT[2]), v(vT[2])))
    e('v_mul_u32_u24 %s, 57, %s' % (v(vT[1]), v(vT[0])))
    e('v_lshrrev_b32 %s, 9, %s' % (v(vT[1]), v(vT[1])))
    e('v_mul_u32_u24 %s, 1008, %s' % (v(vT[1]), v(vT[1])))
    e('v_lshl_add_u32 %s, %s, 4, %s' % (v(vT[1]), v(vT[0]), v(vT[1])))
    e('s_mul_i32 %s, %s, 144' % (s(sT0), s(sHg)))
    e('v_add3_u32 %s, %s, %s, %s' % (v(vDW), v(vT[1]), v(vT[2]), s(sT0)))
    e('s_mul_i32 %s, %s, 3456' % (s(sWrow), s(sJ)))
    e('s_lshl_b32 %s, %s, 10' % (s(sLx), s(sJ)))
    e('s_mul_i32 %s, %s, 864' % (s(sLw), s(sJ)))
    e('s_add_u32 %s, %s, %d' % (s(sLw), s(sLw), WOFF))
    setmask(A, sEx, lambda l: l < 54)
    e('s_mov_b32 %s, %s' % (s(sKc), s(sRot)))
    e('s_mov_b32 %s, 0' % s(sRing))
    e('s_mov_b32 %s, 0' % s(sCnt))
    e('s_waitcnt lgkmcnt(0)')
    mksrd(A, SA, pX, 2048 * 1152)
    e('s_cmp_eq_u32 %s, 0' % s(sBr))
    e('s_cselect_b32 %s, %s, %s' % (s(sT0), s(pWA), s(pWB)))
    e('s_cselect_b32 %s, %s, %s' % (s(sT1), s(pWA + 1), s(pWB + 1)))
    mksrd(A, SB, sT0, 576 * 3456)
    ST.mark()
    A.label('L_LOOP')
    e('s_cmp_lt_u32 %s, 2' % s(sCnt))
    e('s_cbranch_scc1 L_ISSUE')
    e('s_waitcnt vmcnt(12)')
    e('s_barrier')
    A.label('L_ISSUE')
    if OPT.get('nodma'): e('s_branch L_SKIP')
    e('s_lshl_b32 %s, %s, 7' % (s(sT0), s(sKc)))
    e('s_add_u32 %s, %s, %s' % (s(sT1), s(sRing), s(sLx)))
    for q in range(5):
        if q == 4:
            e('s_cmp_ge_u32 %s, 2' % s(sJ))
            e('s_cbranch_scc1 L_NOX4')
        if q == 0:
            e('s_add_u32 %s, %s, %s' % (s(sSo), s(sXr0), s(sT0)))
            e('s_mov_b32 m0, %s' % s(sT1))
            e('buffer_load_dwordx4 %s, %s, %s offen lds' % (v(vDXh), s(SA, 4), s(sSo)))
            e('s_add_u32 %s, %s, %s' % (s(sT0), s(sXrow), s(sT0)))
        else:
            e('s_add_u32 %s, %s, %d' % (s(sSo), s(sT0), 32 * 1152 * q))
            e('s_add_u32 m0, %s, %d' % (s(sT1), 4096 * q))
            e('buffer_load_dwordx4 %s, %s, %s offen lds' % (v(vDX), s(SA, 4), s(sSo)))
    A.label('L_NOX4')
    e('s_mul_i32 %s, %s, %d' % (s(sT0), s(sKc), 64 * 3456))
    e('s_add_u32 %s, %s, %s' % (s(sT0), s(sT0), s(sWrow)))
    e('s_add_u32 %s, %s, %s' % (s(sT1), s(sRing), s(sLw)))
    e('s_mov_b64 exec, %s' % s(sEx, 2))
    for q in range(8):
        e('s_add_u32 %s, %s, %d' % (s(sSo), s(sT0), 8 * 3456 * q))
        e('s_add_u32 m0, %s, %d' % (s(sT1), 3456 * q))
        e('buffer_load_dwordx4 %s, %s, %s offen lds' % (v(vDW), s(SB, 4), s(sSo)))
    e('s_mov_b64 exec, -1')
    A.label('L_SKIP')
    e('s_lshl_b32 %s, %s, 4' % (s(sT0), s(sJ)))
    e('s_or_b32 %s, %s, %s' % (s(sT0), s(sT0), s(sCnt)))
    e('s_cmp_eq_u32 %s, %d' % (s(sT0), OPT.get('nld', 4)))
    e('s_cbranch_scc0 L_NN1')
    mksrd(A, SD, pDbg, 256)
    e('v_mov_b32 %s, 0' % v(vLZ))
    e('buffer_load_dwordx2 %s, %s, %s, 0 offen offset:%d sc1' % (v(vLN + 2, 2), v(vLZ), s(SD, 4), NONCE))
    A.label('L_NN1')
    e('s_cmp_eq_u32 %s, %d' % (s(sT0), OPT.get('nld', 4) + 2))
    e('s_cbranch_scc0 L_NN2')
    flag_srd(SC)
    xcc_ids(sLf, sOk)
    e('s_lshl4_add_u32 %s, %s, %s' % (s(sT0), s(sRb), s(sHgb)))
    e('s_lshl_b32 %s, %s, 7' % (s(sT0), s(sT0)))
    e('s_add_u32 %s, %s, %s' % (s(sT0), s(sT0), s(sLf)))
    e('v_mov_b32 %s, 0' % v(vLZ))
    e('s_mov_b64 exec, 1')
    e('buffer_store_dwordx2 %s, %s, %s, %s offen offset:32' % (v(vLN + 2, 2), v(vLZ), s(SC, 4), s(sT0)))
    e('s_mov_b64 exec, -1')
    A.label('L_NN2')
    e('s_add_u32 %s, %s, 1' % (s(sKc), s(sKc)))
    e('s_cmp_eq_u32 %s, 9' % s(sKc))
    e('s_cselect_b32 %s, 0, %s' % (s(sKc), s(sKc)))
    e('s_add_u32 %s, %s, %d' % (s(sRing), s(sRing), S))
    e('s_cmp_eq_u32 %s, %d' % (s(sRing), 3 * S))
    e('s_cselect_b32 %s, 0, %s' % (s(sRing), s(sRing)))
    e('s_add_u32 %s, %s, 1' % (s(sCnt), s(sCnt)))
    e('s_cmp_lt_u32 %s, 9' % s(sCnt))
    e('s_cbranch_scc1 L_LOOP')
    ST.mark()
    def snapshot(lab):
        e('s_cmp_eq_u32 %s, 0' % s(sJ))
        e('s_cbranch_scc0 ' + lab)
        flag_srd(SC)
        xcc_ids(sLf, sOk)
        e('s_lshl_b32 %s, %s, 12' % (s(sT0), s(sXcd)))
        e('s_add_u32 %s, %s, %s' % (s(sT0), s(sT0), s(sLf)))
        e('v_and_b32 %s, 31, %s' % (v(vLZ), v(vLane)))
        e('v_lshlrev_b32 %s, 7, %s' % (v(vLZ), v(vLZ)))
        e('buffer_load_dwordx2 %s, %s, %s, %s offen offset:32 sc1' % (v(vSn, 2), v(vLZ), s(SC, 4), s(sT0)))
        A.label(lab)
    def put_mode(lab):
        e('s_cmp_eq_u32 %s, 0' % s(sJ))
        e('s_cbranch_scc0 ' + lab)
        e('v_xor_b32 %s, %s, %s' % (v(vSn), v(vSn), v(vLN + 2)))
        e('v_xor_b32 %s, %s, %s' % (v(vSn + 1), v(vSn + 1), v(vLN + 3)))
        e('v_or_b32 %s, %s, %s' % (v(vSn), v(vSn), v(vSn + 1)))
        e('v_cmp_ne_u32 vcc, 0, %s' % v(vSn))
        e('v_and_b32 %s, %s, %s' % (v(vLN), s(sOk), v(vLN + 2)))
        e('s_cmp_eq_u64 vcc, 0')
        e('s_cselect_b32 %s, 1, 0' % s(sMode))
        if OPT.get('noloc'):
            e('s_bfe_u32 %s, %s, 0x%x' % (s(sT0), s(sIdx), 0x10000 | (OPT['noloc'] - 1)))
            e('s_and_b32 %s, %s, %s' % (s(sMode), s(sMode), s(sT0)))
        e('v_and_b32 %s, %s, %s' % (v(vLN), s(sMode), v(vLN)))
        e('v_mov_b32 %s, %d' % (v(vLZ), MODEW))
        e('ds_write_b128 %s, %s' % (v(vLZ), v(vLN, 4)))
        e('s_waitcnt lgkmcnt(0)')
        A.label(lab)
    phase2_ids()
    e('s_cmp_ge_u32 %s, 3' % s(sL2))
    e('s_cbranch_scc1 L_NOP2')
    mksrd(A, SA, pWoA, 576 * 1152)
    mksrd(A, SB, pWoB, 576 * 1152)
    q_, col = vT[0], vT[1]
    e('v_lshrrev_b32 %s, 3, %s' % (v(q_), v(vLane)))
    e('v_bfe_u32 %s, %s, 1, 2' % (v(vT[2]), v(vLane)))
    e('v_lshrrev_b32 %s, 4, %s' % (v(vT[3]), v(vLane)))
    e('v_xor_b32 %s, %s, %s' % (v(vT[2]), v(vT[2]), v(vT[3])))
    e('v_and_b32 %s, 1, %s' % (v(vT[3]), v(vLane)))
    e('v_lshl_add_u32 %s, %s, 1, %s' % (v(col), v(vT[2]), v(vT[3])))
    e('v_lshlrev_b32 %s, 4, %s' % (v(col), v(col)))
    e('s_lshl_b32 %s, %s, 7' % (s(sT0), s(sNb)))
    e('v_add_u32 %s, %s, %s' % (v(col), s(sT0), v(col)))
    e('s_movk_i32 %s, 1152' % s(sT1))
    e('v_mad_u32_u24 %s, %s, %s, %s' % (v(vDM), v(q_), s(sT1), v(col)))
    e('v_lshrrev_b32 %s, 2, %s' % (v(vT[2]), v(q_)))
    e('v_mul_u32_u24 %s, 68, %s' % (v(vT[2]), v(vT[2])))
    e('v_add_u32 %s, %s, %s' % (v(vT[2]), v(vT[2]), v(q_)))
    e('v_mad_u32_u24 %s, %s, %s, %s' % (v(vDR), v(vT[2]), s(sT1), v(col)))
    e('s_and_b32 %s, %s, 1' % (s(sT0), s(sJ)))
    e('s_lshr_b32 %s, %s, 1' % (s(sT2), s(sJ)))
    e('s_mul_i32 %s, %s, 20' % (s(sWm), s(sT0)))
    e('s_lshl3_add_u32 %s, %s, %s' % (s(sWm), s(sT2), s(sWm)))
    e('s_sub_u32 %s, %s, 72' % (s(sWm), s(sWm)))
    e('s_mul_i32 %s, %s, 1152' % (s(sWm), s(sWm)))
    e('s_mul_i32 %s, %s, 36' % (s(sWr), s(sT0)))
    e('s_mul_i32 %s, %s, 144' % (s(sT2), s(sT2)))
    e('s_add_u32 %s, %s, %s' % (s(sWr), s(sWr), s(sT2)))
    e('s_add_u32 %s, %s, 16' % (s(sWr), s(sWr)))
    e('s_mul_i32 %s, %s, 1152' % (s(sWr), s(sWr)))
    e('s_mov_b32 %s, %s' % (s(sCh), s(sRot2)))
    e('s_add_u32 %s, %s, %d' % (s(sPos), s(sLx), WO0))
    e('s_mov_b32 %s, 0' % s(sCnt))
    snapshot('L_WO')
    e('s_cmp_eq_u32 %s, 1' % s(sCnt))
    e('s_cbranch_scc0 L_G1')
    e('s_waitcnt vmcnt(16)')
    e('s_barrier')
    A.label('L_G1')
    e('s_cmp_eq_u32 %s, 3' % s(sCnt))
    e('s_cbranch_scc0 L_G2')
    e('s_waitcnt vmcnt(12)')
    e('s_barrier')
    A.label('L_G2')
    e('s_cmp_eq_u32 %s, 6' % s(sCnt))
    e('s_cbranch_scc0 L_G3')
    put_mode('L_G3B')
    e('s_barrier')
    A.label('L_G3')
    e('s_mul_i32 %s, %s, %d' % (s(sT0), s(sCh), 72 * 1152))
    e('s_add_u32 %s, %s, %s' % (s(sT0), s(sT0), s(sWm)))
    e('s_cmp_eq_u32 %s, 0' % s(sCh))
    e('s_cselect_b32 %s, %s, %s' % (s(sT0), s(sWr), s(sT0)))
    e('s_cselect_b64 %s, -1, 0' % s(sM, 2))
    e('s_mov_b32 %s, %d' % (s(sStep), 36 * 1152))
    e('s_cselect_b32 %s, %d, %s' % (s(sStep), 288 * 1152, s(sStep)))
    e('v_cndmask_b32 %s, %s, %s, %s' % (v(vDC), v(vDM), v(vDR), s(sM, 2)))
    e('s_add_u32 %s, %s, %s' % (s(sT1), s(sT0), s(sStep)))
    for k2 in range(4):
        e('s_add_u32 m0, %s, %d' % (s(sPos), 4096 * k2))
        e('buffer_load_dwordx4 %s, %s, %s offen lds' % (v(vDC), s(SA if k2 < 2 else SB, 4), s(sT0 if k2 % 2 == 0 else sT1)))
    e('s_add_u32 %s, %s, 1' % (s(sCh), s(sCh)))
    e('s_cmp_eq_u32 %s, 9' % s(sCh))
    e('s_cselect_b32 %s, 0, %s' % (s(sCh), s(sCh)))
    e('s_add_u32 %s, %s, 16384' % (s(sPos), s(sPos)))
    e('s_cmp_eq_u32 %s, 0' % s(sCnt))
    e('s_cselect_b32 %s, %s, %s' % (s(sPos), s(sLx), s(sPos)))
    e('s_add_u32 %s, %s, 1' % (s(sCnt), s(sCnt)))
    e('s_cmp_lt_u32 %s, 9' % s(sCnt))
    e('s_cbranch_scc1 L_WO')
    ST.mark()
    sCp, sKh, sSt = sx + 3, sx + 1, sx + 2
    e('s_and_b32 %s, %s, 1' % (s(sT0), s(sJ)))
    e('s_lshr_b32 %s, %s, 1' % (s(sKh), s(sJ)))
    e('s_mov_b32 %s, %s' % (s(sCp), s(sT0)))
    vOa = [vDX, vDXh, vDW]; vSt = vDM; vXa = vDR
    acc2 = [[R.alloc(4) for c2 in range(2)] for t in range(NT)]
    Of = [[R.alloc(4) for t in range(NT)] for b in range(2)]
    vWa = [Of[1][4] + k for k in range(3)]; vWb = [Of[1][5] + k for k in range(3)]
    Wr = [[[R.alloc(4) for c2 in range(2)] for kb in range(2)] for i in range(9)]
    g, r4, c4 = vT[0], vT[1], vT[2]
    e('v_lshrrev_b32 %s, 4, %s' % (v(g), v(vLane)))
    e('v_bfe_u32 %s, %s, 2, 2' % (v(r4), v(vLane)))
    e('v_and_b32 %s, 3, %s' % (v(c4), v(vLane)))
    t3, t4_ = vT[3], vDC
    e('v_lshrrev_b32 %s, 1, %s' % (v(t3), v(g)))
    e('v_lshlrev_b32 %s, 4, %s' % (v(t3), v(t3)))
    e('v_and_b32 %s, 1, %s' % (v(t4_), v(g)))
    e('v_lshl_add_u32 %s, %s, 2, %s' % (v(t4_), v(t4_), v(r4)))
    e('v_add_u32 %s, %s, %s' % (v(t3), v(t3), v(t4_)))
    e('v_lshrrev_b32 %s, 1, %s' % (v(t4_), v(t4_)))
    e('s_lshl_b32 %s, %s, 1' % (s(sT0), s(sCp)))
    e('v_xor_b32 %s, %s, %s' % (v(t4_), s(sT0), v(t4_)))
    e('v_lshlrev_b32 %s, 5, %s' % (v(t4_), v(t4_)))
    e('v_lshl_add_u32 %s, %s, 7, %s' % (v(t3), v(t3), v(t4_)))
    e('v_lshl_add_u32 %s, %s, 3, %s' % (v(t3), v(c4), v(t3)))
    e('s_lshl_b32 %s, %s, 13' % (s(sT0), s(sKh)))
    e('v_add_u32 %s, %s, %s' % (v(vWa[0]), s(sT0), v(t3)))
    e('v_xor_b32 %s, 32, %s' % (v(vWb[0]), v(vWa[0])))
    for k in (1, 2):
        e('v_add_u32 %s, %d, %s' % (v(vWa[k]), 65536 * k, v(vWa[0])))
        e('v_add_u32 %s, %d, %s' % (v(vWb[k]), 65536 * k, v(vWb[0])))
    e('s_lshl_b32 %s, %s, 11' % (s(sT0), s(sKh)))
    e('v_lshlrev_b32 %s, 4, %s' % (v(t3), v(vLane)))
    e('v_add_u32 %s, %s, %s' % (v(vOa[0]), s(sT0), v(t3)))
    for k in (1, 2):
        e('v_add_u32 %s, %d, %s' % (v(vOa[k]), 61440 * k, v(vOa[0])))
    e('s_mul_i32 %s, %s, %d' % (s(sT0), s(sCp), CHB // 2))
    e('s_add_u32 %s, %s, %d' % (s(sT0), s(sT0), 3 * CHB))
    e('v_add_u32 %s, %s, %s' % (v(vXa), s(sT0), v(t3)))
    e('s_mul_i32 %s, %s, %d' % (s(sSt), s(sMb), 16 * 1152))
    e('s_lshl_b32 %s, %s, 7' % (s(sT0), s(sNb)))
    e('s_add_u32 %s, %s, %s' % (s(sSt), s(sSt), s(sT0)))
    e('s_lshl_b32 %s, %s, 6' % (s(sT0), s(sCp)))
    e('s_add_u32 %s, %s, %s' % (s(sSt), s(sSt), s(sT0)))
    e('v_and_b32 %s, 15, %s' % (v(t3), v(vLane)))
    e('v_mul_u32_u24 %s, 1152, %s' % (v(t3), v(t3)))
    e('v_and_b32 %s, 1, %s' % (v(t4_), v(g)))
    e('v_lshl_add_u32 %s, %s, 5, %s' % (v(t3), v(t4_), v(t3)))
    e('v_lshrrev_b32 %s, 1, %s' % (v(t4_), v(g)))
    e('v_lshl_add_u32 %s, %s, 4, %s' % (v(vSt), v(t4_), v(t3)))
    mksrd(A, SC, pOut, 2048 * 1152)
    for t in range(NT):
        for c2 in range(2):
            for k in range(4): e('v_mov_b32 %s, 0' % v(acc2[t][c2] + k))
    e('s_waitcnt vmcnt(0)')
    ST.mark()
    e('s_barrier')
    ST.mark()
    for i in range(9):
        pos = WO0 if i == 0 else 16384 * (i - 1)
        for kb in range(2):
            for c2 in range(2):
                for j2 in range(2):
                    off = pos + kb * 4096 + j2 * 1024
                    e('ds_read_b64_tr_b16 %s, %s offset:%d' % (v(Wr[i][kb][c2] + 2 * j2, 2), v((vWa, vWb)[c2][off >> 16]), off & 65535))
    e('s_waitcnt lgkmcnt(0)')
    ST.mark()
    e('s_barrier')
    ST.mark()
    Q = LQ(A)
    def oread(i, kb, t):
        off = CHB * (i % 6) + t * 4096 + kb * 1024
        k = off // 61440
        if OPT.get('p2nord'): return
        Q.rd('ds_read_b128 %s, %s offset:%d' % (v(Of[kb][t], 4), v(vOa[k]), off - 61440 * k), Of[kb][t], 4)
    def omf(i, kb, fills):
        for t in range(NT):
            Q.need((Of[kb][t], 4))
            for c2 in range(2):
                if not OPT.get('p2nomf'): e('v_mfma_f32_16x16x32_bf16 %s, %s, %s, %s' % (v(acc2[t][c2], 4), v(Wr[i][kb][c2], 4), v(Of[kb][t], 4), v(acc2[t][c2], 4)))
                if fills: fills.pop(0)()
        while fills: fills.pop(0)()
    e('s_barrier')
    for t in range(NT): oread(0, 0, t)
    for i in range(9):
        omf(i, 0, [lambda t=t: oread(i, 1, t) for t in range(NT)])
        if i < 8:
            fl = [lambda: None, lambda: (Q.drain(), e('s_barrier'))] + [lambda t=t: oread(i + 1, 0, t) for t in range(NT)]
        else: fl = []
        omf(i, 1, fl)
    ST.mark()
    def finish(own, other, lab):
        for t in other:
            for c2 in range(2):
                e('ds_write_b128 %s, %s offset:%d' % (v(vXa), v(acc2[t][c2], 4), (2 * t + c2) * 1024))
        e('s_waitcnt lgkmcnt(0)')
        e('s_barrier')
        tmp = Of[0]
        Q.q = []
        for n, t in enumerate(own):
            for c2 in range(2):
                Q.rd('ds_read_b128 %s, %s offset:%d' % (v(tmp[2 * n + c2], 4), v(vXa), (2 * t + c2) * 1024), tmp[2 * n + c2], 4)
        for n, t in enumerate(own):
            o = Of[1][1 + n]
            for c2 in range(2):
                Q.need((tmp[2 * n + c2], 4))
                for k in range(4):
                    e('v_add_f32 %s, %s, %s' % (v(acc2[t][c2] + k), v(acc2[t][c2] + k), v(tmp[2 * n + c2] + k)))
                e('v_cvt_pk_bf16_f32 %s, %s, %s' % (v(o + 2 * c2), v(acc2[t][c2]), v(acc2[t][c2] + 1)))
                e('v_cvt_pk_bf16_f32 %s, %s, %s' % (v(o + 2 * c2 + 1), v(acc2[t][c2] + 2), v(acc2[t][c2] + 3)))
            e('v_permlane16_swap_b32 %s, %s' % (v(o), v(o + 2)))
            e('v_permlane16_swap_b32 %s, %s' % (v(o + 1), v(o + 3)))
            if t == 0:
                e('s_cmp_lg_u32 %s, 0' % s(sL2))
                e('s_cbranch_scc1 L_DONE')
            e('s_add_u32 %s, %s, %d' % (s(sT0), s(sSt), t * 16 * 1152))
            e('buffer_store_dwordx4 %s, %s, %s, %s offen' % (v(o, 4), v(vSt), s(SC, 4), s(sT0)))
    e('s_cmp_eq_u32 %s, 0' % s(sKh))
    e('s_cbranch_scc0 L_FIN1')
    finish([1, 2, 0], [3, 4, 5], 'a')
    e('s_branch L_DONE')
    A.label('L_FIN1')
    A.barrier_hazards()
    finish([3, 4, 5], [0, 1, 2], 'b')
    A.label('L_DONE')
    ST.finish(SD, pWs, vT[0])
    e('s_endpgm')
    A.label('L_NOP2')
    snapshot('L_NP2A')
    e('s_waitcnt vmcnt(12)')
    e('s_barrier')
    e('s_waitcnt vmcnt(0)')
    put_mode('L_NP2B')
    e('s_barrier')
    e('s_endpgm')

    A.label('C_START')
    A.hist = []
    sRg, sP, sCnt, sRing, sDelta, sC, sGs, sSt0, sSr0, sNlo, sNhi, sSpin, sCh, sOb, sLd = range(sx, sx + 15)
    sMpar, sMc0, sMc1, sFirst = 78, 80, 82, 84
    sG = [86, 88, 90, 92]
    SO, SG_, SDb, SF = SA, SB, SC, SD
    R = RegAlloc(2, 254)
    vT = [R.alloc() for _ in range(6)]
    vAX = [R.alloc(), R.alloc()]
    vAW = R.alloc(); vAR = [R.alloc() for _ in range(4)]
    vFlag = R.alloc(); vC512 = R.alloc(); vDl = R.alloc()
    vSel = R.alloc(2); vN = R.alloc(2)
    vPP0, vPC0, vPP1, vPC1, vMG0, vNeg, vBp, vStM, vStR, vZ = [R.alloc() for _ in range(10)]
    names = ['Ka', 'Kb', 'Va', 'Vb', 'R', 'Qa', 'Qb']
    acc = [{n: R.alloc(4) for n in (names[:5] if t == 0 else names)} for t in range(5)]
    acc_lo = acc[0]['Ka']; acc_hi = acc[4]['Qb'] + 4
    Wf = {n: R.alloc(4) for n in names}
    Xf = [[R.alloc(4) for t in range(5)] for b in range(2)]
    buf_lo = Wf['Ka']
    ST.start()
    e('s_and_b32 %s, %s, 1' % (s(sRg), s(sWv)))
    e('s_lshr_b32 %s, %s, 1' % (s(sP), s(sWv)))
    e('v_lshlrev_b32 %s, 3, v0' % v(vT[5]))
    e('v_mov_b32 %s, 0' % v(vZ))
    e('s_waitcnt lgkmcnt(0)')
    mksrd(A, SG_, pG, 1152)
    vG = Xf[1][0]
    e('buffer_load_dwordx2 %s, %s, %s, 0 offen' % (v(vG, 2), v(vT[5]), s(SG_, 4)))
    mksrd(A, SDb, pDbg, 256)
    e('v_mov_b32 %s, 0' % v(vN))
    e('s_or_b32 %s, s2, %s' % (s(sT0), s(sWv)))
    e('s_cmp_eq_u32 %s, 0' % s(sT0))
    e('s_cbranch_scc0 C_NONONCE')
    e('s_memrealtime %s' % s(sM, 2))
    e('s_waitcnt lgkmcnt(0)')
    e('s_or_b32 %s, %s, 1' % (s(sM), s(sM)))
    e('v_mov_b32 %s, %s' % (v(vN), s(sM)))
    e('v_mov_b32 %s, %s' % (v(vN + 1), s(sM + 1)))
    e('buffer_store_dwordx2 %s, %s, %s, 0 offen offset:%d sc1' % (v(vN, 2), v(vZ), s(SDb, 4), NONCE))
    A.label('C_NONONCE')
    cLf, cOk, cMode = 4, 5, 6
    xcc_ids(cLf, cOk)
    mksrd(A, SO, pWs, GOFF + OP_BYTES)
    flag_srd(SF)
    i15, g, r4, c4 = vT[0], vT[1], vT[2], vT[3]
    e('v_and_b32 %s, 15, %s' % (v(i15), v(vLane)))
    e('v_lshrrev_b32 %s, 4, %s' % (v(g), v(vLane)))
    e('v_bfe_u32 %s, %s, 2, 2' % (v(r4), v(vLane)))
    e('v_and_b32 %s, 3, %s' % (v(c4), v(vLane)))
    e('v_lshrrev_b32 %s, 1, %s' % (v(vT[4]), v(i15)))
    e('v_xor_b32 %s, %s, %s' % (v(vT[4]), v(vT[4]), v(g)))
    e('v_lshlrev_b32 %s, 4, %s' % (v(vT[4]), v(vT[4])))
    e('v_lshl_add_u32 %s, %s, 7, %s' % (v(vT[4]), v(i15), v(vT[4])))
    e('s_lshl_b32 %s, %s, 13' % (s(sT0), s(sRg)))
    e('v_add_u32 %s, %s, %s' % (v(vAX[0]), s(sT0), v(vT[4])))
    e('v_xor_b32 %s, 64, %s' % (v(vAX[1]), v(vAX[0])))
    e('v_lshlrev_b32 %s, 3, %s' % (v(vT[4]), v(g)))
    e('v_lshl_add_u32 %s, %s, 1, %s' % (v(vT[4]), v(r4), v(vT[4])))
    e('v_mul_u32_u24 %s, 432, %s' % (v(vT[4]), v(vT[4])))
    e('s_mul_i32 %s, %s, 72' % (s(sT0), s(sP)))
    e('s_add_u32 %s, %s, %d' % (s(sT0), s(sT0), WOFF))
    e('v_add_u32 %s, %s, %s' % (v(vT[4]), s(sT0), v(vT[4])))
    e('v_lshl_add_u32 %s, %s, 3, %s' % (v(vAW), v(c4), v(vT[4])))
    setmask(A, sM, lambda l: (l & 3) == 1)
    e('v_mov_b32 %s, 32' % v(vT[5]))
    e('v_mov_b32 %s, %d' % (v(vDl), 320))
    e('v_cndmask_b32 %s, %s, %s, %s' % (v(vT[5]), v(vT[5]), v(vDl), s(sM, 2)))
    setmask(A, sM, lambda l: (l & 3) == 2)
    e('v_mov_b32 %s, %d' % (v(vDl), 176))
    e('v_cndmask_b32 %s, %s, %s, %s' % (v(vT[5]), v(vT[5]), v(vDl), s(sM, 2)))
    e('v_add_u32 %s, %s, %s' % (v(vT[4]), v(vT[4]), v(vT[5])))
    e('v_lshl_add_u32 %s, %s, 3, %s' % (v(vT[5]), v(g), v(r4)))
    e('v_lshlrev_b32 %s, 3, %s' % (v(vT[5]), v(vT[5])))
    setmask(A, sM, lambda l: (l & 3) == 3)
    for ks in range(2):
        for j2 in range(2):
            a = vAR[ks * 2 + j2]
            e('v_add_u32 %s, %d, %s' % (v(a), ks * 13824 + j2 * 432, v(vT[4])))
            e('v_add_u32 %s, %d, %s' % (v(vDl), GB + (32 * ks + 4 * j2) * 8, v(vT[5])))
            e('v_cndmask_b32 %s, %s, %s, %s' % (v(a), v(a), v(vDl), s(sM, 2)))
    e('v_cndmask_b32 %s, 1, 0, %s' % (v(vFlag), s(sM, 2)))
    e('v_mov_b32 %s, 512' % v(vDl))
    e('v_cndmask_b32 %s, 0, %s, %s' % (v(vC512), v(vDl), s(sM, 2)))
    lo, hi = vT[4], vT[5]
    e('v_mov_b32 %s, 0x3f80' % v(lo)); e('v_mov_b32 %s, 1.0' % v(hi))
    def sel2(dst, f_lo, f_hi):
        e('v_mov_b32 %s, 0' % v(dst))
        if f_lo:
            setmask(A, sM, f_lo); e('v_cndmask_b32 %s, %s, %s, %s' % (v(dst), v(dst), v(lo), s(sM, 2)))
        if f_hi:
            setmask(A, sM, f_hi); e('v_cndmask_b32 %s, %s, %s, %s' % (v(dst), v(dst), v(hi), s(sM, 2)))
    sel2(vSel, lambda l: ((l >> 4) == 1 and (l & 7) == 0) or ((l >> 4) == 2 and (l & 3) >= 2), lambda l: (l >> 4) == 1 and (l & 7) == 1)
    sel2(vSel + 1, lambda l: (l >> 4) == 1 and (l & 7) == 4, lambda l: (l >> 4) == 1 and (l & 7) == 5)
    setmask(A, sMpar, lambda l: l & 1)
    setmask(A, sMc0, lambda l: 4 * (l >> 4) + (l & 1) <= (l & 15))
    setmask(A, sMc1, lambda l: 4 * (l >> 4) + 2 + (l & 1) <= (l & 15))
    e('v_mov_b32 %s, 0x0c0c0302' % v(lo)); e('v_mov_b32 %s, 0x03020c0c' % v(hi))
    e('v_cndmask_b32 %s, %s, %s, %s' % (v(lo), v(lo), v(hi), s(sMpar, 2)))
    e('v_mov_b32 %s, 0x0c0c0c0c' % v(hi))
    e('v_cndmask_b32 %s, %s, %s, %s' % (v(vPC0), v(hi), v(lo), s(sMc0, 2)))
    e('v_cndmask_b32 %s, %s, %s, %s' % (v(vPP0), v(lo), v(hi), s(sMc0, 2)))
    e('v_cndmask_b32 %s, %s, %s, %s' % (v(vPC1), v(hi), v(lo), s(sMc1, 2)))
    e('v_cndmask_b32 %s, %s, %s, %s' % (v(vPP1), v(lo), v(hi), s(sMc1, 2)))
    for k in range(4): setmask(A, sG[k], lambda l: (l >> 4) == k)
    e('v_cndmask_b32 %s, 0, -1, %s' % (v(vMG0), s(sG[0], 2)))
    e('v_mov_b32 %s, %s' % (v(vNeg), f32(-1e9 * math.sqrt(18.0))))
    e('v_lshlrev_b32 %s, 2, %s' % (v(vBp), v(i15)))
    e('v_add_u32 %s, 192, %s' % (v(vBp), v(vBp)))
    e('s_or_b32 %s, %s, %s' % (s(sT0), s(sRb), s(sRg)))
    e('s_cmp_eq_u32 %s, 0' % s(sT0))
    e('s_cselect_b64 %s, -1, 0' % s(sFirst, 2))
    e('s_mov_b32 %s, %s' % (s(sC), f32(18.0 ** -0.5 * math.log2(math.e))))
    e('s_cmp_eq_u32 %s, 0' % s(sBr))
    e('s_mov_b32 %s, %s' % (s(sGs), f32(math.log2(math.e))))
    e('s_cselect_b32 %s, %s, %s' % (s(sGs), f32(-math.log2(math.e)), s(sGs)))
    e('s_lshl_b32 %s, %s, 3' % (s(sT0), s(sRb)))
    e('s_lshl2_add_u32 %s, %s, %s' % (s(sT0), s(sRg), s(sT0)))
    e('s_mul_i32 %s, %s, 36864' % (s(sT0), s(sT0)))
    e('s_lshl_b32 %s, %s, 2' % (s(sT1), s(sHg)))
    e('s_lshl1_add_u32 %s, %s, %s' % (s(sT1), s(sBr), s(sT1)))
    e('s_add_u32 %s, %s, %s' % (s(sT1), s(sT1), s(sP)))
    e('s_add_u32 %s, %s, 4' % (s(sT1), s(sT1)))
    e('s_lshl_b32 %s, %s, 10' % (s(sT1), s(sT1)))
    e('s_add_u32 %s, %s, %s' % (s(sSt0), s(sT0), s(sT1)))
    e('s_lshl_b32 %s, %s, 8' % (s(sT1), s(sHgb)))
    e('s_lshl3_add_u32 %s, %s, %s' % (s(sT1), s(sP), s(sT1)))
    e('s_add_u32 %s, %s, %s' % (s(sSr0), s(sT0), s(sT1)))
    e('v_lshlrev_b32 %s, 4, %s' % (v(vStM), v(vLane)))
    e('v_lshrrev_b32 %s, 1, %s' % (v(lo), v(g)))
    e('v_mul_u32_u24 %s, 36864, %s' % (v(lo), v(lo)))
    e('v_lshl_add_u32 %s, %s, 4, %s' % (v(lo), v(i15), v(lo)))
    e('v_and_b32 %s, 1, %s' % (v(hi), v(g)))
    e('v_lshl_add_u32 %s, %s, 2, %s' % (v(vStR), v(hi), v(lo)))
    vPA, vPD = 250, 251
    e('s_sub_u32 %s, %s, %s' % (s(sT1), s(sSr0), s(sSt0)))
    e('s_mul_i32 %s, %s, 120' % (s(sT0), s(sP)))
    e('s_add_u32 %s, %s, %s' % (s(sT1), s(sT1), s(sT0)))
    e('v_and_b32 %s, 7, %s' % (v(lo), v(vLane)))
    e('v_lshlrev_b32 %s, 7, %s' % (v(lo), v(lo)))
    e('v_lshrrev_b32 %s, 3, %s' % (v(hi), v(vLane)))
    e('v_mov_b32 %s, %s' % (v(vPA), s(sT1)))
    e('v_cmp_gt_u32 vcc, 32, %s' % v(vLane))
    e('v_cndmask_b32 %s, %s, %s, vcc' % (v(lo), v(vPA), v(lo)))
    e('v_cndmask_b32 %s, %s, %s, vcc' % (v(hi), v(c4), v(hi)))
    e('v_mul_u32_u24 %s, 36864, %s' % (v(hi), v(hi)))
    e('v_add3_u32 %s, %s, %s, %s' % (v(vPA), v(lo), v(hi), s(sSt0)))
    phase2_ids()
    for r in range(acc_lo, acc_hi):
        e('v_mov_b32 %s, 0' % v(r))
    e('s_lshl_b32 %s, %s, 4' % (s(sT0), s(sRot)))
    e('v_subrev_u32 %s, %s, v0' % (v(lo), s(sT0)))
    e('v_add_u32 %s, 144, %s' % (v(hi), v(lo)))
    e('v_cmp_gt_i32 vcc, 0, %s' % v(lo))
    e('v_cndmask_b32 %s, %s, %s, vcc' % (v(lo), v(lo), v(hi)))
    e('v_mov_b32 %s, 144' % v(hi))
    e('v_cmp_gt_u32 vcc, 144, v0')
    e('v_cndmask_b32 %s, %s, %s, vcc' % (v(lo), v(hi), v(lo)))
    e('v_lshlrev_b32 %s, 5, %s' % (v(lo), v(lo)))
    e('v_add_u32 %s, %d, %s' % (v(lo), GB, v(lo)))
    ST.mark()
    e('s_or_b32 %s, s2, %s' % (s(sT0), s(sWv)))
    e('s_cbranch_scc0 C_GW0')
    e('s_waitcnt vmcnt(0)')
    A.label('C_GW0')
    e('s_waitcnt vmcnt(1)')
    gq = Xf[1][1]
    e('s_mov_b32 %s, 0x01000100' % s(sT0)); e('s_mov_b32 %s, 0x03020302' % s(sT1))
    for k in range(2):
        e('v_perm_b32 %s, %s, %s, %s' % (v(gq + 4 * k), v(vG + k), v(vG + k), s(sT0)))
        e('v_perm_b32 %s, %s, %s, %s' % (v(gq + 4 * k + 2), v(vG + k), v(vG + k), s(sT1)))
        e('v_mov_b32 %s, %s' % (v(gq + 4 * k + 1), v(gq + 4 * k)))
        e('v_mov_b32 %s, %s' % (v(gq + 4 * k + 3), v(gq + 4 * k + 2)))
    e('ds_write_b128 %s, %s' % (v(lo), v(gq, 4)))
    e('ds_write_b128 %s, %s offset:16' % (v(lo), v(gq + 4, 4)))
    e('s_mov_b32 %s, 0' % s(sCnt)); e('s_mov_b32 %s, 0' % s(sRing))
    if OPT.get('tw'):
        e('s_mov_b64 exec, 1')
        e('buffer_load_dword %s, %s, %s, 0 offen' % (v(vPD), v(vPA), s(SO, 4)))
        e('buffer_load_dword %s, %s, %s, %s offen offset:64' % (v(vPD), v(vZ), s(SF, 4), s(cLf)))
        e('s_mov_b64 exec, -1')
    e('s_waitcnt lgkmcnt(0)')
    ST.mark()
    e('s_barrier')
    ST.mark()
    toff = {'Qa': 0, 'Qb': 40, 'Ka': 144, 'Kb': 184, 'Va': 288, 'Vb': 328}
    Q = LQ(A)
    def xread(ks, t):
        if OPT.get('nox'): return
        Q.rd('ds_read_b128 %s, %s offset:%d' % (v(Xf[ks][t], 4), v(vAX[ks]), 2048 * t), Xf[ks][t], 4)
    def wread(ks, n):
        if OPT.get('now'): return
        for j2 in range(2):
            if n == 'R': Q.rd('ds_read_b64_tr_b16 %s, %s' % (v(Wf[n] + 2 * j2, 2), v(vAR[ks * 2 + j2])), Wf[n] + 2 * j2, 2)
            else: Q.rd('ds_read_b64_tr_b16 %s, %s offset:%d' % (v(Wf[n] + 2 * j2, 2), v(vAW), ks * 13824 + j2 * 432 + toff[n]), Wf[n] + 2 * j2, 2)
    def group(ks, n, fills=None):
        for t in range(5):
            if n not in acc[t]: continue
            Q.need((Wf[n], 4), (Xf[ks][t], 4))
            d = acc[t][n]
            a, b = (Xf[ks][t], Wf[n]) if n[0] == 'V' else (Wf[n], Xf[ks][t])
            e('v_mfma_f32_16x16x32_bf16 %s, %s, %s, %s' % (v(d, 4), v(a, 4), v(b, 4), v(d, 4)))
            if fills: fills.pop(0)()
        while fills: fills.pop(0)()
    for t in range(5): xread(0, t)
    for n in names: wread(0, n)
    entry_q = [set(x) for x in Q.q]
    A.barrier_hazards()
    A.label('C_LOOP')
    for k, n in enumerate(names):
        group(0, n, [lambda t=t: xread(1, t) for t in range(5)] if k == 0 else None)
        wread(1, n)
    e('s_cmp_eq_u32 %s, %d' % (s(sRing), 2 * S))
    e('s_mov_b32 %s, %d' % (s(sDelta), S))
    e('s_cselect_b32 %s, %d, %s' % (s(sDelta), -2 * S, s(sDelta)))
    e('s_add_u32 %s, %s, %s' % (s(sRing), s(sRing), s(sDelta)))
    e('v_mad_i32_i24 %s, %s, %s, %s' % (v(vDl), v(vFlag), s(sDelta), v(vC512)))
    upd = [lambda a=a: e('v_add_u32 %s, %s, %s' % (v(a), s(sDelta), v(a))) for a in vAX + [vAW]]
    upd += [lambda a=a: e('v_add_u32 %s, %s, %s' % (v(a), v(vDl), v(a))) for a in vAR]
    for k, n in enumerate(names):
        group(1, n, upd if k == 0 else None)
        if k == 0:
            if 9 > OPT.get('pt', 9) >= 0:
                e('s_cmp_eq_u32 %s, %d' % (s(sCnt), OPT.get('pt', 9)))
                e('s_cbranch_scc0 C_NOPT')
                e('s_mov_b32 exec_hi, 15')
                if OPT.get('pt1'): e('s_mov_b64 exec, 1')
                e('buffer_load_dword %s, %s, %s, 0 offen' % (v(vPD), v(vPA), s(SO, 4)))
                e('s_mov_b64 exec, -1')
                A.label('C_NOPT')
            Q.drain()
            e('s_barrier')
            for t in range(5): xread(0, t)
        wread(0, n)
    assert [set(x) for x in Q.q] == entry_q[len(entry_q) - len(Q.q):], 'queue mismatch'
    e('s_add_u32 %s, %s, 1' % (s(sCnt), s(sCnt)))
    e('s_cmp_lt_u32 %s, 9' % s(sCnt))
    e('s_cbranch_scc1 C_LOOP')
    ST.mark()
    Q.drain()
    if OPT.get('pt', 9) == 9:
        e('s_mov_b32 exec_hi, 15')
        e('buffer_load_dword %s, %s, %s, 0 offen' % (v(vPD), v(vPA), s(SO, 4)))
        e('s_mov_b64 exec, -1')
    E = RegAlloc(buf_lo, 250)
    KB = [E.alloc(6) for _ in range(5)]
    VA = E.alloc(10); VB = E.alloc(10); VR = E.alloc(10)
    tg = [E.alloc() for _ in range(4)]
    Tq = [E.alloc(2) for _ in range(5)]
    def pk(dst, src):
        e('v_cvt_pk_bf16_f32 %s, %s, %s' % (v(dst), v(src), v(src + 1)))
        e('v_cvt_pk_bf16_f32 %s, %s, %s' % (v(dst + 1), v(src + 2), v(src + 3)))
    e('v_mov_b32 %s, %d' % (v(vDl), MODEW))
    e('ds_read_b64 %s, %s offset:8' % (v(vN, 2), v(vDl)))
    e('ds_read_b32 %s, %s' % (v(vDl), v(vDl)))
    for t in range(4):
        e('ds_bpermute_b32 %s, %s, %s' % (v(tg[t]), v(vBp), v(acc[t + 1]['R'])))
    e('s_mov_b32 %s, 0x3f803f80' % s(sT0))
    for t in range(5):
        pk(Tq[t], acc[t]['R'])
        e('v_mov_b32 %s, %s' % (v(KB[t] + 2), s(sT0))); e('v_mov_b32 %s, %s' % (v(KB[t] + 3), s(sT0)))
    e('s_waitcnt lgkmcnt(0)')
    for t in range(5):
        e('v_permlane32_swap_b32 %s, %s' % (v(Tq[t]), v(KB[t] + 2)))
        e('v_permlane32_swap_b32 %s, %s' % (v(Tq[t] + 1), v(KB[t] + 3)))
    for t in range(5):
        e('v_mfma_f32_16x16x16_bf16 %s, %s, %s, 0' % (v(acc[t]['R'], 4), v(Tq[t], 2), v(vSel, 2)))
        pk(KB[t], acc[t]['Ka']); pk(KB[t] + 4, acc[t]['Kb'])
    QB = [None] + [acc[t]['Ka'] for t in range(1, 5)]
    for t in range(1, 5):
        assert acc[t]['Kb'] == acc[t]['Ka'] + 4
        pk(QB[t], acc[t]['Qa']); pk(QB[t] + 6, acc[t]['Qb'])
        e('v_and_b32 %s, %s, %s' % (v(QB[t] + 2), v(vMG0), v(Tq[t])))
        e('v_mov_b32 %s, 0' % v(QB[t] + 3)); e('v_mov_b32 %s, 0' % v(QB[t] + 4))
        e('v_and_b32 %s, %s, %s' % (v(QB[t] + 5), v(vMG0), v(Tq[t] + 1)))
    def mf32(d, a, b):
        e('v_mfma_f32_16x16x32_bf16 %s, %s, %s, 0' % (v(d, 4), v(a, 4), v(b, 4)))
    def touch():
        e('s_mov_b32 exec_hi, 15')
        e('buffer_load_dword %s, %s, %s, 0 offen' % (v(vPD), v(vPA), s(SO, 4)))
        e('s_mov_b64 exec, -1')
    if OPT.get('pt') == 10: touch()
    def vconv(t):
        pk(VA + 2 * t, acc[t]['Va']); pk(VB + 2 * t, acc[t]['Vb']); pk(VR + 2 * t, acc[t]['R'])
    def attn(ts, Sreg, pre):
        units = [(t, h) for t in ts for h in range(2)]
        Sp = Sreg[0:4]; Sc = Sreg[4:8]
        for u, (t, h) in enumerate(units):
            mf32(Sp[u], KB[t - 1] + 2 * h, QB[t] + 4 * h); mf32(Sc[u], KB[t] + 2 * h, QB[t] + 4 * h)
        pre()
        for u, (t, h) in enumerate(units):
            for k, mc in ((0, sMc0), (1, sMc1)):
                e('v_cndmask_b32 %s, %s, %s, %s' % (v(Sp[u] + 2 * k), v(Sp[u] + 2 * k), v(Sp[u] + 2 * k + 1), s(sMpar, 2)))
                e('v_cndmask_b32 %s, %s, %s, %s' % (v(Sc[u] + 2 * k), v(Sc[u] + 2 * k), v(Sc[u] + 2 * k + 1), s(sMpar, 2)))
                if t == 1:
                    e('v_cndmask_b32 %s, %s, %s, %s' % (v(Sp[u] + 2 * k), v(Sp[u] + 2 * k), v(vNeg), s(sFirst, 2)))
                e('v_cndmask_b32 %s, %s, %s, %s' % (v(Sp[u] + 2 * k), v(Sp[u] + 2 * k), v(Sc[u] + 2 * k), s(mc, 2)))
            e('v_max_f32 %s, %s, %s' % (v(Sp[u] + 1), v(Sp[u]), v(Sp[u] + 2)))
        m = [Sp[u] + 1 for u in range(4)]
        e('v_permlane32_swap_b32 %s, %s' % (v(m[0]), v(m[1])))
        e('v_permlane32_swap_b32 %s, %s' % (v(m[2]), v(m[3])))
        e('v_max_f32 %s, %s, %s' % (v(m[0]), v(m[0]), v(m[1])))
        e('v_max_f32 %s, %s, %s' % (v(m[2]), v(m[2]), v(m[3])))
        e('v_permlane16_swap_b32 %s, %s' % (v(m[0]), v(m[2])))
        e('v_max_f32 %s, %s, %s' % (v(m[0]), v(m[0]), v(m[2])))
        e('v_mul_f32 %s, %s, %s' % (v(m[0]), s(sC), v(m[0])))
        e('v_mov_b32 %s, %s' % (v(m[2]), v(m[0])))
        e('v_permlane16_swap_b32 %s, %s' % (v(m[0]), v(m[2])))
        e('v_mov_b32 %s, %s' % (v(m[1]), v(m[0])))
        e('v_mov_b32 %s, %s' % (v(m[3]), v(m[2])))
        e('v_permlane32_swap_b32 %s, %s' % (v(m[0]), v(m[1])))
        e('v_permlane32_swap_b32 %s, %s' % (v(m[2]), v(m[3])))
        for u in range(4):
            for k in range(2):
                e('v_fma_f32 %s, %s, %s, -%s' % (v(Sp[u] + 2 * k), v(Sp[u] + 2 * k), s(sC), v(m[u])))
        for u in range(4):
            for k in range(2):
                e('v_exp_f32 %s, %s' % (v(Sp[u] + 2 * k), v(Sp[u] + 2 * k)))
        P = Sc
        for u in range(4):
            for k, (pp, pc) in enumerate(((vPP0, vPC0), (vPP1, vPC1))):
                e('v_perm_b32 %s, %s, %s, %s' % (v(P[u] + k), v(Sp[u] + 2 * k), v(Sp[u] + 2 * k), v(pp)))
                e('v_perm_b32 %s, %s, %s, %s' % (v(P[u] + 2 + k), v(Sp[u] + 2 * k), v(Sp[u] + 2 * k), v(pc)))
        OR = Sp; O = [QB[t] + 4 * h for (t, h) in units]
        for u, (t, h) in enumerate(units):
            mf32(OR[u], VR + 2 * (t - 1), P[u])
        for u, (t, h) in enumerate(units):
            mf32(O[u], (VA, VB)[h] + 2 * (t - 1), P[u])
        for u, (t, h) in enumerate(units):
            e('v_mul_f32 %s, %s, %s' % (v(OR[u] + 2), v(OR[u] + 2), v(tg[t - 1])))
        for u in range(4):
            e('v_rcp_f32 %s, %s' % (v(OR[u] + 2), v(OR[u] + 2)))
        outR = P[0]
        for u, (t, h) in enumerate(units):
            for k in range(4):
                e('v_mul_f32 %s, %s, %s' % (v(O[u] + k), v(OR[u] + 2), v(O[u] + k)))
            o = P[2 + (u >> 1)]
            pk(o + 2 * h, O[u])
            if h == 1:
                e('s_add_u32 %s, %s, %d' % (s(sT0), s(sSt0), 36864 * (t - 1)))
                e('buffer_store_dwordx4 %s, %s, %s, %s offen' % (v(o, 4), v(vStM), s(SO, 4), s(sT0)))
                again.append(('buffer_store_dwordx4 %s, %s, %s, %s offen sc1' % (v(o, 4), v(vStM), s(SO, 4), s(sT0)), sSt0, 36864 * (t - 1)))
        for u in range(4):
            e('s_mov_b64 exec, %s' % s(sG[u], 2))
            e('v_mul_f32 %s, %s, %s' % (v(OR[u]), v(OR[u] + 2), v(OR[u])))
            e('v_mul_f32 %s, %s, %s' % (v(OR[u] + 1), v(OR[u] + 2), v(OR[u] + 1)))
            e('v_cvt_pk_bf16_f32 %s, %s, %s' % (v(outR), v(OR[u]), v(OR[u] + 1)))
        e('s_mov_b64 exec, -1')
        e('s_add_u32 %s, %s, %d' % (s(sT0), s(sSr0), 36864 * (ts[0] - 1)))
        e('buffer_store_dword %s, %s, %s, %s offen' % (v(outR), v(vStR), s(SO, 4), s(sT0)))
        again.append(('buffer_store_dword %s, %s, %s, %s offen sc1' % (v(outR), v(vStR), s(SO, 4), s(sT0)), sSr0, 36864 * (ts[0] - 1)))
    again = []
    S1 = [acc[t][n] for t in range(1, 5) for n in ('Qa', 'Qb')]
    def pre1():
        for t in range(5): vconv(t)
        for t in range(4):
            e('v_mul_f32 %s, %s, %s' % (v(tg[t]), s(sGs), v(tg[t])))
            e('v_exp_f32 %s, %s' % (v(tg[t]), v(tg[t])))
        for t in range(4):
            e('v_add_f32 %s, 1.0, %s' % (v(tg[t]), v(tg[t])))
    attn([1, 2], S1, pre1)
    S2 = [acc[t][n] for t in range(0, 3) for n in ('Va', 'Vb', 'R')][:8]
    attn([3, 4], S2, lambda: None)
    ST.mark()
    e('v_readfirstlane_b32 %s, %s' % (s(cMode), v(vDl)))
    e('s_lshl4_add_u32 %s, %s, %s' % (s(sDelta), s(sRb), s(sHgb)))
    e('s_lshl_b32 %s, %s, 7' % (s(sDelta), s(sDelta)))
    e('s_lshl3_add_u32 %s, %s, %s' % (s(sDelta), s(sWv), s(sDelta)))
    e('s_cmp_eq_u32 %s, 0' % s(cMode))
    e('s_cbranch_scc0 C_ACK')
    for txt, sb, off in again:
        e('s_add_u32 %s, %s, %d' % (s(sT0), s(sb), off + GOFF))
        e(txt)
    e('s_mov_b32 %s, 0' % s(sSpin))
    A.label('C_NSPIN')
    e('s_waitcnt vmcnt(0)')
    e('v_readfirstlane_b32 %s, %s' % (s(sNlo), v(vN)))
    e('s_cmp_lg_u32 %s, 0' % s(sNlo))
    e('s_cbranch_scc1 C_NOK')
    e('buffer_load_dwordx2 %s, %s, %s, 0 offen offset:%d sc1' % (v(vN, 2), v(vZ), s(SDb, 4), NONCE))
    e('s_add_u32 %s, %s, 1' % (s(sSpin), s(sSpin)))
    e('s_cmp_lt_u32 %s, %d' % (s(sSpin), SPIN))
    e('s_cbranch_scc1 C_NSPIN')
    e('s_waitcnt vmcnt(0)')
    A.label('C_NOK')
    e('s_mov_b64 exec, 1')
    e('buffer_store_dwordx2 %s, %s, %s, %s offen sc1' % (v(vN, 2), v(vZ), s(SF, 4), s(sDelta)))
    e('s_mov_b64 exec, -1')
    e('s_cmp_eq_u32 %s, 0' % s(cOk))
    e('s_cbranch_scc1 C_BW')
    e('s_branch C_LF')
    A.label('C_ACK')
    e('s_waitcnt vmcnt(0)')
    A.label('C_LF')
    e('s_add_u32 %s, %s, %s' % (s(sDelta), s(sDelta), s(cLf)))
    e('s_mov_b64 exec, 1')
    e('buffer_store_dwordx2 %s, %s, %s, %s offen' % (v(vN, 2), v(vZ), s(SF, 4), s(sDelta)))
    e('s_mov_b64 exec, -1')
    A.label('C_BW')
    ST.mark()
    e('s_cmp_ge_u32 %s, 3' % s(sL2))
    e('s_cbranch_scc1 C_DONE')
    e('s_barrier')
    e('s_cmp_eq_u32 %s, 0' % s(sWv))
    e('s_cbranch_scc0 C_NOPOLL')
    e('v_readfirstlane_b32 %s, %s' % (s(sNlo), v(vN)))
    e('v_readfirstlane_b32 %s, %s' % (s(sNhi), v(vN + 1)))
    pv = acc[0]['Ka']; pa = acc[0]['Kb']
    e('s_add_u32 %s, %s, %d' % (s(sT1), s(sMb), NT - 1))
    e('s_lshr_b32 %s, %s, 3' % (s(sT0), s(sMb)))
    e('s_lshr_b32 %s, %s, 3' % (s(sT1), s(sT1)))
    e('s_sub_u32 %s, %s, %s' % (s(sT1), s(sT1), s(sT0)))
    e('s_lshl_b32 %s, %s, 11' % (s(sT0), s(sT0)))
    e('s_lshl_b32 %s, %s, 11' % (s(sT1), s(sT1)))
    e('v_and_b32 %s, 15, %s' % (v(pa), v(vLane)))
    e('v_lshlrev_b32 %s, 7, %s' % (v(pa), v(pa)))
    e('v_bfe_u32 %s, %s, 4, 1' % (v(pa + 1), v(vLane)))
    e('v_mad_u32_u24 %s, %s, %s, %s' % (v(pa), v(pa + 1), s(sT1), v(pa)))
    e('v_lshrrev_b32 %s, 5, %s' % (v(pa + 1), v(vLane)))
    e('v_lshl_add_u32 %s, %s, 4, %s' % (v(pa), v(pa + 1), v(pa)))
    e('s_mov_b32 %s, 0' % s(sSpin))
    e('s_add_u32 %s, %s, %s' % (s(sDelta), s(sT0), s(cLf)))
    def chk():
        e('s_waitcnt vmcnt(0)')
        e('v_xor_b32 %s, %s, %s' % (v(pv), s(sNlo), v(pv)))
        e('v_xor_b32 %s, %s, %s' % (v(pv + 1), s(sNhi), v(pv + 1)))
        e('v_xor_b32 %s, %s, %s' % (v(pv + 2), s(sNlo), v(pv + 2)))
        e('v_xor_b32 %s, %s, %s' % (v(pv + 3), s(sNhi), v(pv + 3)))
        e('v_or3_b32 %s, %s, %s, %s' % (v(pv), v(pv), v(pv + 1), v(pv + 2)))
        e('v_or_b32 %s, %s, %s' % (v(pv), v(pv), v(pv + 3)))
        e('v_cmp_ne_u32 vcc, 0, %s' % v(pv))
    A.label('C_POLL')
    e('buffer_load_dwordx4 %s, %s, %s, %s offen %s' % (v(pv, 4), v(pa), s(SF, 4), s(sDelta), OPT.get('pl', 'sc1')))
    e('v_mov_b32 %s, 0' % v(pa + 2))
    chk()
    e('s_add_u32 %s, %s, 1' % (s(sSpin), s(sSpin)))
    e('s_cbranch_vccz C_PSEL')
    e('s_cmp_eq_u32 %s, 0' % s(cMode))
    e('s_cbranch_scc0 C_PNXT')
    e('buffer_load_dwordx4 %s, %s, %s, %s offen sc1' % (v(pv, 4), v(pa), s(SF, 4), s(sT0)))
    e('v_mov_b32 %s, %d' % (v(pa + 2), GOFF))
    chk()
    e('s_nop 1')
    e('s_cbranch_vccz C_PSEL')
    A.label('C_PNXT')
    e('s_cmp_lt_u32 %s, %d' % (s(sSpin), SPIN))
    e('s_cbranch_scc1 C_POLL')
    A.label('C_PSEL')
    e('s_cmp_eq_u32 %s, 0' % s(cMode))
    e('s_cbranch_scc0 C_NOPOLL')
    e('v_mov_b32 %s, %d' % (v(pa + 3), MODEW + 4))
    e('ds_write_b32 %s, %s' % (v(pa + 3), v(pa + 2)))
    e('s_waitcnt lgkmcnt(0)')
    A.label('C_NOPOLL')
    e('s_mul_i32 %s, %s, %d' % (s(sOb), s(sMb), 36864))
    e('s_lshl_b32 %s, %s, 10' % (s(sLd), s(sWv)))
    e('s_add_u32 %s, %s, %s' % (s(sOb), s(sOb), s(sLd)))
    e('s_mov_b32 %s, %s' % (s(sCh), s(sRot2)))
    e('s_mov_b32 %s, 0' % s(sCnt))
    if OPT.get('p2oob'): e('v_add_u32 %s, %d, %s' % (v(vStM), OOB, v(vStM)))
    ST.mark()
    e('s_barrier')
    ST.mark()
    e('s_cmp_eq_u32 %s, 0' % s(cMode))
    e('s_cbranch_scc0 C_OL')
    e('v_mov_b32 %s, %d' % (v(pa + 3), MODEW + 4))
    e('ds_read_b32 %s, %s' % (v(pa + 2), v(pa + 3)))
    e('s_waitcnt lgkmcnt(0)')
    e('v_readfirstlane_b32 %s, %s' % (s(sT0), v(pa + 2)))
    e('s_and_b32 %s, %s, %d' % (s(sT0), s(sT0), GOFF))
    e('s_add_u32 %s, %s, %s' % (s(sOb), s(sOb), s(sT0)))
    A.label('C_OL')
    e('s_cmp_lt_u32 %s, 3' % s(sCnt))
    e('s_cbranch_scc1 C_OI')
    e('s_waitcnt vmcnt(%d)' % (2 * NT))
    e('s_barrier')
    A.label('C_OI')
    e('s_lshl_b32 %s, %s, 12' % (s(sT0), s(sCh)))
    e('s_add_u32 %s, %s, %s' % (s(sT0), s(sT0), s(sOb)))
    for t in range(NT):
        e('s_add_u32 %s, %s, %d' % (s(sT1), s(sT0), 36864 * t))
        e('s_add_u32 m0, %s, %d' % (s(sLd), 4096 * t))
        e('buffer_load_dwordx4 %s, %s, %s offen lds' % (v(vStM), s(SO, 4), s(sT1)))
    e('s_add_u32 %s, %s, 1' % (s(sCh), s(sCh)))
    e('s_cmp_eq_u32 %s, 9' % s(sCh))
    e('s_cselect_b32 %s, 0, %s' % (s(sCh), s(sCh)))
    e('s_add_u32 %s, %s, %d' % (s(sLd), s(sLd), CHB))
    e('s_cmp_eq_u32 %s, 5' % s(sCnt))
    e('s_cselect_b32 %s, %d, 0' % (s(sT0), 6 * CHB))
    e('s_sub_u32 %s, %s, %s' % (s(sLd), s(sLd), s(sT0)))
    e('s_add_u32 %s, %s, 1' % (s(sCnt), s(sCnt)))
    e('s_cmp_lt_u32 %s, 9' % s(sCnt))
    e('s_cbranch_scc1 C_OL')
    for n in (2 * NT, NT, 0):
        e('s_waitcnt vmcnt(%d)' % n)
        e('s_barrier')
    A.label('C_DONE')
    ST.finish(SD, pWs, vT[0], False)
    A.label('K_END')
    e('s_endpgm')

def desc(label, vg=256):
    return '''.amdhsa_kernel %s
  .amdhsa_next_free_vgpr %d
  .amdhsa_next_free_sgpr 102
  .amdhsa_accum_offset %d
  .amdhsa_group_segment_fixed_size 0
  .amdhsa_kernarg_size 80
  .amdhsa_user_sgpr_count 2
  .amdhsa_user_sgpr_kernarg_segment_ptr 1
  .amdhsa_system_sgpr_workgroup_id_x 1
.end_amdhsa_kernel
''' % (label, vg, vg)

def main(path):
    A = Asm(); lab = NAME + '_kernel'
    kernel(A, lab)
    hdr = '; @launch grid=(256,1,1) block=(512,1,1) lds=%d\n' % LDS
    hdr += '.amdgcn_target "amdgcn-amd-amdhsa--gfx950"\n.text\n'
    txt = hdr + A.text() + '.section .rodata,"a"\n.p2align 6\n' + desc(lab)
    open(path, 'w').write(txt)
    print('instrs', A.nins)

if __name__ == '__main__':
    for a in sys.argv[2:]:
        if '=' in a:
            k, val = a.split('='); OPT[k] = int(val)
        else: OPT[a] = True
    main(sys.argv[1] if len(sys.argv) > 1 else 'g2.s')
```

```python
import sys, math, struct, os
sys.path.insert(0, 'gen')
from asmlib import *

NAME = 'gated_mix__sliding_local_dilated__sliding_local_dilated__prompt'
OOB = 0x40000000
def f32(x): return '0x%08x' % struct.unpack('<I', struct.pack('<f', x))[0]
def lanemask(fn):
    m = 0
    for l in range(64):
        if fn(l): m |= 1 << l
    return m
def setmask(A, sr, fn):
    m = lanemask(fn)
    lo, hi = m & 0xffffffff, m >> 32
    A.e('s_mov_b32 %s, 0x%08x' % (s(sr), lo))
    A.e('s_mov_b32 %s, 0x%08x' % (s(sr + 1), hi))
def mksrd(A, sr, src, nbytes):
    A.e('s_mov_b32 %s, %s' % (s(sr), s(src)))
    A.e('s_and_b32 %s, %s, 0xffff' % (s(sr + 1), s(src + 1)))
    A.e('s_mov_b32 %s, %d' % (s(sr + 2), nbytes))
    A.e('s_mov_b32 %s, 0x00020000' % s(sr + 3))

OP_BYTES = 128 * 36864
S = 46080; WOFF = 18432
WO0 = 138240
GB = WO0 + 16384
LDS = 163840
NT = 6
CHB = 4096 * NT
MODEW = GB + 4672
NONCE = 192
SPIN = int(os.environ.get('SPIN', 200000))
FLAG_OFF = 12 << 20
GOFF = 5 << 20
STAMP_OFF = 16 << 20

OPT = {'stamp': False}

class Stamper:
    def __init__(self, A, vreg, sreg, slane):
        self.A = A; self.v = vreg; self.s = sreg; self.sl = slane
    def start(self):
        if not OPT['stamp']: return
        e = self.A.e
        e('v_mov_b32 %s, 0' % v(self.v))
        e('s_memrealtime %s' % s(self.s, 2)); e('s_waitcnt lgkmcnt(0)')
        e('v_writelane_b32 %s, %s, 63' % (v(self.v), s(self.s)))
        e('s_mov_b32 %s, 0' % s(self.sl))
        self.mark()
    def mark(self):
        if not OPT['stamp']: return
        e = self.A.e
        e('s_memtime %s' % s(self.s, 2)); e('s_waitcnt lgkmcnt(0)')
        e('s_mov_b32 m0, %s' % s(self.sl))
        e('v_writelane_b32 %s, %s, m0' % (v(self.v), s(self.s)))
        e('s_add_u32 %s, %s, 1' % (s(self.sl), s(self.sl)))
    def finish(self, srdreg, wsreg, vtmp, wait=True):
        if not OPT['stamp']: return
        e = self.A.e
        if wait: e('s_waitcnt vmcnt(0)')
        self.mark()
        e('s_memrealtime %s' % s(self.s, 2)); e('s_waitcnt lgkmcnt(0)')
        e('v_writelane_b32 %s, %s, 62' % (v(self.v), s(self.s)))
        mksrd(self.A, srdreg, wsreg, 64 << 20)
        e('s_lshl_b32 %s, s2, 11' % s(self.s))
        e('s_add_u32 %s, %s, %d' % (s(self.s), s(self.s), STAMP_OFF))
        e('v_lshlrev_b32 %s, 2, v0' % v(vtmp))
        e('buffer_store_dword %s, %s, %s, %s offen' % (v(self.v), v(vtmp), s(srdreg, 4), s(self.s)))

class DbgStamper:
    def __init__(self, A, vreg, sreg, slane):
        self.A = A; self.v = vreg; self.s = sreg; self.k = 0; self.base = 2
    def srd(self):
        mksrd(self.A, 100 - 8, 24, 256)
    def put(self, idx, inv=False):
        e = self.A.e
        e('s_and_b32 %s, s34, 3' % s(self.s))
        e('s_cbranch_scc1 DBG_%d' % idx)
        e('s_bfe_u32 %s, s2, 0x30003' % s(self.s))
        e('s_cmp_eq_u32 %s, 5' % s(self.s))
        e('s_cbranch_scc0 DBG_%d' % idx)
        e('s_memrealtime %s' % s(self.s, 2)); e('s_waitcnt lgkmcnt(0)')
        if inv: e('s_not_b32 %s, %s' % (s(self.s), s(self.s)))
        e('v_mov_b32 %s, %s' % (v(self.v), s(self.s)))
        e('v_mov_b32 %s, 0' % v(self.v - 1))
        mksrd(self.A, 4, 24, 256)
        e('s_mov_b64 exec, 1')
        e('buffer_atomic_umax %s, %s, %s, 0 offen offset:%d sc1' % (v(self.v), v(self.v - 1), s(4, 4), 4 * idx))
        e('s_mov_b64 exec, -1')
        self.A.label('DBG_%d' % idx)
    def start(self):
        self.k = 0
        self.base = 2 if self.base == 9 else 9
        self.put(self.base, True)
        self.sel = {9: (1, 3, 6, 7), 2: (2, 3, 4, 5, 7)}[self.base]
        self.n = 0
    def mark(self):
        if self.k in self.sel:
            self.n += 1
            self.put(self.base + self.n)
        self.k += 1
    def finish(self, srdreg, wsreg, vtmp):
        self.A.e('s_waitcnt vmcnt(0)')
        self.put(self.base + len(self.sel) + 1)

class LQ:
    def __init__(self, A): self.A = A; self.q = []
    def rd(self, text, dst, n):
        self.A.e(text); self.q.append(set(range(dst, dst + n)))
    def need(self, *rs):
        regs = set()
        for r, n in rs: regs |= set(range(r, r + n))
        last = -1
        for i, d in enumerate(self.q):
            if d & regs: last = i
        if last < 0: return
        cnt = len(self.q) - 1 - last
        cnt = min(cnt, 15)
        self.A.e('s_waitcnt lgkmcnt(%d)' % cnt)
        self.q = self.q[len(self.q) - cnt:] if cnt else []
    def drain(self):
        self.A.e('s_waitcnt lgkmcnt(0)'); self.q = []

def kernel(A, label):
    e = A.e
    pX, pWA, pWoA, pWB, pWoB, pG, pOut, pDbg, pWs = 8, 10, 12, 16, 18, 20, 22, 24, 26
    sXcd, sIdx, sRb, sHgb, sHg, sBr, sWv, sRot, sT0, sT1, sT2, sT3 = range(28, 40)
    sL2, sMb, sNb, sRot2 = range(40, 44)
    SA, SB, SC, SD = 44, 48, 52, 56
    sM = 60
    sx = 62
    ST = Stamper(A, 255, 96, 98) if not OPT.get('dbg') else DbgStamper(A, 255, 96, 98)
    A.raw('.globl %s' % label); A.raw('.p2align 8'); A.raw('.type %s,@function' % label); A.raw(label + ':')
    e('s_cmp_ge_u32 s2, 256')
    e('s_cbranch_scc1 K_END')
    e('s_load_dwordx16 s[8:23], s[0:1], 0')
    e('s_load_dwordx4 s[24:27], s[0:1], 64')
    e('v_lshrrev_b32 v2, 6, v0')
    e('v_and_b32 v1, 63, v0')
    e('v_readfirstlane_b32 %s, v2' % s(sWv))
    vLane = 1
    if OPT.get('perm'):
        e('s_bfe_u32 %s, s2, 0x%x' % (s(sT0), (OPT['perm'] << 16) | 3))
        e('s_xor_b32 s2, s2, %s' % s(sT0))
    e('s_and_b32 %s, s2, 7' % s(sXcd))
    e('s_lshr_b32 %s, s2, 3' % s(sIdx))
    e('s_and_b32 %s, %s, 1' % (s(sT0), s(sIdx)))
    e('s_lshl1_add_u32 %s, %s, %s' % (s(sRb), s(sXcd), s(sT0)))
    e('s_lshr_b32 %s, %s, 1' % (s(sHgb), s(sIdx)))
    e('s_add_u32 %s, %s, %s' % (s(sRot), s(sXcd), s(sHgb)))
    e('s_mul_i32 %s, %s, 57' % (s(sT0), s(sRot)))
    e('s_lshr_b32 %s, %s, 9' % (s(sT0), s(sT0)))
    e('s_mul_i32 %s, %s, 9' % (s(sT0), s(sT0)))
    e('s_sub_u32 %s, %s, %s' % (s(sRot), s(sRot), s(sT0)))
    e('s_and_b32 %s, %s, 7' % (s(sHg), s(sHgb)))
    e('s_lshr_b32 %s, %s, 3' % (s(sBr), s(sHgb)))
    e('s_cmp_lt_u32 %s, 4' % s(sWv))
    e('s_cbranch_scc1 C_START')

    def phase2_ids():
        e('s_mul_i32 %s, %s, 57' % (s(sL2), s(sIdx)))
        e('s_lshr_b32 %s, %s, 9' % (s(sL2), s(sL2)))
        e('s_mul_i32 %s, %s, 9' % (s(sT0), s(sL2)))
        e('s_sub_u32 %s, %s, %s' % (s(sNb), s(sIdx), s(sT0)))
        e('s_mul_i32 %s, %s, 5' % (s(sT0), s(sL2)))
        e('s_lshl4_add_u32 %s, %s, %s' % (s(sMb), s(sXcd), s(sT0)))
        e('s_mul_i32 %s, %s, 3' % (s(sT0), s(sL2)))
        e('s_add_u32 %s, %s, %s' % (s(sRot2), s(sT0), s(sNb)))
        e('s_add_u32 %s, %s, %s' % (s(sRot2), s(sRot2), s(sXcd)))
        e('s_mul_i32 %s, %s, 57' % (s(sT0), s(sRot2)))
        e('s_lshr_b32 %s, %s, 9' % (s(sT0), s(sT0)))
        e('s_mul_i32 %s, %s, 9' % (s(sT0), s(sT0)))
        e('s_sub_u32 %s, %s, %s' % (s(sRot2), s(sRot2), s(sT0)))
    def xcc_ids(sLf, sOk):
        e('s_getreg_b32 %s, hwreg(HW_REG_XCC_ID, 0, 4)' % s(sLf))
        e('s_cmp_lt_u32 %s, 8' % s(sLf))
        e('s_cselect_b32 %s, 1, 0' % s(sOk))
        e('s_min_u32 %s, %s, 8' % (s(sLf), s(sLf)))
        e('s_lshl_b32 %s, %s, 15' % (s(sLf), s(sLf)))
        e('s_add_u32 %s, %s, 32768' % (s(sLf), s(sLf)))
    def flag_srd(sr):
        e('s_add_u32 %s, %s, %d' % (s(sT0), s(pWs), FLAG_OFF))
        e('s_addc_u32 %s, %s, 0' % (s(sT1), s(pWs + 1)))
        mksrd(A, sr, sT0, 10 * 32768)

    sJ, sKc, sXr0, sXrow, sWrow, sRing, sCnt, sLx, sLw, sSo, sEx, sCh, sPos, sStep, sWm, sWr = range(sx, sx + 16)
    sEx = sx + 16
    R = RegAlloc(2, 254)
    vT = [R.alloc() for _ in range(4)]
    vDX, vDXh, vDW, vDM, vDR, vDC = [R.alloc() for _ in range(6)]
    sLf, sOk, sMode = range(sx + 18, sx + 21)
    vLN = 100; vLZ = 104; vSn = 106
    ST.start()
    e('s_sub_u32 %s, %s, 4' % (s(sJ), s(sWv)))
    e('s_and_b32 %s, %s, 1' % (s(sT0), s(sJ)))
    e('s_lshl_b32 %s, %s, 2' % (s(sT0), s(sT0)))
    e('v_lshrrev_b32 %s, 4, %s' % (v(vT[0]), v(vLane)))
    e('v_add_u32 %s, %s, %s' % (v(vT[0]), s(sT0), v(vT[0])))
    e('v_and_b32 %s, 7, %s' % (v(vT[1]), v(vLane)))
    e('v_xor_b32 %s, %s, %s' % (v(vT[0]), v(vT[0]), v(vT[1])))
    e('v_lshlrev_b32 %s, 4, %s' % (v(vT[0]), v(vT[0])))
    e('v_lshrrev_b32 %s, 3, %s' % (v(vT[1]), v(vLane)))
    e('s_movk_i32 %s, 1152' % s(sT1))
    e('v_mad_u32_u24 %s, %s, %s, %s' % (v(vDX), v(vT[1]), s(sT1), v(vT[0])))
    e('s_lshl_b32 %s, %s, 7' % (s(sT0), s(sRb)))
    e('s_lshl3_add_u32 %s, %s, %s' % (s(sT0), s(sJ), s(sT0)))
    e('s_sub_u32 %s, %s, 16' % (s(sT0), s(sT0)))
    e('s_mul_i32 %s, %s, 1152' % (s(sXrow), s(sT0)))
    e('s_max_i32 %s, %s, 0' % (s(sXr0), s(sXrow)))
    e('s_cmp_lt_i32 %s, 0' % s(sT0))
    e('s_cselect_b64 %s, -1, 0' % s(sM, 2))
    e('v_cndmask_b32 %s, %s, %s, %s' % (v(vDXh), v(vDX), v(vT[0]), s(sM, 2)))
    e('v_subrev_u32 %s, 27, %s' % (v(vT[0]), v(vLane)))
    e('v_cmp_lt_u32 vcc, 26, %s' % v(vLane))
    e('v_cndmask_b32 %s, %s, %s, vcc' % (v(vT[0]), v(vLane), v(vT[0])))
    e('v_mov_b32 %s, %d' % (v(vT[2]), 4 * 3456))
    e('v_cndmask_b32 %s, 0, %s, vcc' % (v(vT[2]), v(vT[2])))
    e('v_mul_u32_u24 %s, 57, %s' % (v(vT[1]), v(vT[0])))
    e('v_lshrrev_b32 %s, 9, %s' % (v(vT[1]), v(vT[1])))
    e('v_mul_u32_u24 %s, 1008, %s' % (v(vT[1]), v(vT[1])))
    e('v_lshl_add_u32 %s, %s, 4, %s' % (v(vT[1]), v(vT[0]), v(vT[1])))
    e('s_mul_i32 %s, %s, 144' % (s(sT0), s(sHg)))
    e('v_add3_u32 %s, %s, %s, %s' % (v(vDW), v(vT[1]), v(vT[2]), s(sT0)))
    e('s_mul_i32 %s, %s, 3456' % (s(sWrow), s(sJ)))
    e('s_lshl_b32 %s, %s, 10' % (s(sLx), s(sJ)))
    e('s_mul_i32 %s, %s, 864' % (s(sLw), s(sJ)))
    e('s_add_u32 %s, %s, %d' % (s(sLw), s(sLw), WOFF))
    setmask(A, sEx, lambda l: l < 54)
    e('s_mov_b32 %s, %s' % (s(sKc), s(sRot)))
    e('s_mov_b32 %s, 0' % s(sRing))
    e('s_mov_b32 %s, 0' % s(sCnt))
    e('s_waitcnt lgkmcnt(0)')
    mksrd(A, SA, pX, 2048 * 1152)
    e('s_cmp_eq_u32 %s, 0' % s(sBr))
    e('s_cselect_b32 %s, %s, %s' % (s(sT0), s(pWA), s(pWB)))
    e('s_cselect_b32 %s, %s, %s' % (s(sT1), s(pWA + 1), s(pWB + 1)))
    mksrd(A, SB, sT0, 576 * 3456)
    ST.mark()
    A.label('L_LOOP')
    e('s_cmp_lt_u32 %s, 2' % s(sCnt))
    e('s_cbranch_scc1 L_ISSUE')
    e('s_waitcnt vmcnt(12)')
    e('s_barrier')
    A.label('L_ISSUE')
    if OPT.get('nodma'): e('s_branch L_SKIP')
    e('s_lshl_b32 %s, %s, 7' % (s(sT0), s(sKc)))
    e('s_add_u32 %s, %s, %s' % (s(sT1), s(sRing), s(sLx)))
    for q in range(5):
        if q == 4:
            e('s_cmp_ge_u32 %s, 2' % s(sJ))
            e('s_cbranch_scc1 L_NOX4')
        if q == 0:
            e('s_add_u32 %s, %s, %s' % (s(sSo), s(sXr0), s(sT0)))
            e('s_mov_b32 m0, %s' % s(sT1))
            e('buffer_load_dwordx4 %s, %s, %s offen lds' % (v(vDXh), s(SA, 4), s(sSo)))
            e('s_add_u32 %s, %s, %s' % (s(sT0), s(sXrow), s(sT0)))
        else:
            e('s_add_u32 %s, %s, %d' % (s(sSo), s(sT0), 32 * 1152 * q))
            e('s_add_u32 m0, %s, %d' % (s(sT1), 4096 * q))
            e('buffer_load_dwordx4 %s, %s, %s offen lds' % (v(vDX), s(SA, 4), s(sSo)))
    A.label('L_NOX4')
    e('s_mul_i32 %s, %s, %d' % (s(sT0), s(sKc), 64 * 3456))
    e('s_add_u32 %s, %s, %s' % (s(sT0), s(sT0), s(sWrow)))
    e('s_add_u32 %s, %s, %s' % (s(sT1), s(sRing), s(sLw)))
    e('s_mov_b64 exec, %s' % s(sEx, 2))
    for q in range(8):
        e('s_add_u32 %s, %s, %d' % (s(sSo), s(sT0), 8 * 3456 * q))
        e('s_add_u32 m0, %s, %d' % (s(sT1), 3456 * q))
        e('buffer_load_dwordx4 %s, %s, %s offen lds' % (v(vDW), s(SB, 4), s(sSo)))
    e('s_mov_b64 exec, -1')
    A.label('L_SKIP')
    e('s_lshl_b32 %s, %s, 4' % (s(sT0), s(sJ)))
    e('s_or_b32 %s, %s, %s' % (s(sT0), s(sT0), s(sCnt)))
    e('s_cmp_eq_u32 %s, %d' % (s(sT0), OPT.get('nld', 4)))
    e('s_cbranch_scc0 L_NN1')
    mksrd(A, SD, pDbg, 256)
    e('v_mov_b32 %s, 0' % v(vLZ))
    e('buffer_load_dwordx2 %s, %s, %s, 0 offen offset:%d sc1' % (v(vLN + 2, 2), v(vLZ), s(SD, 4), NONCE))
    A.label('L_NN1')
    e('s_cmp_eq_u32 %s, %d' % (s(sT0), OPT.get('nld', 4) + 2))
    e('s_cbranch_scc0 L_NN2')
    flag_srd(SC)
    xcc_ids(sLf, sOk)
    e('s_lshl4_add_u32 %s, %s, %s' % (s(sT0), s(sRb), s(sHgb)))
    e('s_lshl_b32 %s, %s, 7' % (s(sT0), s(sT0)))
    e('s_add_u32 %s, %s, %s' % (s(sT0), s(sT0), s(sLf)))
    e('v_mov_b32 %s, 0' % v(vLZ))
    e('s_mov_b64 exec, 1')
    e('buffer_store_dwordx2 %s, %s, %s, %s offen offset:32' % (v(vLN + 2, 2), v(vLZ), s(SC, 4), s(sT0)))
    e('s_mov_b64 exec, -1')
    A.label('L_NN2')
    e('s_add_u32 %s, %s, 1' % (s(sKc), s(sKc)))
    e('s_cmp_eq_u32 %s, 9' % s(sKc))
    e('s_cselect_b32 %s, 0, %s' % (s(sKc), s(sKc)))
    e('s_add_u32 %s, %s, %d' % (s(sRing), s(sRing), S))
    e('s_cmp_eq_u32 %s, %d' % (s(sRing), 3 * S))
    e('s_cselect_b32 %s, 0, %s' % (s(sRing), s(sRing)))
    e('s_add_u32 %s, %s, 1' % (s(sCnt), s(sCnt)))
    e('s_cmp_lt_u32 %s, 9' % s(sCnt))
    e('s_cbranch_scc1 L_LOOP')
    ST.mark()
    def snapshot(lab):
        e('s_cmp_eq_u32 %s, 0' % s(sJ))
        e('s_cbranch_scc0 ' + lab)
        flag_srd(SC)
        xcc_ids(sLf, sOk)
        e('s_lshl_b32 %s, %s, 12' % (s(sT0), s(sXcd)))
        e('s_add_u32 %s, %s, %s' % (s(sT0), s(sT0), s(sLf)))
        e('v_and_b32 %s, 31, %s' % (v(vLZ), v(vLane)))
        e('v_lshlrev_b32 %s, 7, %s' % (v(vLZ), v(vLZ)))
        e('buffer_load_dwordx2 %s, %s, %s, %s offen offset:32 sc1' % (v(vSn, 2), v(vLZ), s(SC, 4), s(sT0)))
        A.label(lab)
    def put_mode(lab):
        e('s_cmp_eq_u32 %s, 0' % s(sJ))
        e('s_cbranch_scc0 ' + lab)
        e('v_xor_b32 %s, %s, %s' % (v(vSn), v(vSn), v(vLN + 2)))
        e('v_xor_b32 %s, %s, %s' % (v(vSn + 1), v(vSn + 1), v(vLN + 3)))
        e('v_or_b32 %s, %s, %s' % (v(vSn), v(vSn), v(vSn + 1)))
        e('v_cmp_ne_u32 vcc, 0, %s' % v(vSn))
        e('v_and_b32 %s, %s, %s' % (v(vLN), s(sOk), v(vLN + 2)))
        e('s_cmp_eq_u64 vcc, 0')
        e('s_cselect_b32 %s, 1, 0' % s(sMode))
        if OPT.get('noloc'):
            e('s_bfe_u32 %s, %s, 0x%x' % (s(sT0), s(sIdx), 0x10000 | (OPT['noloc'] - 1)))
            e('s_and_b32 %s, %s, %s' % (s(sMode), s(sMode), s(sT0)))
        e('v_and_b32 %s, %s, %s' % (v(vLN), s(sMode), v(vLN)))
        e('v_mov_b32 %s, %d' % (v(vLZ), MODEW))
        e('ds_write_b128 %s, %s' % (v(vLZ), v(vLN, 4)))
        e('s_waitcnt lgkmcnt(0)')
        A.label(lab)
    phase2_ids()
    e('s_cmp_ge_u32 %s, 3' % s(sL2))
    e('s_cbranch_scc1 L_NOP2')
    mksrd(A, SA, pWoA, 576 * 1152)
    mksrd(A, SB, pWoB, 576 * 1152)
    q_, col = vT[0], vT[1]
    e('v_lshrrev_b32 %s, 3, %s' % (v(q_), v(vLane)))
    e('v_bfe_u32 %s, %s, 1, 2' % (v(vT[2]), v(vLane)))
    e('v_lshrrev_b32 %s, 4, %s' % (v(vT[3]), v(vLane)))
    e('v_xor_b32 %s, %s, %s' % (v(vT[2]), v(vT[2]), v(vT[3])))
    e('v_and_b32 %s, 1, %s' % (v(vT[3]), v(vLane)))
    e('v_lshl_add_u32 %s, %s, 1, %s' % (v(col), v(vT[2]), v(vT[3])))
    e('v_lshlrev_b32 %s, 4, %s' % (v(col), v(col)))
    e('s_lshl_b32 %s, %s, 7' % (s(sT0), s(sNb)))
    e('v_add_u32 %s, %s, %s' % (v(col), s(sT0), v(col)))
    e('s_movk_i32 %s, 1152' % s(sT1))
    e('v_mad_u32_u24 %s, %s, %s, %s' % (v(vDM), v(q_), s(sT1), v(col)))
    e('v_lshrrev_b32 %s, 2, %s' % (v(vT[2]), v(q_)))
    e('v_mul_u32_u24 %s, 68, %s' % (v(vT[2]), v(vT[2])))
    e('v_add_u32 %s, %s, %s' % (v(vT[2]), v(vT[2]), v(q_)))
    e('v_mad_u32_u24 %s, %s, %s, %s' % (v(vDR), v(vT[2]), s(sT1), v(col)))
    e('s_and_b32 %s, %s, 1' % (s(sT0), s(sJ)))
    e('s_lshr_b32 %s, %s, 1' % (s(sT2), s(sJ)))
    e('s_mul_i32 %s, %s, 20' % (s(sWm), s(sT0)))
    e('s_lshl3_add_u32 %s, %s, %s' % (s(sWm), s(sT2), s(sWm)))
    e('s_sub_u32 %s, %s, 72' % (s(sWm), s(sWm)))
    e('s_mul_i32 %s, %s, 1152' % (s(sWm), s(sWm)))
    e('s_mul_i32 %s, %s, 36' % (s(sWr), s(sT0)))
    e('s_mul_i32 %s, %s, 144' % (s(sT2), s(sT2)))
    e('s_add_u32 %s, %s, %s' % (s(sWr), s(sWr), s(sT2)))
    e('s_add_u32 %s, %s, 16' % (s(sWr), s(sWr)))
    e('s_mul_i32 %s, %s, 1152' % (s(sWr), s(sWr)))
    e('s_mov_b32 %s, %s' % (s(sCh), s(sRot2)))
    e('s_add_u32 %s, %s, %d' % (s(sPos), s(sLx), WO0))
    e('s_mov_b32 %s, 0' % s(sCnt))
    snapshot('L_WO')
    e('s_cmp_eq_u32 %s, 1' % s(sCnt))
    e('s_cbranch_scc0 L_G1')
    e('s_waitcnt vmcnt(16)')
    e('s_barrier')
    A.label('L_G1')
    e('s_cmp_eq_u32 %s, 3' % s(sCnt))
    e('s_cbranch_scc0 L_G2')
    e('s_waitcnt vmcnt(12)')
    e('s_barrier')
    A.label('L_G2')
    e('s_cmp_eq_u32 %s, 6' % s(sCnt))
    e('s_cbranch_scc0 L_G3')
    put_mode('L_G3B')
    e('s_barrier')
    A.label('L_G3')
    e('s_mul_i32 %s, %s, %d' % (s(sT0), s(sCh), 72 * 1152))
    e('s_add_u32 %s, %s, %s' % (s(sT0), s(sT0), s(sWm)))
    e('s_cmp_eq_u32 %s, 0' % s(sCh))
    e('s_cselect_b32 %s, %s, %s' % (s(sT0), s(sWr), s(sT0)))
    e('s_cselect_b64 %s, -1, 0' % s(sM, 2))
    e('s_mov_b32 %s, %d' % (s(sStep), 36 * 1152))
    e('s_cselect_b32 %s, %d, %s' % (s(sStep), 288 * 1152, s(sStep)))
    e('v_cndmask_b32 %s, %s, %s, %s' % (v(vDC), v(vDM), v(vDR), s(sM, 2)))
    e('s_add_u32 %s, %s, %s' % (s(sT1), s(sT0), s(sStep)))
    for k2 in range(4):
        e('s_add_u32 m0, %s, %d' % (s(sPos), 4096 * k2))
        e('buffer_load_dwordx4 %s, %s, %s offen lds' % (v(vDC), s(SA if k2 < 2 else SB, 4), s(sT0 if k2 % 2 == 0 else sT1)))
    e('s_add_u32 %s, %s, 1' % (s(sCh), s(sCh)))
    e('s_cmp_eq_u32 %s, 9' % s(sCh))
    e('s_cselect_b32 %s, 0, %s' % (s(sCh), s(sCh)))
    e('s_add_u32 %s, %s, 16384' % (s(sPos), s(sPos)))
    e('s_cmp_eq_u32 %s, 0' % s(sCnt))
    e('s_cselect_b32 %s, %s, %s' % (s(sPos), s(sLx), s(sPos)))
    e('s_add_u32 %s, %s, 1' % (s(sCnt), s(sCnt)))
    e('s_cmp_lt_u32 %s, 9' % s(sCnt))
    e('s_cbranch_scc1 L_WO')
    ST.mark()
    sCp, sKh, sSt = sx + 3, sx + 1, sx + 2
    e('s_and_b32 %s, %s, 1' % (s(sT0), s(sJ)))
    e('s_lshr_b32 %s, %s, 1' % (s(sKh), s(sJ)))
    e('s_mov_b32 %s, %s' % (s(sCp), s(sT0)))
    vOa = [vDX, vDXh, vDW]; vSt = vDM; vXa = vDR
    acc2 = [[R.alloc(4) for c2 in range(2)] for t in range(NT)]
    Of = [[R.alloc(4) for t in range(NT)] for b in range(2)]
    vWa = [Of[1][4] + k for k in range(3)]; vWb = [Of[1][5] + k for k in range(3)]
    Wr = [[[R.alloc(4) for c2 in range(2)] for kb in range(2)] for i in range(9)]
    g, r4, c4 = vT[0], vT[1], vT[2]
    e('v_lshrrev_b32 %s, 4, %s' % (v(g), v(vLane)))
    e('v_bfe_u32 %s, %s, 2, 2' % (v(r4), v(vLane)))
    e('v_and_b32 %s, 3, %s' % (v(c4), v(vLane)))
    t3, t4_ = vT[3], vDC
    e('v_lshrrev_b32 %s, 1, %s' % (v(t3), v(g)))
    e('v_lshlrev_b32 %s, 4, %s' % (v(t3), v(t3)))
    e('v_and_b32 %s, 1, %s' % (v(t4_), v(g)))
    e('v_lshl_add_u32 %s, %s, 2, %s' % (v(t4_), v(t4_), v(r4)))
    e('v_add_u32 %s, %s, %s' % (v(t3), v(t3), v(t4_)))
    e('v_lshrrev_b32 %s, 1, %s' % (v(t4_), v(t4_)))
    e('s_lshl_b32 %s, %s, 1' % (s(sT0), s(sCp)))
    e('v_xor_b32 %s, %s, %s' % (v(t4_), s(sT0), v(t4_)))
    e('v_lshlrev_b32 %s, 5, %s' % (v(t4_), v(t4_)))
    e('v_lshl_add_u32 %s, %s, 7, %s' % (v(t3), v(t3), v(t4_)))
    e('v_lshl_add_u32 %s, %s, 3, %s' % (v(t3), v(c4), v(t3)))
    e('s_lshl_b32 %s, %s, 13' % (s(sT0), s(sKh)))
    e('v_add_u32 %s, %s, %s' % (v(vWa[0]), s(sT0), v(t3)))
    e('v_xor_b32 %s, 32, %s' % (v(vWb[0]), v(vWa[0])))
    for k in (1, 2):
        e('v_add_u32 %s, %d, %s' % (v(vWa[k]), 65536 * k, v(vWa[0])))
        e('v_add_u32 %s, %d, %s' % (v(vWb[k]), 65536 * k, v(vWb[0])))
    e('s_lshl_b32 %s, %s, 11' % (s(sT0), s(sKh)))
    e('v_lshlrev_b32 %s, 4, %s' % (v(t3), v(vLane)))
    e('v_add_u32 %s, %s, %s' % (v(vOa[0]), s(sT0), v(t3)))
    for k in (1, 2):
        e('v_add_u32 %s, %d, %s' % (v(vOa[k]), 61440 * k, v(vOa[0])))
    e('s_mul_i32 %s, %s, %d' % (s(sT0), s(sCp), CHB // 2))
    e('s_add_u32 %s, %s, %d' % (s(sT0), s(sT0), 3 * CHB))
    e('v_add_u32 %s, %s, %s' % (v(vXa), s(sT0), v(t3)))
    e('s_mul_i32 %s, %s, %d' % (s(sSt), s(sMb), 16 * 1152))
    e('s_lshl_b32 %s, %s, 7' % (s(sT0), s(sNb)))
    e('s_add_u32 %s, %s, %s' % (s(sSt), s(sSt), s(sT0)))
    e('s_lshl_b32 %s, %s, 6' % (s(sT0), s(sCp)))
    e('s_add_u32 %s, %s, %s' % (s(sSt), s(sSt), s(sT0)))
    e('v_and_b32 %s, 15, %s' % (v(t3), v(vLane)))
    e('v_mul_u32_u24 %s, 1152, %s' % (v(t3), v(t3)))
    e('v_and_b32 %s, 1, %s' % (v(t4_), v(g)))
    e('v_lshl_add_u32 %s, %s, 5, %s' % (v(t3), v(t4_), v(t3)))
    e('v_lshrrev_b32 %s, 1, %s' % (v(t4_), v(g)))
    e('v_lshl_add_u32 %s, %s, 4, %s' % (v(vSt), v(t4_), v(t3)))
    mksrd(A, SC, pOut, 2048 * 1152)
    for t in range(NT):
        for c2 in range(2):
            for k in range(4): e('v_mov_b32 %s, 0' % v(acc2[t][c2] + k))
    e('s_waitcnt vmcnt(0)')
    ST.mark()
    e('s_barrier')
    ST.mark()
    for i in range(9):
        pos = WO0 if i == 0 else 16384 * (i - 1)
        for kb in range(2):
            for c2 in range(2):
                for j2 in range(2):
                    off = pos + kb * 4096 + j2 * 1024
                    e('ds_read_b64_tr_b16 %s, %s offset:%d' % (v(Wr[i][kb][c2] + 2 * j2, 2), v((vWa, vWb)[c2][off >> 16]), off & 65535))
    e('s_waitcnt lgkmcnt(0)')
    ST.mark()
    e('s_barrier')
    ST.mark()
    Q = LQ(A)
    def oread(i, kb, t):
        off = CHB * (i % 6) + t * 4096 + kb * 1024
        k = off // 61440
        if OPT.get('p2nord'): return
        Q.rd('ds_read_b128 %s, %s offset:%d' % (v(Of[kb][t], 4), v(vOa[k]), off - 61440 * k), Of[kb][t], 4)
    def omf(i, kb, fills):
        for t in range(NT):
            Q.need((Of[kb][t], 4))
            for c2 in range(2):
                if not OPT.get('p2nomf'): e('v_mfma_f32_16x16x32_bf16 %s, %s, %s, %s' % (v(acc2[t][c2], 4), v(Wr[i][kb][c2], 4), v(Of[kb][t], 4), v(acc2[t][c2], 4)))
                if fills: fills.pop(0)()
        while fills: fills.pop(0)()
    e('s_barrier')
    for t in range(NT): oread(0, 0, t)
    for i in range(9):
        omf(i, 0, [lambda t=t: oread(i, 1, t) for t in range(NT)])
        if i < 8:
            fl = [lambda: None, lambda: (Q.drain(), e('s_barrier'))] + [lambda t=t: oread(i + 1, 0, t) for t in range(NT)]
        else: fl = []
        omf(i, 1, fl)
    ST.mark()
    def finish(own, other, lab):
        for t in other:
            for c2 in range(2):
                e('ds_write_b128 %s, %s offset:%d' % (v(vXa), v(acc2[t][c2], 4), (2 * t + c2) * 1024))
        e('s_waitcnt lgkmcnt(0)')
        e('s_barrier')
        tmp = Of[0]
        Q.q = []
        for n, t in enumerate(own):
            for c2 in range(2):
                Q.rd('ds_read_b128 %s, %s offset:%d' % (v(tmp[2 * n + c2], 4), v(vXa), (2 * t + c2) * 1024), tmp[2 * n + c2], 4)
        for n, t in enumerate(own):
            o = Of[1][1 + n]
            for c2 in range(2):
                Q.need((tmp[2 * n + c2], 4))
                for k in range(4):
                    e('v_add_f32 %s, %s, %s' % (v(acc2[t][c2] + k), v(acc2[t][c2] + k), v(tmp[2 * n + c2] + k)))
                e('v_cvt_pk_bf16_f32 %s, %s, %s' % (v(o + 2 * c2), v(acc2[t][c2]), v(acc2[t][c2] + 1)))
                e('v_cvt_pk_bf16_f32 %s, %s, %s' % (v(o + 2 * c2 + 1), v(acc2[t][c2] + 2), v(acc2[t][c2] + 3)))
            e('v_permlane16_swap_b32 %s, %s' % (v(o), v(o + 2)))
            e('v_permlane16_swap_b32 %s, %s' % (v(o + 1), v(o + 3)))
            if t == 0:
                e('s_cmp_lg_u32 %s, 0' % s(sL2))
                e('s_cbranch_scc1 L_DONE')
            e('s_add_u32 %s, %s, %d' % (s(sT0), s(sSt), t * 16 * 1152))
            e('buffer_store_dwordx4 %s, %s, %s, %s offen' % (v(o, 4), v(vSt), s(SC, 4), s(sT0)))
    e('s_cmp_eq_u32 %s, 0' % s(sKh))
    e('s_cbranch_scc0 L_FIN1')
    finish([1, 2, 0], [3, 4, 5], 'a')
    e('s_branch L_DONE')
    A.label('L_FIN1')
    A.barrier_hazards()
    finish([3, 4, 5], [0, 1, 2], 'b')
    A.label('L_DONE')
    ST.finish(SD, pWs, vT[0])
    e('s_endpgm')
    A.label('L_NOP2')
    snapshot('L_NP2A')
    e('s_waitcnt vmcnt(12)')
    e('s_barrier')
    e('s_waitcnt vmcnt(0)')
    put_mode('L_NP2B')
    e('s_barrier')
    e('s_endpgm')

    A.label('C_START')
    A.hist = []
    sRg, sP, sCnt, sRing, sDelta, sC, sGs, sSt0, sSr0, sNlo, sNhi, sSpin, sCh, sOb, sLd = range(sx, sx + 15)
    sMpar, sMc0, sMc1, sFirst = 78, 80, 82, 84
    sG = [86, 88, 90, 92]
    SO, SG_, SDb, SF = SA, SB, SC, SD
    R = RegAlloc(2, 254)
    vT = [R.alloc() for _ in range(6)]
    vAX = [R.alloc(), R.alloc()]
    vAW = R.alloc(); vAR = [R.alloc() for _ in range(4)]
    vFlag = R.alloc(); vC512 = R.alloc(); vDl = R.alloc()
    vSel = R.alloc(2); vN = R.alloc(2)
    vPP0, vPC0, vPP1, vPC1, vMG0, vNeg, vBp, vStM, vStR, vZ = [R.alloc() for _ in range(10)]
    names = ['Ka', 'Kb', 'Va', 'Vb', 'R', 'Qa', 'Qb']
    acc = [{n: R.alloc(4) for n in (names[:5] if t == 0 else names)} for t in range(5)]
    acc_lo = acc[0]['Ka']; acc_hi = acc[4]['Qb'] + 4
    Wf = {n: R.alloc(4) for n in names}
    Xf = [[R.alloc(4) for t in range(5)] for b in range(2)]
    buf_lo = Wf['Ka']
    ST.start()
    e('s_and_b32 %s, %s, 1' % (s(sRg), s(sWv)))
    e('s_lshr_b32 %s, %s, 1' % (s(sP), s(sWv)))
    e('v_lshlrev_b32 %s, 3, v0' % v(vT[5]))
    e('v_mov_b32 %s, 0' % v(vZ))
    e('s_waitcnt lgkmcnt(0)')
    mksrd(A, SG_, pG, 1152)
    vG = Xf[1][0]
    e('buffer_load_dwordx2 %s, %s, %s, 0 offen' % (v(vG, 2), v(vT[5]), s(SG_, 4)))
    mksrd(A, SDb, pDbg, 256)
    e('v_mov_b32 %s, 0' % v(vN))
    e('s_or_b32 %s, s2, %s' % (s(sT0), s(sWv)))
    e('s_cmp_eq_u32 %s, 0' % s(sT0))
    e('s_cbranch_scc0 C_NONONCE')
    e('s_memrealtime %s' % s(sM, 2))
    e('s_waitcnt lgkmcnt(0)')
    e('s_or_b32 %s, %s, 1' % (s(sM), s(sM)))
    e('v_mov_b32 %s, %s' % (v(vN), s(sM)))
    e('v_mov_b32 %s, %s' % (v(vN + 1), s(sM + 1)))
    e('buffer_store_dwordx2 %s, %s, %s, 0 offen offset:%d sc1' % (v(vN, 2), v(vZ), s(SDb, 4), NONCE))
    A.label('C_NONONCE')
    cLf, cOk, cMode = 4, 5, 6
    xcc_ids(cLf, cOk)
    mksrd(A, SO, pWs, GOFF + OP_BYTES)
    flag_srd(SF)
    i15, g, r4, c4 = vT[0], vT[1], vT[2], vT[3]
    e('v_and_b32 %s, 15, %s' % (v(i15), v(vLane)))
    e('v_lshrrev_b32 %s, 4, %s' % (v(g), v(vLane)))
    e('v_bfe_u32 %s, %s, 2, 2' % (v(r4), v(vLane)))
    e('v_and_b32 %s, 3, %s' % (v(c4), v(vLane)))
    e('v_lshrrev_b32 %s, 1, %s' % (v(vT[4]), v(i15)))
    e('v_xor_b32 %s, %s, %s' % (v(vT[4]), v(vT[4]), v(g)))
    e('v_lshlrev_b32 %s, 4, %s' % (v(vT[4]), v(vT[4])))
    e('v_lshl_add_u32 %s, %s, 7, %s' % (v(vT[4]), v(i15), v(vT[4])))
    e('s_lshl_b32 %s, %s, 13' % (s(sT0), s(sRg)))
    e('v_add_u32 %s, %s, %s' % (v(vAX[0]), s(sT0), v(vT[4])))
    e('v_xor_b32 %s, 64, %s' % (v(vAX[1]), v(vAX[0])))
    e('v_lshlrev_b32 %s, 3, %s' % (v(vT[4]), v(g)))
    e('v_lshl_add_u32 %s, %s, 1, %s' % (v(vT[4]), v(r4), v(vT[4])))
    e('v_mul_u32_u24 %s, 432, %s' % (v(vT[4]), v(vT[4])))
    e('s_mul_i32 %s, %s, 72' % (s(sT0), s(sP)))
    e('s_add_u32 %s, %s, %d' % (s(sT0), s(sT0), WOFF))
    e('v_add_u32 %s, %s, %s' % (v(vT[4]), s(sT0), v(vT[4])))
    e('v_lshl_add_u32 %s, %s, 3, %s' % (v(vAW), v(c4), v(vT[4])))
    setmask(A, sM, lambda l: (l & 3) == 1)
    e('v_mov_b32 %s, 32' % v(vT[5]))
    e('v_mov_b32 %s, %d' % (v(vDl), 320))
    e('v_cndmask_b32 %s, %s, %s, %s' % (v(vT[5]), v(vT[5]), v(vDl), s(sM, 2)))
    setmask(A, sM, lambda l: (l & 3) == 2)
    e('v_mov_b32 %s, %d' % (v(vDl), 176))
    e('v_cndmask_b32 %s, %s, %s, %s' % (v(vT[5]), v(vT[5]), v(vDl), s(sM, 2)))
    e('v_add_u32 %s, %s, %s' % (v(vT[4]), v(vT[4]), v(vT[5])))
    e('v_lshl_add_u32 %s, %s, 3, %s' % (v(vT[5]), v(g), v(r4)))
    e('v_lshlrev_b32 %s, 3, %s' % (v(vT[5]), v(vT[5])))
    setmask(A, sM, lambda l: (l & 3) == 3)
    for ks in range(2):
        for j2 in range(2):
            a = vAR[ks * 2 + j2]
            e('v_add_u32 %s, %d, %s' % (v(a), ks * 13824 + j2 * 432, v(vT[4])))
            e('v_add_u32 %s, %d, %s' % (v(vDl), GB + (32 * ks + 4 * j2) * 8, v(vT[5])))
            e('v_cndmask_b32 %s, %s, %s, %s' % (v(a), v(a), v(vDl), s(sM, 2)))
    e('v_cndmask_b32 %s, 1, 0, %s' % (v(vFlag), s(sM, 2)))
    e('v_mov_b32 %s, 512' % v(vDl))
    e('v_cndmask_b32 %s, 0, %s, %s' % (v(vC512), v(vDl), s(sM, 2)))
    lo, hi = vT[4], vT[5]
    e('v_mov_b32 %s, 0x3f80' % v(lo)); e('v_mov_b32 %s, 1.0' % v(hi))
    def sel2(dst, f_lo, f_hi):
        e('v_mov_b32 %s, 0' % v(dst))
        if f_lo:
            setmask(A, sM, f_lo); e('v_cndmask_b32 %s, %s, %s, %s' % (v(dst), v(dst), v(lo), s(sM, 2)))
        if f_hi:
            setmask(A, sM, f_hi); e('v_cndmask_b32 %s, %s, %s, %s' % (v(dst), v(dst), v(hi), s(sM, 2)))
    sel2(vSel, lambda l: ((l >> 4) == 1 and (l & 7) == 0) or ((l >> 4) == 2 and (l & 3) >= 2), lambda l: (l >> 4) == 1 and (l & 7) == 1)
    sel2(vSel + 1, lambda l: (l >> 4) == 1 and (l & 7) == 4, lambda l: (l >> 4) == 1 and (l & 7) == 5)
    setmask(A, sMpar, lambda l: l & 1)
    setmask(A, sMc0, lambda l: 4 * (l >> 4) + (l & 1) <= (l & 15))
    setmask(A, sMc1, lambda l: 4 * (l >> 4) + 2 + (l & 1) <= (l & 15))
    e('v_mov_b32 %s, 0x0c0c0302' % v(lo)); e('v_mov_b32 %s, 0x03020c0c' % v(hi))
    e('v_cndmask_b32 %s, %s, %s, %s' % (v(lo), v(lo), v(hi), s(sMpar, 2)))
    e('v_mov_b32 %s, 0x0c0c0c0c' % v(hi))
    e('v_cndmask_b32 %s, %s, %s, %s' % (v(vPC0), v(hi), v(lo), s(sMc0, 2)))
    e('v_cndmask_b32 %s, %s, %s, %s' % (v(vPP0), v(lo), v(hi), s(sMc0, 2)))
    e('v_cndmask_b32 %s, %s, %s, %s' % (v(vPC1), v(hi), v(lo), s(sMc1, 2)))
    e('v_cndmask_b32 %s, %s, %s, %s' % (v(vPP1), v(lo), v(hi), s(sMc1, 2)))
    for k in range(4): setmask(A, sG[k], lambda l: (l >> 4) == k)
    e('v_cndmask_b32 %s, 0, -1, %s' % (v(vMG0), s(sG[0], 2)))
    e('v_mov_b32 %s, %s' % (v(vNeg), f32(-1e9 * math.sqrt(18.0))))
    e('v_lshlrev_b32 %s, 2, %s' % (v(vBp), v(i15)))
    e('v_add_u32 %s, 192, %s' % (v(vBp), v(vBp)))
    e('s_or_b32 %s, %s, %s' % (s(sT0), s(sRb), s(sRg)))
    e('s_cmp_eq_u32 %s, 0' % s(sT0))
    e('s_cselect_b64 %s, -1, 0' % s(sFirst, 2))
    e('s_mov_b32 %s, %s' % (s(sC), f32(18.0 ** -0.5 * math.log2(math.e))))
    e('s_cmp_eq_u32 %s, 0' % s(sBr))
    e('s_mov_b32 %s, %s' % (s(sGs), f32(math.log2(math.e))))
    e('s_cselect_b32 %s, %s, %s' % (s(sGs), f32(-math.log2(math.e)), s(sGs)))
    e('s_lshl_b32 %s, %s, 3' % (s(sT0), s(sRb)))
    e('s_lshl2_add_u32 %s, %s, %s' % (s(sT0), s(sRg), s(sT0)))
    e('s_mul_i32 %s, %s, 36864' % (s(sT0), s(sT0)))
    e('s_lshl_b32 %s, %s, 2' % (s(sT1), s(sHg)))
    e('s_lshl1_add_u32 %s, %s, %s' % (s(sT1), s(sBr), s(sT1)))
    e('s_add_u32 %s, %s, %s' % (s(sT1), s(sT1), s(sP)))
    e('s_add_u32 %s, %s, 4' % (s(sT1), s(sT1)))
    e('s_lshl_b32 %s, %s, 10' % (s(sT1), s(sT1)))
    e('s_add_u32 %s, %s, %s' % (s(sSt0), s(sT0), s(sT1)))
    e('s_lshl_b32 %s, %s, 8' % (s(sT1), s(sHgb)))
    e('s_lshl3_add_u32 %s, %s, %s' % (s(sT1), s(sP), s(sT1)))
    e('s_add_u32 %s, %s, %s' % (s(sSr0), s(sT0), s(sT1)))
    e('v_lshlrev_b32 %s, 4, %s' % (v(vStM), v(vLane)))
    e('v_lshrrev_b32 %s, 1, %s' % (v(lo), v(g)))
    e('v_mul_u32_u24 %s, 36864, %s' % (v(lo), v(lo)))
    e('v_lshl_add_u32 %s, %s, 4, %s' % (v(lo), v(i15), v(lo)))
    e('v_and_b32 %s, 1, %s' % (v(hi), v(g)))
    e('v_lshl_add_u32 %s, %s, 2, %s' % (v(vStR), v(hi), v(lo)))
    vPA, vPD = 250, 251
    e('s_sub_u32 %s, %s, %s' % (s(sT1), s(sSr0), s(sSt0)))
    e('s_mul_i32 %s, %s, 120' % (s(sT0), s(sP)))
    e('s_add_u32 %s, %s, %s' % (s(sT1), s(sT1), s(sT0)))
    e('v_and_b32 %s, 7, %s' % (v(lo), v(vLane)))
    e('v_lshlrev_b32 %s, 7, %s' % (v(lo), v(lo)))
    e('v_lshrrev_b32 %s, 3, %s' % (v(hi), v(vLane)))
    e('v_mov_b32 %s, %s' % (v(vPA), s(sT1)))
    e('v_cmp_gt_u32 vcc, 32, %s' % v(vLane))
    e('v_cndmask_b32 %s, %s, %s, vcc' % (v(lo), v(vPA), v(lo)))
    e('v_cndmask_b32 %s, %s, %s, vcc' % (v(hi), v(c4), v(hi)))
    e('v_mul_u32_u24 %s, 36864, %s' % (v(hi), v(hi)))
    e('v_add3_u32 %s, %s, %s, %s' % (v(vPA), v(lo), v(hi), s(sSt0)))
    phase2_ids()
    for r in range(acc_lo, acc_hi):
        e('v_mov_b32 %s, 0' % v(r))
    e('s_lshl_b32 %s, %s, 4' % (s(sT0), s(sRot)))
    e('v_subrev_u32 %s, %s, v0' % (v(lo), s(sT0)))
    e('v_add_u32 %s, 144, %s' % (v(hi), v(lo)))
    e('v_cmp_gt_i32 vcc, 0, %s' % v(lo))
    e('v_cndmask_b32 %s, %s, %s, vcc' % (v(lo), v(lo), v(hi)))
    e('v_mov_b32 %s, 144' % v(hi))
    e('v_cmp_gt_u32 vcc, 144, v0')
    e('v_cndmask_b32 %s, %s, %s, vcc' % (v(lo), v(hi), v(lo)))
    e('v_lshlrev_b32 %s, 5, %s' % (v(lo), v(lo)))
    e('v_add_u32 %s, %d, %s' % (v(lo), GB, v(lo)))
    ST.mark()
    e('s_or_b32 %s, s2, %s' % (s(sT0), s(sWv)))
    e('s_cbranch_scc0 C_GW0')
    e('s_waitcnt vmcnt(0)')
    A.label('C_GW0')
    e('s_waitcnt vmcnt(1)')
    gq = Xf[1][1]
    e('s_mov_b32 %s, 0x01000100' % s(sT0)); e('s_mov_b32 %s, 0x03020302' % s(sT1))
    for k in range(2):
        e('v_perm_b32 %s, %s, %s, %s' % (v(gq + 4 * k), v(vG + k), v(vG + k), s(sT0)))
        e('v_perm_b32 %s, %s, %s, %s' % (v(gq + 4 * k + 2), v(vG + k), v(vG + k), s(sT1)))
        e('v_mov_b32 %s, %s' % (v(gq + 4 * k + 1), v(gq + 4 * k)))
        e('v_mov_b32 %s, %s' % (v(gq + 4 * k + 3), v(gq + 4 * k + 2)))
    e('ds_write_b128 %s, %s' % (v(lo), v(gq, 4)))
    e('ds_write_b128 %s, %s offset:16' % (v(lo), v(gq + 4, 4)))
    e('s_mov_b32 %s, 0' % s(sCnt)); e('s_mov_b32 %s, 0' % s(sRing))
    if OPT.get('tw'):
        e('s_mov_b64 exec, 1')
        e('buffer_load_dword %s, %s, %s, 0 offen sc1' % (v(vPD), v(vPA), s(SO, 4)))
        e('buffer_load_dword %s, %s, %s, %s offen offset:64' % (v(vPD), v(vZ), s(SF, 4), s(cLf)))
        e('s_mov_b64 exec, -1')
    e('s_waitcnt lgkmcnt(0)')
    ST.mark()
    e('s_barrier')
    ST.mark()
    toff = {'Qa': 0, 'Qb': 40, 'Ka': 144, 'Kb': 184, 'Va': 288, 'Vb': 328}
    Q = LQ(A)
    def xread(ks, t):
        if OPT.get('nox'): return
        Q.rd('ds_read_b128 %s, %s offset:%d' % (v(Xf[ks][t], 4), v(vAX[ks]), 2048 * t), Xf[ks][t], 4)
    def wread(ks, n):
        if OPT.get('now'): return
        for j2 in range(2):
            if n == 'R': Q.rd('ds_read_b64_tr_b16 %s, %s' % (v(Wf[n] + 2 * j2, 2), v(vAR[ks * 2 + j2])), Wf[n] + 2 * j2, 2)
            else: Q.rd('ds_read_b64_tr_b16 %s, %s offset:%d' % (v(Wf[n] + 2 * j2, 2), v(vAW), ks * 13824 + j2 * 432 + toff[n]), Wf[n] + 2 * j2, 2)
    def group(ks, n, fills=None):
        for t in range(5):
            if n not in acc[t]: continue
            Q.need((Wf[n], 4), (Xf[ks][t], 4))
            d = acc[t][n]
            a, b = (Xf[ks][t], Wf[n]) if n[0] == 'V' else (Wf[n], Xf[ks][t])
            e('v_mfma_f32_16x16x32_bf16 %s, %s, %s, %s' % (v(d, 4), v(a, 4), v(b, 4), v(d, 4)))
            if fills: fills.pop(0)()
        while fills: fills.pop(0)()
    for t in range(5): xread(0, t)
    for n in names: wread(0, n)
    entry_q = [set(x) for x in Q.q]
    A.barrier_hazards()
    A.label('C_LOOP')
    for k, n in enumerate(names):
        group(0, n, [lambda t=t: xread(1, t) for t in range(5)] if k == 0 else None)
        wread(1, n)
    e('s_cmp_eq_u32 %s, %d' % (s(sRing), 2 * S))
    e('s_mov_b32 %s, %d' % (s(sDelta), S))
    e('s_cselect_b32 %s, %d, %s' % (s(sDelta), -2 * S, s(sDelta)))
    e('s_add_u32 %s, %s, %s' % (s(sRing), s(sRing), s(sDelta)))
    e('v_mad_i32_i24 %s, %s, %s, %s' % (v(vDl), v(vFlag), s(sDelta), v(vC512)))
    upd = [lambda a=a: e('v_add_u32 %s, %s, %s' % (v(a), s(sDelta), v(a))) for a in vAX + [vAW]]
    upd += [lambda a=a: e('v_add_u32 %s, %s, %s' % (v(a), v(vDl), v(a))) for a in vAR]
    for k, n in enumerate(names):
        group(1, n, upd if k == 0 else None)
        if k == 0:
            if 9 > OPT.get('pt', 9) >= 0:
                e('s_cmp_eq_u32 %s, %d' % (s(sCnt), OPT.get('pt', 9)))
                e('s_cbranch_scc0 C_NOPT')
                e('s_mov_b32 exec_hi, 15')
                if OPT.get('pt1'): e('s_mov_b64 exec, 1')
                e('buffer_load_dword %s, %s, %s, 0 offen sc1' % (v(vPD), v(vPA), s(SO, 4)))
                e('s_mov_b64 exec, -1')
                A.label('C_NOPT')
            Q.drain()
            e('s_barrier')
            for t in range(5): xread(0, t)
        wread(0, n)
    assert [set(x) for x in Q.q] == entry_q[len(entry_q) - len(Q.q):], 'queue mismatch'
    e('s_add_u32 %s, %s, 1' % (s(sCnt), s(sCnt)))
    e('s_cmp_lt_u32 %s, 9' % s(sCnt))
    e('s_cbranch_scc1 C_LOOP')
    ST.mark()
    Q.drain()
    if OPT.get('pt', 9) == 9:
        e('s_mov_b32 exec_hi, 15')
        e('buffer_load_dword %s, %s, %s, 0 offen sc1' % (v(vPD), v(vPA), s(SO, 4)))
        e('s_mov_b64 exec, -1')
    E = RegAlloc(buf_lo, 250)
    KB = [E.alloc(6) for _ in range(5)]
    VA = E.alloc(10); VB = E.alloc(10); VR = E.alloc(10)
    tg = [E.alloc() for _ in range(4)]
    Tq = [E.alloc(2) for _ in range(5)]
    def pk(dst, src):
        e('v_cvt_pk_bf16_f32 %s, %s, %s' % (v(dst), v(src), v(src + 1)))
        e('v_cvt_pk_bf16_f32 %s, %s, %s' % (v(dst + 1), v(src + 2), v(src + 3)))
    e('v_mov_b32 %s, %d' % (v(vDl), MODEW))
    e('ds_read_b64 %s, %s offset:8' % (v(vN, 2), v(vDl)))
    e('ds_read_b32 %s, %s' % (v(vDl), v(vDl)))
    for t in range(4):
        e('ds_bpermute_b32 %s, %s, %s' % (v(tg[t]), v(vBp), v(acc[t + 1]['R'])))
    e('s_mov_b32 %s, 0x3f803f80' % s(sT0))
    for t in range(5):
        pk(Tq[t], acc[t]['R'])
        e('v_mov_b32 %s, %s' % (v(KB[t] + 2), s(sT0))); e('v_mov_b32 %s, %s' % (v(KB[t] + 3), s(sT0)))
    e('s_waitcnt lgkmcnt(0)')
    for t in range(5):
        e('v_permlane32_swap_b32 %s, %s' % (v(Tq[t]), v(KB[t] + 2)))
        e('v_permlane32_swap_b32 %s, %s' % (v(Tq[t] + 1), v(KB[t] + 3)))
    for t in range(5):
        e('v_mfma_f32_16x16x16_bf16 %s, %s, %s, 0' % (v(acc[t]['R'], 4), v(Tq[t], 2), v(vSel, 2)))
        pk(KB[t], acc[t]['Ka']); pk(KB[t] + 4, acc[t]['Kb'])
    QB = [None] + [acc[t]['Ka'] for t in range(1, 5)]
    for t in range(1, 5):
        assert acc[t]['Kb'] == acc[t]['Ka'] + 4
        pk(QB[t], acc[t]['Qa']); pk(QB[t] + 6, acc[t]['Qb'])
        e('v_and_b32 %s, %s, %s' % (v(QB[t] + 2), v(vMG0), v(Tq[t])))
        e('v_mov_b32 %s, 0' % v(QB[t] + 3)); e('v_mov_b32 %s, 0' % v(QB[t] + 4))
        e('v_and_b32 %s, %s, %s' % (v(QB[t] + 5), v(vMG0), v(Tq[t] + 1)))
    def mf32(d, a, b):
        e('v_mfma_f32_16x16x32_bf16 %s, %s, %s, 0' % (v(d, 4), v(a, 4), v(b, 4)))
    def touch():
        e('s_mov_b32 exec_hi, 15')
        e('buffer_load_dword %s, %s, %s, 0 offen sc1' % (v(vPD), v(vPA), s(SO, 4)))
        e('s_mov_b64 exec, -1')
    if OPT.get('pt') == 10: touch()
    def vconv(t):
        pk(VA + 2 * t, acc[t]['Va']); pk(VB + 2 * t, acc[t]['Vb']); pk(VR + 2 * t, acc[t]['R'])
    def attn(ts, Sreg, pre):
        units = [(t, h) for t in ts for h in range(2)]
        Sp = Sreg[0:4]; Sc = Sreg[4:8]
        for u, (t, h) in enumerate(units):
            mf32(Sp[u], KB[t - 1] + 2 * h, QB[t] + 4 * h); mf32(Sc[u], KB[t] + 2 * h, QB[t] + 4 * h)
        pre()
        for u, (t, h) in enumerate(units):
            for k, mc in ((0, sMc0), (1, sMc1)):
                e('v_cndmask_b32 %s, %s, %s, %s' % (v(Sp[u] + 2 * k), v(Sp[u] + 2 * k), v(Sp[u] + 2 * k + 1), s(sMpar, 2)))
                e('v_cndmask_b32 %s, %s, %s, %s' % (v(Sc[u] + 2 * k), v(Sc[u] + 2 * k), v(Sc[u] + 2 * k + 1), s(sMpar, 2)))
                if t == 1:
                    e('v_cndmask_b32 %s, %s, %s, %s' % (v(Sp[u] + 2 * k), v(Sp[u] + 2 * k), v(vNeg), s(sFirst, 2)))
                e('v_cndmask_b32 %s, %s, %s, %s' % (v(Sp[u] + 2 * k), v(Sp[u] + 2 * k), v(Sc[u] + 2 * k), s(mc, 2)))
            e('v_max_f32 %s, %s, %s' % (v(Sp[u] + 1), v(Sp[u]), v(Sp[u] + 2)))
        m = [Sp[u] + 1 for u in range(4)]
        e('v_permlane32_swap_b32 %s, %s' % (v(m[0]), v(m[1])))
        e('v_permlane32_swap_b32 %s, %s' % (v(m[2]), v(m[3])))
        e('v_max_f32 %s, %s, %s' % (v(m[0]), v(m[0]), v(m[1])))
        e('v_max_f32 %s, %s, %s' % (v(m[2]), v(m[2]), v(m[3])))
        e('v_permlane16_swap_b32 %s, %s' % (v(m[0]), v(m[2])))
        e('v_max_f32 %s, %s, %s' % (v(m[0]), v(m[0]), v(m[2])))
        e('v_mul_f32 %s, %s, %s' % (v(m[0]), s(sC), v(m[0])))
        e('v_mov_b32 %s, %s' % (v(m[2]), v(m[0])))
        e('v_permlane16_swap_b32 %s, %s' % (v(m[0]), v(m[2])))
        e('v_mov_b32 %s, %s' % (v(m[1]), v(m[0])))
        e('v_mov_b32 %s, %s' % (v(m[3]), v(m[2])))
        e('v_permlane32_swap_b32 %s, %s' % (v(m[0]), v(m[1])))
        e('v_permlane32_swap_b32 %s, %s' % (v(m[2]), v(m[3])))
        for u in range(4):
            for k in range(2):
                e('v_fma_f32 %s, %s, %s, -%s' % (v(Sp[u] + 2 * k), v(Sp[u] + 2 * k), s(sC), v(m[u])))
        for u in range(4):
            for k in range(2):
                e('v_exp_f32 %s, %s' % (v(Sp[u] + 2 * k), v(Sp[u] + 2 * k)))
        P = Sc
        for u in range(4):
            for k, (pp, pc) in enumerate(((vPP0, vPC0), (vPP1, vPC1))):
                e('v_perm_b32 %s, %s, %s, %s' % (v(P[u] + k), v(Sp[u] + 2 * k), v(Sp[u] + 2 * k), v(pp)))
                e('v_perm_b32 %s, %s, %s, %s' % (v(P[u] + 2 + k), v(Sp[u] + 2 * k), v(Sp[u] + 2 * k), v(pc)))
        OR = Sp; O = [QB[t] + 4 * h for (t, h) in units]
        for u, (t, h) in enumerate(units):
            mf32(OR[u], VR + 2 * (t - 1), P[u])
        for u, (t, h) in enumerate(units):
            mf32(O[u], (VA, VB)[h] + 2 * (t - 1), P[u])
        for u, (t, h) in enumerate(units):
            e('v_mul_f32 %s, %s, %s' % (v(OR[u] + 2), v(OR[u] + 2), v(tg[t - 1])))
        for u in range(4):
            e('v_rcp_f32 %s, %s' % (v(OR[u] + 2), v(OR[u] + 2)))
        outR = P[0]
        for u, (t, h) in enumerate(units):
            for k in range(4):
                e('v_mul_f32 %s, %s, %s' % (v(O[u] + k), v(OR[u] + 2), v(O[u] + k)))
            o = P[2 + (u >> 1)]
            pk(o + 2 * h, O[u])
            if h == 1:
                e('s_add_u32 %s, %s, %d' % (s(sT0), s(sSt0), 36864 * (t - 1)))
                e('buffer_store_dwordx4 %s, %s, %s, %s offen' % (v(o, 4), v(vStM), s(SO, 4), s(sT0)))
                again.append(('buffer_store_dwordx4 %s, %s, %s, %s offen sc1' % (v(o, 4), v(vStM), s(SO, 4), s(sT0)), sSt0, 36864 * (t - 1)))
        for u in range(4):
            e('s_mov_b64 exec, %s' % s(sG[u], 2))
            e('v_mul_f32 %s, %s, %s' % (v(OR[u]), v(OR[u] + 2), v(OR[u])))
            e('v_mul_f32 %s, %s, %s' % (v(OR[u] + 1), v(OR[u] + 2), v(OR[u] + 1)))
            e('v_cvt_pk_bf16_f32 %s, %s, %s' % (v(outR), v(OR[u]), v(OR[u] + 1)))
        e('s_mov_b64 exec, -1')
        e('s_add_u32 %s, %s, %d' % (s(sT0), s(sSr0), 36864 * (ts[0] - 1)))
        e('buffer_store_dword %s, %s, %s, %s offen' % (v(outR), v(vStR), s(SO, 4), s(sT0)))
        again.append(('buffer_store_dword %s, %s, %s, %s offen sc1' % (v(outR), v(vStR), s(SO, 4), s(sT0)), sSr0, 36864 * (ts[0] - 1)))
    again = []
    S1 = [acc[t][n] for t in range(1, 5) for n in ('Qa', 'Qb')]
    def pre1():
        for t in range(5): vconv(t)
        for t in range(4):
            e('v_mul_f32 %s, %s, %s' % (v(tg[t]), s(sGs), v(tg[t])))
            e('v_exp_f32 %s, %s' % (v(tg[t]), v(tg[t])))
        for t in range(4):
            e('v_add_f32 %s, 1.0, %s' % (v(tg[t]), v(tg[t])))
    attn([1, 2], S1, pre1)
    S2 = [acc[t][n] for t in range(0, 3) for n in ('Va', 'Vb', 'R')][:8]
    attn([3, 4], S2, lambda: None)
    ST.mark()
    e('v_readfirstlane_b32 %s, %s' % (s(cMode), v(vDl)))
    e('s_lshl4_add_u32 %s, %s, %s' % (s(sDelta), s(sRb), s(sHgb)))
    e('s_lshl_b32 %s, %s, 7' % (s(sDelta), s(sDelta)))
    e('s_lshl3_add_u32 %s, %s, %s' % (s(sDelta), s(sWv), s(sDelta)))
    e('s_cmp_eq_u32 %s, 0' % s(cMode))
    e('s_cbranch_scc0 C_ACK')
    for txt, sb, off in again:
        e('s_add_u32 %s, %s, %d' % (s(sT0), s(sb), off + GOFF))
        e(txt)
    e('s_mov_b32 %s, 0' % s(sSpin))
    A.label('C_NSPIN')
    e('s_waitcnt vmcnt(0)')
    e('v_readfirstlane_b32 %s, %s' % (s(sNlo), v(vN)))
    e('s_cmp_lg_u32 %s, 0' % s(sNlo))
    e('s_cbranch_scc1 C_NOK')
    e('buffer_load_dwordx2 %s, %s, %s, 0 offen offset:%d sc1' % (v(vN, 2), v(vZ), s(SDb, 4), NONCE))
    e('s_add_u32 %s, %s, 1' % (s(sSpin), s(sSpin)))
    e('s_cmp_lt_u32 %s, %d' % (s(sSpin), SPIN))
    e('s_cbranch_scc1 C_NSPIN')
    e('s_waitcnt vmcnt(0)')
    A.label('C_NOK')
    e('s_mov_b64 exec, 1')
    e('buffer_store_dwordx2 %s, %s, %s, %s offen sc1' % (v(vN, 2), v(vZ), s(SF, 4), s(sDelta)))
    e('s_mov_b64 exec, -1')
    e('s_cmp_eq_u32 %s, 0' % s(cOk))
    e('s_cbranch_scc1 C_BW')
    e('s_branch C_LF')
    A.label('C_ACK')
    e('s_waitcnt vmcnt(0)')
    A.label('C_LF')
    e('s_add_u32 %s, %s, %s' % (s(sDelta), s(sDelta), s(cLf)))
    e('s_mov_b64 exec, 1')
    e('buffer_store_dwordx2 %s, %s, %s, %s offen' % (v(vN, 2), v(vZ), s(SF, 4), s(sDelta)))
    e('s_mov_b64 exec, -1')
    A.label('C_BW')
    ST.mark()
    e('s_cmp_ge_u32 %s, 3' % s(sL2))
    e('s_cbranch_scc1 C_DONE')
    e('s_barrier')
    e('s_cmp_eq_u32 %s, 0' % s(sWv))
    e('s_cbranch_scc0 C_NOPOLL')
    e('v_readfirstlane_b32 %s, %s' % (s(sNlo), v(vN)))
    e('v_readfirstlane_b32 %s, %s' % (s(sNhi), v(vN + 1)))
    pv = acc[0]['Ka']; pa = acc[0]['Kb']
    e('s_add_u32 %s, %s, %d' % (s(sT1), s(sMb), NT - 1))
    e('s_lshr_b32 %s, %s, 3' % (s(sT0), s(sMb)))
    e('s_lshr_b32 %s, %s, 3' % (s(sT1), s(sT1)))
    e('s_sub_u32 %s, %s, %s' % (s(sT1), s(sT1), s(sT0)))
    e('s_lshl_b32 %s, %s, 11' % (s(sT0), s(sT0)))
    e('s_lshl_b32 %s, %s, 11' % (s(sT1), s(sT1)))
    e('v_and_b32 %s, 15, %s' % (v(pa), v(vLane)))
    e('v_lshlrev_b32 %s, 7, %s' % (v(pa), v(pa)))
    e('v_bfe_u32 %s, %s, 4, 1' % (v(pa + 1), v(vLane)))
    e('v_mad_u32_u24 %s, %s, %s, %s' % (v(pa), v(pa + 1), s(sT1), v(pa)))
    e('v_lshrrev_b32 %s, 5, %s' % (v(pa + 1), v(vLane)))
    e('v_lshl_add_u32 %s, %s, 4, %s' % (v(pa), v(pa + 1), v(pa)))
    e('s_mov_b32 %s, 0' % s(sSpin))
    e('s_add_u32 %s, %s, %s' % (s(sDelta), s(sT0), s(cLf)))
    def chk():
        e('s_waitcnt vmcnt(0)')
        e('v_xor_b32 %s, %s, %s' % (v(pv), s(sNlo), v(pv)))
        e('v_xor_b32 %s, %s, %s' % (v(pv + 1), s(sNhi), v(pv + 1)))
        e('v_xor_b32 %s, %s, %s' % (v(pv + 2), s(sNlo), v(pv + 2)))
        e('v_xor_b32 %s, %s, %s' % (v(pv + 3), s(sNhi), v(pv + 3)))
        e('v_or3_b32 %s, %s, %s, %s' % (v(pv), v(pv), v(pv + 1), v(pv + 2)))
        e('v_or_b32 %s, %s, %s' % (v(pv), v(pv), v(pv + 3)))
        e('v_cmp_ne_u32 vcc, 0, %s' % v(pv))
    A.label('C_POLL')
    e('buffer_load_dwordx4 %s, %s, %s, %s offen %s' % (v(pv, 4), v(pa), s(SF, 4), s(sDelta), OPT.get('pl', 'sc1')))
    e('v_mov_b32 %s, 0' % v(pa + 2))
    chk()
    e('s_add_u32 %s, %s, 1' % (s(sSpin), s(sSpin)))
    e('s_cbranch_vccz C_PSEL')
    e('s_cmp_eq_u32 %s, 0' % s(cMode))
    e('s_cbranch_scc0 C_PNXT')
    e('buffer_load_dwordx4 %s, %s, %s, %s offen sc1' % (v(pv, 4), v(pa), s(SF, 4), s(sT0)))
    e('v_mov_b32 %s, %d' % (v(pa + 2), GOFF))
    chk()
    e('s_nop 1')
    e('s_cbranch_vccz C_PSEL')
    A.label('C_PNXT')
    e('s_cmp_lt_u32 %s, %d' % (s(sSpin), SPIN))
    e('s_cbranch_scc1 C_POLL')
    A.label('C_PSEL')
    e('s_cmp_eq_u32 %s, 0' % s(cMode))
    e('s_cbranch_scc0 C_NOPOLL')
    e('v_mov_b32 %s, %d' % (v(pa + 3), MODEW + 4))
    e('ds_write_b32 %s, %s' % (v(pa + 3), v(pa + 2)))
    e('s_waitcnt lgkmcnt(0)')
    A.label('C_NOPOLL')
    e('s_mul_i32 %s, %s, %d' % (s(sOb), s(sMb), 36864))
    e('s_lshl_b32 %s, %s, 10' % (s(sLd), s(sWv)))
    e('s_add_u32 %s, %s, %s' % (s(sOb), s(sOb), s(sLd)))
    e('s_mov_b32 %s, %s' % (s(sCh), s(sRot2)))
    e('s_mov_b32 %s, 0' % s(sCnt))
    if OPT.get('p2oob'): e('v_add_u32 %s, %d, %s' % (v(vStM), OOB, v(vStM)))
    ST.mark()
    e('s_barrier')
    ST.mark()
    e('s_cmp_eq_u32 %s, 0' % s(cMode))
    e('s_cbranch_scc0 C_OL')
    e('v_mov_b32 %s, %d' % (v(pa + 3), MODEW + 4))
    e('ds_read_b32 %s, %s' % (v(pa + 2), v(pa + 3)))
    e('s_waitcnt lgkmcnt(0)')
    e('v_readfirstlane_b32 %s, %s' % (s(sT0), v(pa + 2)))
    e('s_and_b32 %s, %s, %d' % (s(sT0), s(sT0), GOFF))
    e('s_add_u32 %s, %s, %s' % (s(sOb), s(sOb), s(sT0)))
    A.label('C_OL')
    e('s_cmp_lt_u32 %s, 3' % s(sCnt))
    e('s_cbranch_scc1 C_OI')
    e('s_waitcnt vmcnt(%d)' % (2 * NT))
    e('s_barrier')
    A.label('C_OI')
    e('s_lshl_b32 %s, %s, 12' % (s(sT0), s(sCh)))
    e('s_add_u32 %s, %s, %s' % (s(sT0), s(sT0), s(sOb)))
    for t in range(NT):
        e('s_add_u32 %s, %s, %d' % (s(sT1), s(sT0), 36864 * t))
        e('s_add_u32 m0, %s, %d' % (s(sLd), 4096 * t))
        e('buffer_load_dwordx4 %s, %s, %s offen lds' % (v(vStM), s(SO, 4), s(sT1)))
    e('s_add_u32 %s, %s, 1' % (s(sCh), s(sCh)))
    e('s_cmp_eq_u32 %s, 9' % s(sCh))
    e('s_cselect_b32 %s, 0, %s' % (s(sCh), s(sCh)))
    e('s_add_u32 %s, %s, %d' % (s(sLd), s(sLd), CHB))
    e('s_cmp_eq_u32 %s, 5' % s(sCnt))
    e('s_cselect_b32 %s, %d, 0' % (s(sT0), 6 * CHB))
    e('s_sub_u32 %s, %s, %s' % (s(sLd), s(sLd), s(sT0)))
    e('s_add_u32 %s, %s, 1' % (s(sCnt), s(sCnt)))
    e('s_cmp_lt_u32 %s, 9' % s(sCnt))
    e('s_cbranch_scc1 C_OL')
    for n in (2 * NT, NT, 0):
        e('s_waitcnt vmcnt(%d)' % n)
        e('s_barrier')
    A.label('C_DONE')
    ST.finish(SD, pWs, vT[0], False)
    A.label('K_END')
    e('s_endpgm')

def desc(label, vg=256):
    return '''.amdhsa_kernel %s
  .amdhsa_next_free_vgpr %d
  .amdhsa_next_free_sgpr 102
  .amdhsa_accum_offset %d
  .amdhsa_group_segment_fixed_size 0
  .amdhsa_kernarg_size 80
  .amdhsa_user_sgpr_count 2
  .amdhsa_user_sgpr_kernarg_segment_ptr 1
  .amdhsa_system_sgpr_workgroup_id_x 1
.end_amdhsa_kernel
''' % (label, vg, vg)

def main(path):
    A = Asm(); lab = NAME + '_kernel'
    kernel(A, lab)
    hdr = '; @launch grid=(256,1,1) block=(512,1,1) lds=%d\n' % LDS
    hdr += '.amdgcn_target "amdgcn-amd-amdhsa--gfx950"\n.text\n'
    txt = hdr + A.text() + '.section .rodata,"a"\n.p2align 6\n' + desc(lab)
    open(path, 'w').write(txt)
    print('instrs', A.nins)

if __name__ == '__main__':
    for a in sys.argv[2:]:
        if '=' in a:
            k, val = a.split('='); OPT[k] = int(val)
        else: OPT[a] = True
    main(sys.argv[1] if len(sys.argv) > 1 else 'g2.s')
```

```python
import sys, math, struct, os
sys.path.insert(0, 'gen')
from asmlib import *

NAME = 'gated_mix__sliding_local_dilated__sliding_local_dilated__prompt'
OOB = 0x40000000
def f32(x): return '0x%08x' % struct.unpack('<I', struct.pack('<f', x))[0]
def lanemask(fn):
    m = 0
    for l in range(64):
        if fn(l): m |= 1 << l
    return m
def setmask(A, sr, fn):
    m = lanemask(fn)
    lo, hi = m & 0xffffffff, m >> 32
    A.e('s_mov_b32 %s, 0x%08x' % (s(sr), lo))
    A.e('s_mov_b32 %s, 0x%08x' % (s(sr + 1), hi))
def mksrd(A, sr, src, nbytes):
    A.e('s_mov_b32 %s, %s' % (s(sr), s(src)))
    A.e('s_and_b32 %s, %s, 0xffff' % (s(sr + 1), s(src + 1)))
    A.e('s_mov_b32 %s, %d' % (s(sr + 2), nbytes))
    A.e('s_mov_b32 %s, 0x00020000' % s(sr + 3))

OP_BYTES = 128 * 36864
S = 46080; WOFF = 18432
WO0 = 138240
GB = WO0 + 16384
LDS = 163840
NT = 6
CHB = 4096 * NT
MODEW = GB + 4672
NONCE = 192
SY = GB + 5120
SPIN = int(os.environ.get('SPIN', 200000))
FLAG_OFF = 12 << 20
GOFF = 5 << 20
STAMP_OFF = 16 << 20

OPT = {'stamp': False}

class Stamper:
    def __init__(self, A, vreg, sreg, slane):
        self.A = A; self.v = vreg; self.s = sreg; self.sl = slane
    def start(self):
        if not OPT['stamp']: return
        e = self.A.e
        e('v_mov_b32 %s, 0' % v(self.v))
        e('s_memrealtime %s' % s(self.s, 2)); e('s_waitcnt lgkmcnt(0)')
        e('v_writelane_b32 %s, %s, 63' % (v(self.v), s(self.s)))
        e('s_mov_b32 %s, 0' % s(self.sl))
        self.mark()
    def mark(self):
        if not OPT['stamp']: return
        e = self.A.e
        e('s_memtime %s' % s(self.s, 2)); e('s_waitcnt lgkmcnt(0)')
        e('s_mov_b32 m0, %s' % s(self.sl))
        e('v_writelane_b32 %s, %s, m0' % (v(self.v), s(self.s)))
        e('s_add_u32 %s, %s, 1' % (s(self.sl), s(self.sl)))
    def finish(self, srdreg, wsreg, vtmp, wait=True):
        if not OPT['stamp']: return
        e = self.A.e
        if wait: e('s_waitcnt vmcnt(0)')
        self.mark()
        e('s_memrealtime %s' % s(self.s, 2)); e('s_waitcnt lgkmcnt(0)')
        e('v_writelane_b32 %s, %s, 62' % (v(self.v), s(self.s)))
        mksrd(self.A, srdreg, wsreg, 64 << 20)
        e('s_lshl_b32 %s, s2, 11' % s(self.s))
        e('s_add_u32 %s, %s, %d' % (s(self.s), s(self.s), STAMP_OFF))
        e('v_lshlrev_b32 %s, 2, v0' % v(vtmp))
        e('buffer_store_dword %s, %s, %s, %s offen' % (v(self.v), v(vtmp), s(srdreg, 4), s(self.s)))

class DbgStamper:
    def __init__(self, A, vreg, sreg, slane):
        self.A = A; self.v = vreg; self.s = sreg; self.k = 0; self.base = 2
    def srd(self):
        mksrd(self.A, 100 - 8, 24, 256)
    def put(self, idx, inv=False):
        e = self.A.e
        e('s_and_b32 %s, s34, 3' % s(self.s))
        e('s_cbranch_scc1 DBG_%d' % idx)
        e('s_bfe_u32 %s, s2, 0x30003' % s(self.s))
        e('s_cmp_eq_u32 %s, 5' % s(self.s))
        e('s_cbranch_scc0 DBG_%d' % idx)
        e('s_memrealtime %s' % s(self.s, 2)); e('s_waitcnt lgkmcnt(0)')
        if inv: e('s_not_b32 %s, %s' % (s(self.s), s(self.s)))
        e('v_mov_b32 %s, %s' % (v(self.v), s(self.s)))
        e('v_mov_b32 %s, 0' % v(self.v - 1))
        mksrd(self.A, 4, 24, 256)
        e('s_mov_b64 exec, 1')
        e('buffer_atomic_umax %s, %s, %s, 0 offen offset:%d sc1' % (v(self.v), v(self.v - 1), s(4, 4), 4 * idx))
        e('s_mov_b64 exec, -1')
        self.A.label('DBG_%d' % idx)
    def start(self):
        self.k = 0
        self.base = 2 if self.base == 9 else 9
        self.put(self.base, True)
        self.sel = {9: (1, 3, 6, 7), 2: (2, 3, 4, 5, 7)}[self.base]
        self.n = 0
    def mark(self):
        if self.k in self.sel:
            self.n += 1
            self.put(self.base + self.n)
        self.k += 1
    def finish(self, srdreg, wsreg, vtmp):
        self.A.e('s_waitcnt vmcnt(0)')
        self.put(self.base + len(self.sel) + 1)

class LQ:
    def __init__(self, A): self.A = A; self.q = []
    def rd(self, text, dst, n):
        self.A.e(text); self.q.append(set(range(dst, dst + n)))
    def need(self, *rs):
        regs = set()
        for r, n in rs: regs |= set(range(r, r + n))
        last = -1
        for i, d in enumerate(self.q):
            if d & regs: last = i
        if last < 0: return
        cnt = len(self.q) - 1 - last
        cnt = min(cnt, 15)
        self.A.e('s_waitcnt lgkmcnt(%d)' % cnt)
        self.q = self.q[len(self.q) - cnt:] if cnt else []
    def drain(self):
        self.A.e('s_waitcnt lgkmcnt(0)'); self.q = []

def kernel(A, label):
    e = A.e
    pX, pWA, pWoA, pWB, pWoB, pG, pOut, pDbg, pWs = 8, 10, 12, 16, 18, 20, 22, 24, 26
    sXcd, sIdx, sRb, sHgb, sHg, sBr, sWv, sRot, sT0, sT1, sT2, sT3 = range(28, 40)
    sL2, sMb, sNb, sRot2 = range(40, 44)
    SA, SB, SC, SD = 44, 48, 52, 56
    sM = 60
    sx = 62
    ST = Stamper(A, 255, 96, 98) if not OPT.get('dbg') else DbgStamper(A, 255, 96, 98)
    A.raw('.globl %s' % label); A.raw('.p2align 8'); A.raw('.type %s,@function' % label); A.raw(label + ':')
    e('s_cmp_ge_u32 s2, 256')
    e('s_cbranch_scc1 K_END')
    e('s_load_dwordx16 s[8:23], s[0:1], 0')
    e('s_load_dwordx4 s[24:27], s[0:1], 64')
    e('v_lshrrev_b32 v2, 6, v0')
    e('v_and_b32 v1, 63, v0')
    e('v_readfirstlane_b32 %s, v2' % s(sWv))
    vLane = 1
    if OPT.get('perm'):
        e('s_bfe_u32 %s, s2, 0x%x' % (s(sT0), (OPT['perm'] << 16) | 3))
        e('s_xor_b32 s2, s2, %s' % s(sT0))
    e('s_and_b32 %s, s2, 7' % s(sXcd))
    e('s_lshr_b32 %s, s2, 3' % s(sIdx))
    e('s_and_b32 %s, %s, 1' % (s(sT0), s(sIdx)))
    e('s_lshl1_add_u32 %s, %s, %s' % (s(sRb), s(sXcd), s(sT0)))
    e('s_lshr_b32 %s, %s, 1' % (s(sHgb), s(sIdx)))
    e('s_mul_i32 %s, %s, %d' % (s(sRot), s(sHgb), OPT.get('ra', 1)))
    e('s_mul_i32 %s, %s, %d' % (s(sT0), s(sT0), OPT.get('rc', 1)))
    e('s_add_u32 %s, %s, %s' % (s(sRot), s(sRot), s(sT0)))
    e('s_add_u32 %s, %s, %s' % (s(sRot), s(sXcd), s(sRot)))
    e('s_mul_i32 %s, %s, 57' % (s(sT0), s(sRot)))
    e('s_lshr_b32 %s, %s, 9' % (s(sT0), s(sT0)))
    e('s_mul_i32 %s, %s, 9' % (s(sT0), s(sT0)))
    e('s_sub_u32 %s, %s, %s' % (s(sRot), s(sRot), s(sT0)))
    e('s_and_b32 %s, %s, 7' % (s(sHg), s(sHgb)))
    e('s_lshr_b32 %s, %s, 3' % (s(sBr), s(sHgb)))
    e('s_cmp_lt_u32 %s, 4' % s(sWv))
    e('s_cbranch_scc1 C_START')

    def phase2_ids():
        e('s_mul_i32 %s, %s, 57' % (s(sL2), s(sIdx)))
        e('s_lshr_b32 %s, %s, 9' % (s(sL2), s(sL2)))
        e('s_mul_i32 %s, %s, 9' % (s(sT0), s(sL2)))
        e('s_sub_u32 %s, %s, %s' % (s(sNb), s(sIdx), s(sT0)))
        e('s_mul_i32 %s, %s, 5' % (s(sT0), s(sL2)))
        e('s_lshl4_add_u32 %s, %s, %s' % (s(sMb), s(sXcd), s(sT0)))
        e('s_mul_i32 %s, %s, 3' % (s(sT0), s(sL2)))
        e('s_add_u32 %s, %s, %s' % (s(sRot2), s(sT0), s(sNb)))
        e('s_add_u32 %s, %s, %s' % (s(sRot2), s(sRot2), s(sXcd)))
        e('s_mul_i32 %s, %s, 57' % (s(sT0), s(sRot2)))
        e('s_lshr_b32 %s, %s, 9' % (s(sT0), s(sT0)))
        e('s_mul_i32 %s, %s, 9' % (s(sT0), s(sT0)))
        e('s_sub_u32 %s, %s, %s' % (s(sRot2), s(sRot2), s(sT0)))
    def xcc_ids(sLf, sOk):
        e('s_getreg_b32 %s, hwreg(HW_REG_XCC_ID, 0, 4)' % s(sLf))
        e('s_cmp_lt_u32 %s, 8' % s(sLf))
        e('s_cselect_b32 %s, 1, 0' % s(sOk))
        e('s_min_u32 %s, %s, 8' % (s(sLf), s(sLf)))
        e('s_lshl_b32 %s, %s, 15' % (s(sLf), s(sLf)))
        e('s_add_u32 %s, %s, 32768' % (s(sLf), s(sLf)))
    def flag_srd(sr):
        e('s_add_u32 %s, %s, %d' % (s(sT0), s(pWs), FLAG_OFF))
        e('s_addc_u32 %s, %s, 0' % (s(sT1), s(pWs + 1)))
        mksrd(A, sr, sT0, 10 * 32768)

    sJ, sKc, sXr0, sXrow, sWrow, sRing, sCnt, sLx, sLw, sSo, sEx, sCh, sPos, sStep, sWm, sWr = range(sx, sx + 16)
    sEx = sx + 16
    R = RegAlloc(2, 254)
    vT = [R.alloc() for _ in range(4)]
    vDX, vDXh, vDW, vDM, vDR, vDC = [R.alloc() for _ in range(6)]
    sLf, sOk, sMode = range(sx + 18, sx + 21)
    vLN = 100; vLZ = 104; vSn = 106
    ST.start()
    e('s_sub_u32 %s, %s, 4' % (s(sJ), s(sWv)))
    vFa, vF, vLa, vS = 110, 111, 112, 113
    sSpin, sNeed = sx + 21, sx + 22
    e('s_lshl_b32 %s, %s, 2' % (s(sT0), s(sJ)))
    e('s_add_u32 %s, %s, %d' % (s(sT0), s(sT0), SY))
    e('v_mov_b32 %s, %s' % (v(vLa), s(sT0)))
    e('v_mov_b32 %s, 0' % v(vS))
    e('ds_write_b32 %s, %s' % (v(vLa), v(vS)))
    e('s_and_b32 %s, %s, 1' % (s(sT0), s(sJ)))
    e('s_lshl_b32 %s, %s, 2' % (s(sT0), s(sT0)))
    e('v_lshrrev_b32 %s, 4, %s' % (v(vT[0]), v(vLane)))
    e('v_add_u32 %s, %s, %s' % (v(vT[0]), s(sT0), v(vT[0])))
    e('v_and_b32 %s, 7, %s' % (v(vT[1]), v(vLane)))
    e('v_xor_b32 %s, %s, %s' % (v(vT[0]), v(vT[0]), v(vT[1])))
    e('v_lshlrev_b32 %s, 4, %s' % (v(vT[0]), v(vT[0])))
    e('v_lshrrev_b32 %s, 3, %s' % (v(vT[1]), v(vLane)))
    e('s_movk_i32 %s, 1152' % s(sT1))
    e('v_mad_u32_u24 %s, %s, %s, %s' % (v(vDX), v(vT[1]), s(sT1), v(vT[0])))
    e('s_lshl_b32 %s, %s, 7' % (s(sT0), s(sRb)))
    e('s_lshl3_add_u32 %s, %s, %s' % (s(sT0), s(sJ), s(sT0)))
    e('s_sub_u32 %s, %s, 16' % (s(sT0), s(sT0)))
    e('s_mul_i32 %s, %s, 1152' % (s(sXrow), s(sT0)))
    e('s_max_i32 %s, %s, 0' % (s(sXr0), s(sXrow)))
    e('s_cmp_lt_i32 %s, 0' % s(sT0))
    e('s_cselect_b64 %s, -1, 0' % s(sM, 2))
    e('v_cndmask_b32 %s, %s, %s, %s' % (v(vDXh), v(vDX), v(vT[0]), s(sM, 2)))
    e('v_subrev_u32 %s, 27, %s' % (v(vT[0]), v(vLane)))
    e('v_cmp_lt_u32 vcc, 26, %s' % v(vLane))
    e('v_cndmask_b32 %s, %s, %s, vcc' % (v(vT[0]), v(vLane), v(vT[0])))
    e('v_mov_b32 %s, %d' % (v(vT[2]), 4 * 3456))
    e('v_cndmask_b32 %s, 0, %s, vcc' % (v(vT[2]), v(vT[2])))
    e('v_mul_u32_u24 %s, 57, %s' % (v(vT[1]), v(vT[0])))
    e('v_lshrrev_b32 %s, 9, %s' % (v(vT[1]), v(vT[1])))
    e('v_mul_u32_u24 %s, 1008, %s' % (v(vT[1]), v(vT[1])))
    e('v_lshl_add_u32 %s, %s, 4, %s' % (v(vT[1]), v(vT[0]), v(vT[1])))
    e('s_mul_i32 %s, %s, 144' % (s(sT0), s(sHg)))
    e('v_add3_u32 %s, %s, %s, %s' % (v(vDW), v(vT[1]), v(vT[2]), s(sT0)))
    e('s_mul_i32 %s, %s, 3456' % (s(sWrow), s(sJ)))
    e('s_lshl_b32 %s, %s, 10' % (s(sLx), s(sJ)))
    e('s_mul_i32 %s, %s, 864' % (s(sLw), s(sJ)))
    e('s_add_u32 %s, %s, %d' % (s(sLw), s(sLw), WOFF))
    setmask(A, sEx, lambda l: l < 54)
    CM = {0: '', 1: ' sc1', 2: ' nt', 3: ' sc0 sc1', 4: ' sc0'}
    e('s_mov_b32 %s, 0' % s(sSpin))
    e('v_and_b32 %s, 3, %s' % (v(vFa), v(vLane)))
    e('v_lshlrev_b32 %s, 2, %s' % (v(vFa), v(vFa)))
    e('v_add_u32 %s, %d, %s' % (v(vFa), SY + 16, v(vFa)))
    e('s_mov_b32 %s, %s' % (s(sKc), s(sRot)))
    e('s_mov_b32 %s, 0' % s(sRing))
    e('s_mov_b32 %s, 0' % s(sCnt))
    e('s_waitcnt lgkmcnt(0)')
    mksrd(A, SA, pX, 2048 * 1152)
    e('s_cmp_eq_u32 %s, 0' % s(sBr))
    e('s_cselect_b32 %s, %s, %s' % (s(sT0), s(pWA), s(pWB)))
    e('s_cselect_b32 %s, %s, %s' % (s(sT1), s(pWA + 1), s(pWB + 1)))
    mksrd(A, SB, sT0, 576 * 3456)
    ST.mark()
    ulab = [0]
    def wait_free(need):
        ulab[0] += 1; L = 'LW%d' % ulab[0]
        A.label(L)
        e('ds_read_b32 %s, %s' % (v(vF), v(vFa)))
        e('s_add_u32 %s, %s, 1' % (s(sSpin), s(sSpin)))
        e('s_waitcnt lgkmcnt(0)')
        e('v_cmp_gt_u32 vcc, %s, %s' % (need, v(vF)))
        e('s_cbranch_vccz %sd' % L)
        e('s_cmp_lt_u32 %s, %d' % (s(sSpin), 2 * SPIN))
        e('s_cbranch_scc1 %s' % L)
        A.label(L + 'd')
    LAG = OPT.get('lag', 2); SB6 = OPT.get('sb6', 0)
    def wait_x(n, k=1):
        ulab[0] += 1; L = 'LV%d' % ulab[0]
        e('s_cmp_lt_u32 %s, 2' % s(sJ))
        e('s_cbranch_scc1 %s' % L)
        e('s_waitcnt vmcnt(%d)' % (n + 4 * k))
        A.label(L)
        e('s_waitcnt vmcnt(%d)' % (n + 5 * k))
    def signal(val):
        e('v_mov_b32 %s, %s' % (v(vS), val))
        e('ds_write_b32 %s, %s' % (v(vLa), v(vS)))
    def xburst():
        e('s_lshl_b32 %s, %s, 7' % (s(sT0), s(sKc)))
        e('s_add_u32 %s, %s, %s' % (s(sT1), s(sRing), s(sLx)))
        for q in range(5):
            if q == 4:
                e('s_cmp_ge_u32 %s, 2' % s(sJ))
                e('s_cbranch_scc1 L_NOX4')
            if q == 0:
                e('s_add_u32 %s, %s, %s' % (s(sSo), s(sXr0), s(sT0)))
                e('s_mov_b32 m0, %s' % s(sT1))
                e('buffer_load_dwordx4 %s, %s, %s offen lds' % (v(vDXh), s(SA, 4), s(sSo)))
                e('s_add_u32 %s, %s, %s' % (s(sT0), s(sXrow), s(sT0)))
            else:
                e('s_add_u32 %s, %s, %d' % (s(sSo), s(sT0), 32 * 1152 * q))
                e('s_add_u32 m0, %s, %d' % (s(sT1), 4096 * q))
                e('buffer_load_dwordx4 %s, %s, %s offen lds' % (v(vDX), s(SA, 4), s(sSo)))
        A.label('L_NOX4')
    def wburst(ks):
        e('s_mul_i32 %s, %s, %d' % (s(sT0), s(sKc), 64 * 3456))
        e('s_add_u32 %s, %s, %s' % (s(sT0), s(sT0), s(sWrow)))
        e('s_add_u32 %s, %s, %s' % (s(sT1), s(sRing), s(sLw)))
        e('s_mov_b64 exec, %s' % s(sEx, 2))
        for q in range(4 * ks, 4 * ks + 4):
            e('s_add_u32 %s, %s, %d' % (s(sSo), s(sT0), 8 * 3456 * q))
            e('s_add_u32 m0, %s, %d' % (s(sT1), 3456 * q))
            e('buffer_load_dwordx4 %s, %s, %s offen lds' % (v(vDW), s(SB, 4), s(sSo)))
        e('s_mov_b64 exec, -1')
    def gate(tag):
        e('s_sub_u32 %s, %s, 5' % (s(sNeed), s(sCnt)))
        e('s_cmp_lt_i32 %s, 1' % s(sNeed))
        e('s_cbranch_scc1 L_NG' + tag)
        wait_free(s(sNeed))
        A.label('L_NG' + tag)
    def landed(odd):
        e('s_sub_u32 %s, %s, %d' % (s(sNeed), s(sCnt), LAG))
        e('s_max_i32 %s, %s, 0' % (s(sNeed), s(sNeed)))
        if SB6 and not odd:
            e('s_cmp_lt_u32 %s, 5' % s(sCnt))
            e('s_cbranch_scc1 L_NOSIG')
        if LAG == 2: wait_x(12)
        else: wait_x(16, 2 if odd else 1)
        signal(s(sNeed))
        if SB6 and not odd: A.label('L_NOSIG')
        e('s_add_u32 %s, %s, 1' % (s(sCnt), s(sCnt)))
    A.label('L_LOOP')
    gate('a')
    wburst(0)
    landed(0)
    gate('b')
    xburst()
    wburst(1)
    e('s_cmp_eq_u32 %s, %d' % (s(sCnt), 5 if SB6 else 3))
    e('s_cbranch_scc0 L_NOBAR')
    e('s_waitcnt lgkmcnt(0)')
    e('s_barrier')
    if SB6:
        wait_x(20, 2)
        signal(1)
    A.label('L_NOBAR')
    landed(1)
    e('s_lshl_b32 %s, %s, 5' % (s(sT0), s(sJ)))
    e('s_or_b32 %s, %s, %s' % (s(sT0), s(sT0), s(sCnt)))
    e('s_cmp_eq_u32 %s, %d' % (s(sT0), 2 * OPT.get('nld', 4) + 2))
    e('s_cbranch_scc0 L_NN1')
    mksrd(A, SD, pDbg, 256)
    e('v_mov_b32 %s, 0' % v(vLZ))
    e('buffer_load_dwordx2 %s, %s, %s, 0 offen offset:%d sc1' % (v(vLN + 2, 2), v(vLZ), s(SD, 4), NONCE))
    A.label('L_NN1')
    e('s_cmp_eq_u32 %s, %d' % (s(sT0), 2 * OPT.get('nld', 4) + 6))
    e('s_cbranch_scc0 L_NN2')
    flag_srd(SC)
    xcc_ids(sLf, sOk)
    e('s_lshl4_add_u32 %s, %s, %s' % (s(sT0), s(sRb), s(sHgb)))
    e('s_lshl_b32 %s, %s, 7' % (s(sT0), s(sT0)))
    e('s_add_u32 %s, %s, %s' % (s(sT0), s(sT0), s(sLf)))
    e('v_mov_b32 %s, 0' % v(vLZ))
    e('s_mov_b64 exec, 1')
    e('buffer_store_dwordx2 %s, %s, %s, %s offen offset:32' % (v(vLN + 2, 2), v(vLZ), s(SC, 4), s(sT0)))
    e('s_mov_b64 exec, -1')
    A.label('L_NN2')
    e('s_add_u32 %s, %s, 1' % (s(sKc), s(sKc)))
    e('s_cmp_eq_u32 %s, 9' % s(sKc))
    e('s_cselect_b32 %s, 0, %s' % (s(sKc), s(sKc)))
    e('s_add_u32 %s, %s, %d' % (s(sRing), s(sRing), S))
    e('s_cmp_eq_u32 %s, %d' % (s(sRing), 3 * S))
    e('s_cselect_b32 %s, 0, %s' % (s(sRing), s(sRing)))
    e('s_cmp_lt_u32 %s, 18' % s(sCnt))
    e('s_cbranch_scc1 L_LOOP')
    if LAG == 3:
        wait_x(12)
        signal(15)
    wait_x(8)
    signal(16)
    ST.mark()
    def snapshot(lab):
        e('s_cmp_eq_u32 %s, 0' % s(sJ))
        e('s_cbranch_scc0 ' + lab)
        flag_srd(SC)
        xcc_ids(sLf, sOk)
        e('s_lshl_b32 %s, %s, 12' % (s(sT0), s(sXcd)))
        e('s_add_u32 %s, %s, %s' % (s(sT0), s(sT0), s(sLf)))
        e('v_and_b32 %s, 31, %s' % (v(vLZ), v(vLane)))
        e('v_lshlrev_b32 %s, 7, %s' % (v(vLZ), v(vLZ)))
        e('buffer_load_dwordx2 %s, %s, %s, %s offen offset:32 sc1' % (v(vSn, 2), v(vLZ), s(SC, 4), s(sT0)))
        A.label(lab)
    def put_mode(lab):
        e('s_cmp_eq_u32 %s, 0' % s(sJ))
        e('s_cbranch_scc0 ' + lab)
        e('v_xor_b32 %s, %s, %s' % (v(vSn), v(vSn), v(vLN + 2)))
        e('v_xor_b32 %s, %s, %s' % (v(vSn + 1), v(vSn + 1), v(vLN + 3)))
        e('v_or_b32 %s, %s, %s' % (v(vSn), v(vSn), v(vSn + 1)))
        e('v_cmp_ne_u32 vcc, 0, %s' % v(vSn))
        e('v_and_b32 %s, %s, %s' % (v(vLN), s(sOk), v(vLN + 2)))
        e('s_cmp_eq_u64 vcc, 0')
        e('s_cselect_b32 %s, 1, 0' % s(sMode))
        if OPT.get('noloc'):
            e('s_bfe_u32 %s, %s, 0x%x' % (s(sT0), s(sIdx), 0x10000 | (OPT['noloc'] - 1)))
            e('s_and_b32 %s, %s, %s' % (s(sMode), s(sMode), s(sT0)))
        e('v_and_b32 %s, %s, %s' % (v(vLN), s(sMode), v(vLN)))
        e('v_mov_b32 %s, %d' % (v(vLZ), MODEW))
        e('ds_write_b128 %s, %s' % (v(vLZ), v(vLN, 4)))
        e('s_waitcnt lgkmcnt(0)')
        A.label(lab)
    phase2_ids()
    e('s_cmp_ge_u32 %s, 3' % s(sL2))
    e('s_cbranch_scc1 L_NOP2')
    mksrd(A, SA, pWoA, 576 * 1152)
    mksrd(A, SB, pWoB, 576 * 1152)
    q_, col = vT[0], vT[1]
    e('v_lshrrev_b32 %s, 3, %s' % (v(q_), v(vLane)))
    e('v_bfe_u32 %s, %s, 1, 2' % (v(vT[2]), v(vLane)))
    e('v_lshrrev_b32 %s, 4, %s' % (v(vT[3]), v(vLane)))
    e('v_xor_b32 %s, %s, %s' % (v(vT[2]), v(vT[2]), v(vT[3])))
    e('v_and_b32 %s, 1, %s' % (v(vT[3]), v(vLane)))
    e('v_lshl_add_u32 %s, %s, 1, %s' % (v(col), v(vT[2]), v(vT[3])))
    e('v_lshlrev_b32 %s, 4, %s' % (v(col), v(col)))
    e('s_lshl_b32 %s, %s, 7' % (s(sT0), s(sNb)))
    e('v_add_u32 %s, %s, %s' % (v(col), s(sT0), v(col)))
    e('s_movk_i32 %s, 1152' % s(sT1))
    e('v_mad_u32_u24 %s, %s, %s, %s' % (v(vDM), v(q_), s(sT1), v(col)))
    e('v_lshrrev_b32 %s, 2, %s' % (v(vT[2]), v(q_)))
    e('v_mul_u32_u24 %s, 68, %s' % (v(vT[2]), v(vT[2])))
    e('v_add_u32 %s, %s, %s' % (v(vT[2]), v(vT[2]), v(q_)))
    e('v_mad_u32_u24 %s, %s, %s, %s' % (v(vDR), v(vT[2]), s(sT1), v(col)))
    e('s_and_b32 %s, %s, 1' % (s(sT0), s(sJ)))
    e('s_lshr_b32 %s, %s, 1' % (s(sT2), s(sJ)))
    e('s_mul_i32 %s, %s, 20' % (s(sWm), s(sT0)))
    e('s_lshl3_add_u32 %s, %s, %s' % (s(sWm), s(sT2), s(sWm)))
    e('s_sub_u32 %s, %s, 72' % (s(sWm), s(sWm)))
    e('s_mul_i32 %s, %s, 1152' % (s(sWm), s(sWm)))
    e('s_mul_i32 %s, %s, 36' % (s(sWr), s(sT0)))
    e('s_mul_i32 %s, %s, 144' % (s(sT2), s(sT2)))
    e('s_add_u32 %s, %s, %s' % (s(sWr), s(sWr), s(sT2)))
    e('s_add_u32 %s, %s, 16' % (s(sWr), s(sWr)))
    e('s_mul_i32 %s, %s, 1152' % (s(sWr), s(sWr)))
    e('s_mov_b32 %s, %s' % (s(sCh), s(sRot2)))
    e('s_add_u32 %s, %s, %d' % (s(sPos), s(sLx), WO0))
    e('s_mov_b32 %s, 0' % s(sCnt))
    snapshot('L_WO')
    e('s_cmp_eq_u32 %s, 1' % s(sCnt))
    e('s_cbranch_scc0 L_G1')
    e('s_waitcnt vmcnt(8)')
    signal(17)
    wait_free(14)
    A.label('L_G1')
    e('s_cmp_eq_u32 %s, 3' % s(sCnt))
    e('s_cbranch_scc0 L_G2')
    e('s_waitcnt vmcnt(12)')
    put_mode('L_G3B')
    signal(19)
    wait_free(16)
    A.label('L_G2')
    e('s_cmp_eq_u32 %s, 6' % s(sCnt))
    e('s_cbranch_scc0 L_G3')
    wait_free(18)
    A.label('L_G3')
    e('s_mul_i32 %s, %s, %d' % (s(sT0), s(sCh), 72 * 1152))
    e('s_add_u32 %s, %s, %s' % (s(sT0), s(sT0), s(sWm)))
    e('s_cmp_eq_u32 %s, 0' % s(sCh))
    e('s_cselect_b32 %s, %s, %s' % (s(sT0), s(sWr), s(sT0)))
    e('s_cselect_b64 %s, -1, 0' % s(sM, 2))
    e('s_mov_b32 %s, %d' % (s(sStep), 36 * 1152))
    e('s_cselect_b32 %s, %d, %s' % (s(sStep), 288 * 1152, s(sStep)))
    e('v_cndmask_b32 %s, %s, %s, %s' % (v(vDC), v(vDM), v(vDR), s(sM, 2)))
    e('s_add_u32 %s, %s, %s' % (s(sT1), s(sT0), s(sStep)))
    for k2 in range(4):
        e('s_add_u32 m0, %s, %d' % (s(sPos), 4096 * k2))
        e('buffer_load_dwordx4 %s, %s, %s offen lds' % (v(vDC), s(SA if k2 < 2 else SB, 4), s(sT0 if k2 % 2 == 0 else sT1)))
    e('s_add_u32 %s, %s, 1' % (s(sCh), s(sCh)))
    e('s_cmp_eq_u32 %s, 9' % s(sCh))
    e('s_cselect_b32 %s, 0, %s' % (s(sCh), s(sCh)))
    e('s_add_u32 %s, %s, 16384' % (s(sPos), s(sPos)))
    e('s_cmp_eq_u32 %s, 0' % s(sCnt))
    e('s_cselect_b32 %s, %s, %s' % (s(sPos), s(sLx), s(sPos)))
    e('s_add_u32 %s, %s, 1' % (s(sCnt), s(sCnt)))
    e('s_cmp_lt_u32 %s, 9' % s(sCnt))
    e('s_cbranch_scc1 L_WO')
    ST.mark()
    sCp, sKh, sSt = sx + 3, sx + 1, sx + 2
    e('s_and_b32 %s, %s, 1' % (s(sT0), s(sJ)))
    e('s_lshr_b32 %s, %s, 1' % (s(sKh), s(sJ)))
    e('s_mov_b32 %s, %s' % (s(sCp), s(sT0)))
    vOa = [vDX, vDXh, vDW]; vSt = vDM; vXa = vDR
    acc2 = [[R.alloc(4) for c2 in range(2)] for t in range(NT)]
    Of = [[R.alloc(4) for t in range(NT)] for b in range(2)]
    vWa = [Of[1][4] + k for k in range(3)]; vWb = [Of[1][5] + k for k in range(3)]
    Wr = [[[R.alloc(4) for c2 in range(2)] for kb in range(2)] for i in range(9)]
    g, r4, c4 = vT[0], vT[1], vT[2]
    e('v_lshrrev_b32 %s, 4, %s' % (v(g), v(vLane)))
    e('v_bfe_u32 %s, %s, 2, 2' % (v(r4), v(vLane)))
    e('v_and_b32 %s, 3, %s' % (v(c4), v(vLane)))
    t3, t4_ = vT[3], vDC
    e('v_lshrrev_b32 %s, 1, %s' % (v(t3), v(g)))
    e('v_lshlrev_b32 %s, 4, %s' % (v(t3), v(t3)))
    e('v_and_b32 %s, 1, %s' % (v(t4_), v(g)))
    e('v_lshl_add_u32 %s, %s, 2, %s' % (v(t4_), v(t4_), v(r4)))
    e('v_add_u32 %s, %s, %s' % (v(t3), v(t3), v(t4_)))
    e('v_lshrrev_b32 %s, 1, %s' % (v(t4_), v(t4_)))
    e('s_lshl_b32 %s, %s, 1' % (s(sT0), s(sCp)))
    e('v_xor_b32 %s, %s, %s' % (v(t4_), s(sT0), v(t4_)))
    e('v_lshlrev_b32 %s, 5, %s' % (v(t4_), v(t4_)))
    e('v_lshl_add_u32 %s, %s, 7, %s' % (v(t3), v(t3), v(t4_)))
    e('v_lshl_add_u32 %s, %s, 3, %s' % (v(t3), v(c4), v(t3)))
    e('s_lshl_b32 %s, %s, 13' % (s(sT0), s(sKh)))
    e('v_add_u32 %s, %s, %s' % (v(vWa[0]), s(sT0), v(t3)))
    e('v_xor_b32 %s, 32, %s' % (v(vWb[0]), v(vWa[0])))
    for k in (1, 2):
        e('v_add_u32 %s, %d, %s' % (v(vWa[k]), 65536 * k, v(vWa[0])))
        e('v_add_u32 %s, %d, %s' % (v(vWb[k]), 65536 * k, v(vWb[0])))
    e('s_lshl_b32 %s, %s, 11' % (s(sT0), s(sKh)))
    e('v_lshlrev_b32 %s, 4, %s' % (v(t3), v(vLane)))
    e('v_add_u32 %s, %s, %s' % (v(vOa[0]), s(sT0), v(t3)))
    for k in (1, 2):
        e('v_add_u32 %s, %d, %s' % (v(vOa[k]), 61440 * k, v(vOa[0])))
    e('s_mul_i32 %s, %s, %d' % (s(sT0), s(sCp), CHB // 2))
    e('s_add_u32 %s, %s, %d' % (s(sT0), s(sT0), 3 * CHB))
    e('v_add_u32 %s, %s, %s' % (v(vXa), s(sT0), v(t3)))
    e('s_mul_i32 %s, %s, %d' % (s(sSt), s(sMb), 16 * 1152))
    e('s_lshl_b32 %s, %s, 7' % (s(sT0), s(sNb)))
    e('s_add_u32 %s, %s, %s' % (s(sSt), s(sSt), s(sT0)))
    e('s_lshl_b32 %s, %s, 6' % (s(sT0), s(sCp)))
    e('s_add_u32 %s, %s, %s' % (s(sSt), s(sSt), s(sT0)))
    e('v_and_b32 %s, 15, %s' % (v(t3), v(vLane)))
    e('v_mul_u32_u24 %s, 1152, %s' % (v(t3), v(t3)))
    e('v_and_b32 %s, 1, %s' % (v(t4_), v(g)))
    e('v_lshl_add_u32 %s, %s, 5, %s' % (v(t3), v(t4_), v(t3)))
    e('v_lshrrev_b32 %s, 1, %s' % (v(t4_), v(g)))
    e('v_lshl_add_u32 %s, %s, 4, %s' % (v(vSt), v(t4_), v(t3)))
    mksrd(A, SC, pOut, 2048 * 1152)
    for t in range(NT):
        for c2 in range(2):
            for k in range(0, 4, 2): e('v_mov_b64 %s, 0' % v(acc2[t][c2] + k, 2))
    w4 = Wr[8][1][1]
    e('s_lshl_b32 %s, %s, 2' % (s(sT0), s(sJ)))
    e('s_add_u32 %s, %s, %d' % (s(sT0), s(sT0), SY))
    e('v_mov_b32 %s, %s' % (v(w4), s(sT0)))
    e('v_mov_b32 %s, 20' % v(w4 + 1))
    e('v_and_b32 %s, 3, %s' % (v(w4 + 2), v(vLane)))
    e('v_lshlrev_b32 %s, 2, %s' % (v(w4 + 2), v(w4 + 2)))
    e('v_add_u32 %s, 0x20000, %s' % (v(w4 + 2), v(w4 + 2)))
    e('s_waitcnt vmcnt(0)')
    ST.mark()
    e('ds_write_b32 %s, %s' % (v(w4), v(w4 + 1)))
    A.label('L_BW')
    e('ds_read_b32 %s, %s offset:%d' % (v(w4 + 3), v(w4 + 2), SY - 131072))
    e('s_add_u32 %s, %s, 1' % (s(sSpin), s(sSpin)))
    e('s_waitcnt lgkmcnt(0)')
    e('v_cmp_gt_u32 vcc, 20, %s' % v(w4 + 3))
    e('s_cbranch_vccz L_BWd')
    e('s_cmp_lt_u32 %s, %d' % (s(sSpin), 2 * SPIN))
    e('s_cbranch_scc1 L_BW')
    A.label('L_BWd')
    ST.mark()
    for i in range(9):
        pos = WO0 if i == 0 else 16384 * (i - 1)
        for kb in range(2):
            for c2 in range(2):
                for j2 in range(2):
                    off = pos + kb * 4096 + j2 * 1024
                    e('ds_read_b64_tr_b16 %s, %s offset:%d' % (v(Wr[i][kb][c2] + 2 * j2, 2), v((vWa, vWb)[c2][off >> 16]), off & 65535))
    e('s_waitcnt lgkmcnt(0)')
    ST.mark()
    e('s_barrier')
    ST.mark()
    Q = LQ(A)
    def oread(i, kb, t):
        off = CHB * (i % 6) + t * 4096 + kb * 1024
        k = off // 61440
        if OPT.get('p2nord'): return
        Q.rd('ds_read_b128 %s, %s offset:%d' % (v(Of[kb][t], 4), v(vOa[k]), off - 61440 * k), Of[kb][t], 4)
    def omf(i, kb, fills):
        for t in range(NT):
            Q.need((Of[kb][t], 4))
            for c2 in range(2):
                if not OPT.get('p2nomf'): e('v_mfma_f32_16x16x32_bf16 %s, %s, %s, %s' % (v(acc2[t][c2], 4), v(Wr[i][kb][c2], 4), v(Of[kb][t], 4), v(acc2[t][c2], 4)))
                if fills: fills.pop(0)()
        while fills: fills.pop(0)()
    e('s_barrier')
    for t in range(NT): oread(0, 0, t)
    for i in range(9):
        omf(i, 0, [lambda t=t: oread(i, 1, t) for t in range(NT)])
        if i < 8:
            fl = [lambda: None, lambda: (Q.drain(), e('s_barrier'))] + [lambda t=t: oread(i + 1, 0, t) for t in range(NT)]
        else: fl = []
        omf(i, 1, fl)
    ST.mark()
    def finish(own, other, lab):
        for t in other:
            for c2 in range(2):
                e('ds_write_b128 %s, %s offset:%d' % (v(vXa), v(acc2[t][c2], 4), (2 * t + c2) * 1024))
        e('s_waitcnt lgkmcnt(0)')
        e('s_barrier')
        tmp = Of[0]
        Q.q = []
        for n, t in enumerate(own):
            for c2 in range(2):
                Q.rd('ds_read_b128 %s, %s offset:%d' % (v(tmp[2 * n + c2], 4), v(vXa), (2 * t + c2) * 1024), tmp[2 * n + c2], 4)
        for n, t in enumerate(own):
            o = Of[1][1 + n]
            for c2 in range(2):
                Q.need((tmp[2 * n + c2], 4))
                for k in range(4):
                    e('v_add_f32 %s, %s, %s' % (v(acc2[t][c2] + k), v(acc2[t][c2] + k), v(tmp[2 * n + c2] + k)))
                e('v_cvt_pk_bf16_f32 %s, %s, %s' % (v(o + 2 * c2), v(acc2[t][c2]), v(acc2[t][c2] + 1)))
                e('v_cvt_pk_bf16_f32 %s, %s, %s' % (v(o + 2 * c2 + 1), v(acc2[t][c2] + 2), v(acc2[t][c2] + 3)))
            e('v_permlane16_swap_b32 %s, %s' % (v(o), v(o + 2)))
            e('v_permlane16_swap_b32 %s, %s' % (v(o + 1), v(o + 3)))
            if t == 0:
                e('s_cmp_lg_u32 %s, 0' % s(sL2))
                e('s_cbranch_scc1 L_DONE')
            e('s_add_u32 %s, %s, %d' % (s(sT0), s(sSt), t * 16 * 1152))
            e('buffer_store_dwordx4 %s, %s, %s, %s offen' % (v(o, 4), v(vSt), s(SC, 4), s(sT0)))
    e('s_cmp_eq_u32 %s, 0' % s(sKh))
    e('s_cbranch_scc0 L_FIN1')
    finish([1, 2, 0], [3, 4, 5], 'a')
    e('s_branch L_DONE')
    A.label('L_FIN1')
    A.barrier_hazards()
    finish([3, 4, 5], [0, 1, 2], 'b')
    A.label('L_DONE')
    ST.finish(SD, pWs, vT[0])
    e('s_endpgm')
    A.label('L_NOP2')
    snapshot('L_NP2A')
    e('s_waitcnt vmcnt(4)')
    signal(17)
    e('s_waitcnt vmcnt(0)')
    put_mode('L_NP2B')
    signal(19)
    e('s_waitcnt lgkmcnt(0)')
    e('s_endpgm')

    A.label('C_START')
    A.hist = []
    sRg, sP, sCnt, sRing, sDelta, sC, sGs, sSt0, sSr0, sNlo, sNhi, sSpin, sCh, sOb, sLd = range(sx, sx + 15)
    sMpar, sMc0, sMc1, sFirst = 78, 80, 82, 84
    sG = [86, 88, 90, 92]
    SO, SG_, SDb, SF = SA, SB, SC, SD
    R = RegAlloc(2, 254)
    vT = [R.alloc() for _ in range(6)]
    vAX = [R.alloc(), R.alloc()]
    vAW = R.alloc(); vAR = [R.alloc() for _ in range(4)]
    vFlag = R.alloc(); vC512 = R.alloc(); vDl = R.alloc()
    vSel = R.alloc(2); vN = R.alloc(2)
    vPP0, vPC0, vPP1, vPC1, vMG0, vNeg, vBp, vStM, vStR, vZ = [R.alloc() for _ in range(10)]
    names = ['Ka', 'Kb', 'Va', 'Vb', 'R', 'Qa', 'Qb']
    acc = [{n: R.alloc(4) for n in (names[:5] if t == 0 else names)} for t in range(5)]
    acc_lo = acc[0]['Ka']; acc_hi = acc[4]['Qb'] + 4
    Wf = {n: R.alloc(4) for n in names}
    Xf = [[R.alloc(4) for t in range(5)] for b in range(2)]
    buf_lo = Wf['Ka']
    vAW = [vAW, R.alloc()]
    vSy, vFa, vLand, vStg = [R.alloc() for _ in range(4)]
    ST.start()
    if OPT.get('prio', 2): e('s_setprio %d' % OPT.get('prio', 2))
    e('v_mov_b32 %s, 0' % v(vStg))
    e('s_lshl_b32 %s, %s, 2' % (s(sT0), s(sWv)))
    e('s_add_u32 %s, %s, %d' % (s(sT0), s(sT0), SY + 16))
    e('v_mov_b32 %s, %s' % (v(vFa), s(sT0)))
    e('ds_write_b32 %s, %s' % (v(vFa), v(vStg)))
    e('s_and_b32 %s, %s, 1' % (s(sRg), s(sWv)))
    e('s_lshr_b32 %s, %s, 1' % (s(sP), s(sWv)))
    e('v_lshlrev_b32 %s, 3, v0' % v(vT[5]))
    e('v_mov_b32 %s, 0' % v(vZ))
    e('s_waitcnt lgkmcnt(0)')
    mksrd(A, SG_, pG, 1152)
    vG = Xf[1][0]
    e('buffer_load_dwordx2 %s, %s, %s, 0 offen' % (v(vG, 2), v(vT[5]), s(SG_, 4)))
    mksrd(A, SDb, pDbg, 256)
    e('v_mov_b32 %s, 0' % v(vN))
    e('s_or_b32 %s, s2, %s' % (s(sT0), s(sWv)))
    e('s_cmp_eq_u32 %s, 0' % s(sT0))
    e('s_cbranch_scc0 C_NONONCE')
    e('s_memrealtime %s' % s(sM, 2))
    e('s_waitcnt lgkmcnt(0)')
    e('s_or_b32 %s, %s, 1' % (s(sM), s(sM)))
    e('v_mov_b32 %s, %s' % (v(vN), s(sM)))
    e('v_mov_b32 %s, %s' % (v(vN + 1), s(sM + 1)))
    e('buffer_store_dwordx2 %s, %s, %s, 0 offen offset:%d sc1' % (v(vN, 2), v(vZ), s(SDb, 4), NONCE))
    A.label('C_NONONCE')
    cLf, cOk, cMode = 4, 5, 6
    xcc_ids(cLf, cOk)
    mksrd(A, SO, pWs, GOFF + OP_BYTES)
    flag_srd(SF)
    i15, g, r4, c4 = vT[0], vT[1], vT[2], vT[3]
    e('v_and_b32 %s, 15, %s' % (v(i15), v(vLane)))
    e('v_lshrrev_b32 %s, 4, %s' % (v(g), v(vLane)))
    e('v_bfe_u32 %s, %s, 2, 2' % (v(r4), v(vLane)))
    e('v_and_b32 %s, 3, %s' % (v(c4), v(vLane)))
    e('v_lshrrev_b32 %s, 1, %s' % (v(vT[4]), v(i15)))
    e('v_xor_b32 %s, %s, %s' % (v(vT[4]), v(vT[4]), v(g)))
    e('v_lshlrev_b32 %s, 4, %s' % (v(vT[4]), v(vT[4])))
    e('v_lshl_add_u32 %s, %s, 7, %s' % (v(vT[4]), v(i15), v(vT[4])))
    e('s_lshl_b32 %s, %s, 13' % (s(sT0), s(sRg)))
    e('v_add_u32 %s, %s, %s' % (v(vAX[0]), s(sT0), v(vT[4])))
    e('v_xor_b32 %s, 64, %s' % (v(vAX[1]), v(vAX[0])))
    e('v_lshlrev_b32 %s, 3, %s' % (v(vT[4]), v(g)))
    e('v_lshl_add_u32 %s, %s, 1, %s' % (v(vT[4]), v(r4), v(vT[4])))
    e('v_mul_u32_u24 %s, 432, %s' % (v(vT[4]), v(vT[4])))
    e('s_mul_i32 %s, %s, 72' % (s(sT0), s(sP)))
    e('s_add_u32 %s, %s, %d' % (s(sT0), s(sT0), WOFF))
    e('v_add_u32 %s, %s, %s' % (v(vT[4]), s(sT0), v(vT[4])))
    e('v_lshl_add_u32 %s, %s, 3, %s' % (v(vAW[0]), v(c4), v(vT[4])))
    e('v_mov_b32 %s, %s' % (v(vAW[1]), v(vAW[0])))
    e('v_lshlrev_b32 %s, 2, %s' % (v(vSy), v(c4)))
    e('v_add_u32 %s, %d, %s' % (v(vSy), SY, v(vSy)))
    setmask(A, sM, lambda l: (l & 3) == 1)
    e('v_mov_b32 %s, 32' % v(vT[5]))
    e('v_mov_b32 %s, %d' % (v(vDl), 320))
    e('v_cndmask_b32 %s, %s, %s, %s' % (v(vT[5]), v(vT[5]), v(vDl), s(sM, 2)))
    setmask(A, sM, lambda l: (l & 3) == 2)
    e('v_mov_b32 %s, %d' % (v(vDl), 176))
    e('v_cndmask_b32 %s, %s, %s, %s' % (v(vT[5]), v(vT[5]), v(vDl), s(sM, 2)))
    e('v_add_u32 %s, %s, %s' % (v(vT[4]), v(vT[4]), v(vT[5])))
    e('v_lshl_add_u32 %s, %s, 3, %s' % (v(vT[5]), v(g), v(r4)))
    e('v_lshlrev_b32 %s, 3, %s' % (v(vT[5]), v(vT[5])))
    setmask(A, sM, lambda l: (l & 3) == 3)
    for ks in range(2):
        for j2 in range(2):
            a = vAR[ks * 2 + j2]
            e('v_add_u32 %s, %d, %s' % (v(a), ks * 13824 + j2 * 432, v(vT[4])))
            e('v_add_u32 %s, %d, %s' % (v(vDl), GB + (32 * ks + 4 * j2) * 8, v(vT[5])))
            e('v_cndmask_b32 %s, %s, %s, %s' % (v(a), v(a), v(vDl), s(sM, 2)))
    e('v_cndmask_b32 %s, 1, 0, %s' % (v(vFlag), s(sM, 2)))
    e('v_mov_b32 %s, 512' % v(vDl))
    e('v_cndmask_b32 %s, 0, %s, %s' % (v(vC512), v(vDl), s(sM, 2)))
    lo, hi = vT[4], vT[5]
    e('v_mov_b32 %s, 0x3f80' % v(lo)); e('v_mov_b32 %s, 1.0' % v(hi))
    def sel2(dst, f_lo, f_hi):
        e('v_mov_b32 %s, 0' % v(dst))
        if f_lo:
            setmask(A, sM, f_lo); e('v_cndmask_b32 %s, %s, %s, %s' % (v(dst), v(dst), v(lo), s(sM, 2)))
        if f_hi:
            setmask(A, sM, f_hi); e('v_cndmask_b32 %s, %s, %s, %s' % (v(dst), v(dst), v(hi), s(sM, 2)))
    sel2(vSel, lambda l: ((l >> 4) == 1 and (l & 7) == 0) or ((l >> 4) == 2 and (l & 3) >= 2), lambda l: (l >> 4) == 1 and (l & 7) == 1)
    sel2(vSel + 1, lambda l: (l >> 4) == 1 and (l & 7) == 4, lambda l: (l >> 4) == 1 and (l & 7) == 5)
    setmask(A, sMpar, lambda l: l & 1)
    setmask(A, sMc0, lambda l: 4 * (l >> 4) + (l & 1) <= (l & 15))
    setmask(A, sMc1, lambda l: 4 * (l >> 4) + 2 + (l & 1) <= (l & 15))
    e('v_mov_b32 %s, 0x0c0c0302' % v(lo)); e('v_mov_b32 %s, 0x03020c0c' % v(hi))
    e('v_cndmask_b32 %s, %s, %s, %s' % (v(lo), v(lo), v(hi), s(sMpar, 2)))
    e('v_mov_b32 %s, 0x0c0c0c0c' % v(hi))
    e('v_cndmask_b32 %s, %s, %s, %s' % (v(vPC0), v(hi), v(lo), s(sMc0, 2)))
    e('v_cndmask_b32 %s, %s, %s, %s' % (v(vPP0), v(lo), v(hi), s(sMc0, 2)))
    e('v_cndmask_b32 %s, %s, %s, %s' % (v(vPC1), v(hi), v(lo), s(sMc1, 2)))
    e('v_cndmask_b32 %s, %s, %s, %s' % (v(vPP1), v(lo), v(hi), s(sMc1, 2)))
    for k in range(4): setmask(A, sG[k], lambda l: (l >> 4) == k)
    e('v_cndmask_b32 %s, 0, -1, %s' % (v(vMG0), s(sG[0], 2)))
    e('v_mov_b32 %s, %s' % (v(vNeg), f32(-1e9 * math.sqrt(18.0))))
    e('v_lshlrev_b32 %s, 2, %s' % (v(vBp), v(i15)))
    e('v_add_u32 %s, 192, %s' % (v(vBp), v(vBp)))
    e('s_or_b32 %s, %s, %s' % (s(sT0), s(sRb), s(sRg)))
    e('s_cmp_eq_u32 %s, 0' % s(sT0))
    e('s_cselect_b64 %s, -1, 0' % s(sFirst, 2))
    e('s_mov_b32 %s, %s' % (s(sC), f32(18.0 ** -0.5 * math.log2(math.e))))
    e('s_cmp_eq_u32 %s, 0' % s(sBr))
    e('s_mov_b32 %s, %s' % (s(sGs), f32(math.log2(math.e))))
    e('s_cselect_b32 %s, %s, %s' % (s(sGs), f32(-math.log2(math.e)), s(sGs)))
    e('s_lshl_b32 %s, %s, 3' % (s(sT0), s(sRb)))
    e('s_lshl2_add_u32 %s, %s, %s' % (s(sT0), s(sRg), s(sT0)))
    e('s_mul_i32 %s, %s, 36864' % (s(sT0), s(sT0)))
    e('s_lshl_b32 %s, %s, 2' % (s(sT1), s(sHg)))
    e('s_lshl1_add_u32 %s, %s, %s' % (s(sT1), s(sBr), s(sT1)))
    e('s_add_u32 %s, %s, %s' % (s(sT1), s(sT1), s(sP)))
    e('s_add_u32 %s, %s, 4' % (s(sT1), s(sT1)))
    e('s_lshl_b32 %s, %s, 10' % (s(sT1), s(sT1)))
    e('s_add_u32 %s, %s, %s' % (s(sSt0), s(sT0), s(sT1)))
    e('s_lshl_b32 %s, %s, 8' % (s(sT1), s(sHgb)))
    e('s_lshl3_add_u32 %s, %s, %s' % (s(sT1), s(sP), s(sT1)))
    e('s_add_u32 %s, %s, %s' % (s(sSr0), s(sT0), s(sT1)))
    e('v_lshlrev_b32 %s, 4, %s' % (v(vStM), v(vLane)))
    e('v_lshrrev_b32 %s, 1, %s' % (v(lo), v(g)))
    e('v_mul_u32_u24 %s, 36864, %s' % (v(lo), v(lo)))
    e('v_lshl_add_u32 %s, %s, 4, %s' % (v(lo), v(i15), v(lo)))
    e('v_and_b32 %s, 1, %s' % (v(hi), v(g)))
    e('v_lshl_add_u32 %s, %s, 2, %s' % (v(vStR), v(hi), v(lo)))
    vPA, vPD = 250, 251
    e('s_sub_u32 %s, %s, %s' % (s(sT1), s(sSr0), s(sSt0)))
    e('s_mul_i32 %s, %s, 120' % (s(sT0), s(sP)))
    e('s_add_u32 %s, %s, %s' % (s(sT1), s(sT1), s(sT0)))
    e('v_and_b32 %s, 7, %s' % (v(lo), v(vLane)))
    e('v_lshlrev_b32 %s, 7, %s' % (v(lo), v(lo)))
    e('v_lshrrev_b32 %s, 3, %s' % (v(hi), v(vLane)))
    e('v_mov_b32 %s, %s' % (v(vPA), s(sT1)))
    e('v_cmp_gt_u32 vcc, 32, %s' % v(vLane))
    e('v_cndmask_b32 %s, %s, %s, vcc' % (v(lo), v(vPA), v(lo)))
    e('v_cndmask_b32 %s, %s, %s, vcc' % (v(hi), v(c4), v(hi)))
    e('v_mul_u32_u24 %s, 36864, %s' % (v(hi), v(hi)))
    e('v_add3_u32 %s, %s, %s, %s' % (v(vPA), v(lo), v(hi), s(sSt0)))
    phase2_ids()
    assert acc_lo % 2 == 0
    for r in range(acc_lo, acc_hi, 2):
        e('v_mov_b64 %s, 0' % v(r, 2))
    e('s_lshl_b32 %s, %s, 4' % (s(sT0), s(sRot)))
    e('v_subrev_u32 %s, %s, v0' % (v(lo), s(sT0)))
    e('v_add_u32 %s, 144, %s' % (v(hi), v(lo)))
    e('v_cmp_gt_i32 vcc, 0, %s' % v(lo))
    e('v_cndmask_b32 %s, %s, %s, vcc' % (v(lo), v(lo), v(hi)))
    e('v_mov_b32 %s, 144' % v(hi))
    e('v_cmp_gt_u32 vcc, 144, v0')
    e('v_cndmask_b32 %s, %s, %s, vcc' % (v(lo), v(hi), v(lo)))
    e('v_lshlrev_b32 %s, 5, %s' % (v(lo), v(lo)))
    e('v_add_u32 %s, %d, %s' % (v(lo), GB, v(lo)))
    ST.mark()
    e('s_or_b32 %s, s2, %s' % (s(sT0), s(sWv)))
    e('s_cbranch_scc0 C_GW0')
    e('s_waitcnt vmcnt(0)')
    A.label('C_GW0')
    e('s_waitcnt vmcnt(1)')
    gq = Xf[1][1]
    e('s_mov_b32 %s, 0x01000100' % s(sT0)); e('s_mov_b32 %s, 0x03020302' % s(sT1))
    for k in range(2):
        e('v_perm_b32 %s, %s, %s, %s' % (v(gq + 4 * k), v(vG + k), v(vG + k), s(sT0)))
        e('v_perm_b32 %s, %s, %s, %s' % (v(gq + 4 * k + 2), v(vG + k), v(vG + k), s(sT1)))
        e('v_mov_b32 %s, %s' % (v(gq + 4 * k + 1), v(gq + 4 * k)))
        e('v_mov_b32 %s, %s' % (v(gq + 4 * k + 3), v(gq + 4 * k + 2)))
    e('ds_write_b128 %s, %s' % (v(lo), v(gq, 4)))
    e('ds_write_b128 %s, %s offset:16' % (v(lo), v(gq + 4, 4)))
    e('s_mov_b32 %s, 0' % s(sCnt)); e('s_mov_b32 %s, 0' % s(sRing))
    if OPT.get('tw'):
        e('s_mov_b64 exec, 1')
        e('buffer_load_dword %s, %s, %s, 0 offen sc1' % (v(vPD), v(vPA), s(SO, 4)))
        e('buffer_load_dword %s, %s, %s, %s offen offset:64' % (v(vPD), v(vZ), s(SF, 4), s(cLf)))
        e('s_mov_b64 exec, -1')
    e('s_waitcnt lgkmcnt(0)')
    ST.mark()
    e('s_barrier')
    e('s_mov_b32 %s, 0' % s(sSpin))
    def spin(L, back):
        A.label(L)
        e('ds_read_b32 %s, %s' % (v(vLand), v(vSy)))
        e('s_add_u32 %s, %s, 1' % (s(sSpin), s(sSpin)))
        e('s_waitcnt lgkmcnt(0)')
        e('v_cmp_le_u32 vcc, %s, %s' % (v(vLand), v(vStg)))
        e('s_cbranch_vccz %s' % back)
        e('s_cmp_lt_u32 %s, %d' % (s(sSpin), 2 * SPIN))
        e('s_cbranch_scc1 %s' % L)
    spin('C_SPIN0', 'C_GO')
    A.label('C_GO')
    ST.mark()
    toff = {'Qa': 0, 'Qb': 40, 'Ka': 144, 'Kb': 184, 'Va': 288, 'Vb': 328}
    G = names
    def xread(Q, ks, t):
        Q.rd('ds_read_b128 %s, %s offset:%d' % (v(Xf[ks][t], 4), v(vAX[ks]), 2048 * t), Xf[ks][t], 4)
    def wread(Q, ks, n, j2):
        if n == 'R': Q.rd('ds_read_b64_tr_b16 %s, %s' % (v(Wf[n] + 2 * j2, 2), v(vAR[ks * 2 + j2])), Wf[n] + 2 * j2, 2)
        else: Q.rd('ds_read_b64_tr_b16 %s, %s offset:%d' % (v(Wf[n] + 2 * j2, 2), v(vAW[ks]), ks * 13824 + j2 * 432 + toff[n]), Wf[n] + 2 * j2, 2)
    seq = [(n, t) for n in G for t in range(5) if n in acc[t]]
    def mf_text(ks, n, t):
        d = acc[t][n]; x = Xf[ks][t]
        a, b = (x, Wf[n]) if n[0] == 'V' else (Wf[n], x)
        return 'v_mfma_f32_16x16x32_bf16 %s, %s, %s, %s' % (v(d, 4), v(a, 4), v(b, 4), v(d, 4))
    XPOS = [3, 7, 11, 16, 20]
    def half(A_, Q, ks):
        e = A_.e
        fill = {}
        def at(p, f): fill.setdefault(p, []).append(f)
        o = ks ^ 1
        at(0, lambda: wread(Q, ks, G[-1], 1))
        for k, (n, t) in enumerate(seq):
            if k + 1 == len(seq) or seq[k + 1][0] != n:
                at(k, lambda n=n: wread(Q, o, n, 0))
                if k + 1 < len(seq): at(k + 1, lambda n=n: wread(Q, o, n, 1))
        for t, p in enumerate(XPOS): at(p, lambda t=t: xread(Q, o, t))
        if ks == 0:
            at(0, lambda: e('s_cmp_eq_u32 %s, %d' % (s(sRing), 2 * S)))
            at(1, lambda: e('s_mov_b32 %s, %d' % (s(sDelta), S)))
            at(1, lambda: e('s_cselect_b32 %s, %d, %s' % (s(sDelta), -2 * S, s(sDelta))))
            at(2, lambda: e('s_add_u32 %s, %s, %s' % (s(sRing), s(sRing), s(sDelta))))
            at(2, lambda: e('v_mad_i32_i24 %s, %s, %s, %s' % (v(vDl), v(vFlag), s(sDelta), v(vC512))))
        else:
            at(30, lambda: e('s_add_u32 %s, %s, 1' % (s(sCnt), s(sCnt))))
            at(31, lambda: e('s_cmp_lt_u32 %s, 9' % s(sCnt)))
        at(29, lambda: Q.rd('ds_read_b32 %s, %s' % (v(vLand), v(vSy)), vLand, 1))
        at(1, lambda: Q.rd('ds_write_b32 %s, %s' % (v(vFa), v(vStg)), 0, 0))
        def chk():
            Q.need((vLand, 1))
            e('v_cmp_le_u32 vcc, %s, %s' % (v(vLand), v(vStg)))
            e('s_cbranch_vccnz C_SPIN%d' % (ks + 1))
            A_.label('C_BACK%d' % (ks + 1))
        at(2, chk)
        at(7, lambda: e('v_add_u32 %s, 1, %s' % (v(vStg), v(vStg))))
        at(6, lambda: e('v_add_u32 %s, %s, %s' % (v(vAX[ks]), s(sDelta), v(vAX[ks]))))
        at(8, lambda: e('v_add_u32 %s, %s, %s' % (v(vAW[ks]), s(sDelta), v(vAW[ks]))))
        at(12, lambda: e('v_add_u32 %s, %s, %s' % (v(vAR[2 * ks]), v(vDl), v(vAR[2 * ks]))))
        at(15, lambda: e('v_add_u32 %s, %s, %s' % (v(vAR[2 * ks + 1]), v(vDl), v(vAR[2 * ks + 1]))))
        for k, (n, t) in enumerate(seq):
            Q.need((Wf[n], 4), (Xf[ks][t], 4))
            e(mf_text(ks, n, t))
            for f in fill.get(k, []): f()
    state = []
    for it in range(3):
        A2 = Asm(); Q2 = LQ(A2); Q2.q = [set(x) for x in state]
        half(A2, Q2, 0); half(A2, Q2, 1)
        new = [set(x) for x in Q2.q]
        if new == state: break
        state = new
    else:
        raise Exception('no fixed point')
    Q = LQ(A)
    for t in range(5): xread(Q, 0, t)
    for n in G:
        wread(Q, 0, n, 0)
        if n != G[-1]: wread(Q, 0, n, 1)
    e('v_mov_b32 %s, 1' % v(vStg))
    Q.drain()
    Q.q = [set(x) for x in state]
    A.barrier_hazards()
    A.label('C_LOOP')
    half(A, Q, 0)
    half(A, Q, 1)
    assert [set(x) for x in Q.q] == state
    e('s_cbranch_scc1 C_LOOP')
    e('s_branch C_EPI')
    for k in (1, 2):
        spin('C_SPIN%d' % k, 'C_BACK%d' % k)
        e('s_branch C_BACK%d' % k)
    A.label('C_EPI')
    A.barrier_hazards()
    ST.mark()
    Q.drain()
    if OPT.get('pt', 9) == 9:
        e('s_mov_b32 exec_hi, 15')
        e('buffer_load_dword %s, %s, %s, 0 offen sc1' % (v(vPD), v(vPA), s(SO, 4)))
        e('s_mov_b64 exec, -1')
    E = RegAlloc(buf_lo, 250)
    KB = [E.alloc(6) for _ in range(5)]
    VA = E.alloc(10); VB = E.alloc(10); VR = E.alloc(10)
    tg = [E.alloc() for _ in range(4)]
    Tq = [E.alloc(2) for _ in range(5)]
    def pk(dst, src):
        e('v_cvt_pk_bf16_f32 %s, %s, %s' % (v(dst), v(src), v(src + 1)))
        e('v_cvt_pk_bf16_f32 %s, %s, %s' % (v(dst + 1), v(src + 2), v(src + 3)))
    e('v_mov_b32 %s, %d' % (v(vDl), MODEW))
    e('ds_read_b64 %s, %s offset:8' % (v(vN, 2), v(vDl)))
    e('ds_read_b32 %s, %s' % (v(vDl), v(vDl)))
    for t in range(4):
        e('ds_bpermute_b32 %s, %s, %s' % (v(tg[t]), v(vBp), v(acc[t + 1]['R'])))
    e('s_mov_b32 %s, 0x3f803f80' % s(sT0))
    for t in range(5):
        pk(Tq[t], acc[t]['R'])
        e('v_mov_b32 %s, %s' % (v(KB[t] + 2), s(sT0))); e('v_mov_b32 %s, %s' % (v(KB[t] + 3), s(sT0)))
    e('s_waitcnt lgkmcnt(0)')
    for t in range(5):
        e('v_permlane32_swap_b32 %s, %s' % (v(Tq[t]), v(KB[t] + 2)))
        e('v_permlane32_swap_b32 %s, %s' % (v(Tq[t] + 1), v(KB[t] + 3)))
    for t in range(5):
        e('v_mfma_f32_16x16x16_bf16 %s, %s, %s, 0' % (v(acc[t]['R'], 4), v(Tq[t], 2), v(vSel, 2)))
        pk(KB[t], acc[t]['Ka']); pk(KB[t] + 4, acc[t]['Kb'])
    QB = [None] + [acc[t]['Ka'] for t in range(1, 5)]
    for t in range(1, 5):
        assert acc[t]['Kb'] == acc[t]['Ka'] + 4
        pk(QB[t], acc[t]['Qa']); pk(QB[t] + 6, acc[t]['Qb'])
        e('v_and_b32 %s, %s, %s' % (v(QB[t] + 2), v(vMG0), v(Tq[t])))
        e('v_mov_b32 %s, 0' % v(QB[t] + 3)); e('v_mov_b32 %s, 0' % v(QB[t] + 4))
        e('v_and_b32 %s, %s, %s' % (v(QB[t] + 5), v(vMG0), v(Tq[t] + 1)))
    def mf32(d, a, b):
        e('v_mfma_f32_16x16x32_bf16 %s, %s, %s, 0' % (v(d, 4), v(a, 4), v(b, 4)))
    def touch():
        e('s_mov_b32 exec_hi, 15')
        e('buffer_load_dword %s, %s, %s, 0 offen sc1' % (v(vPD), v(vPA), s(SO, 4)))
        e('s_mov_b64 exec, -1')
    if OPT.get('pt') == 10: touch()
    def vconv(t):
        pk(VA + 2 * t, acc[t]['Va']); pk(VB + 2 * t, acc[t]['Vb']); pk(VR + 2 * t, acc[t]['R'])
    def attn(ts, Sreg, pre):
        units = [(t, h) for t in ts for h in range(2)]
        Sp = Sreg[0:4]; Sc = Sreg[4:8]
        for u, (t, h) in enumerate(units):
            mf32(Sp[u], KB[t - 1] + 2 * h, QB[t] + 4 * h); mf32(Sc[u], KB[t] + 2 * h, QB[t] + 4 * h)
        pre()
        for u, (t, h) in enumerate(units):
            for k, mc in ((0, sMc0), (1, sMc1)):
                e('v_cndmask_b32 %s, %s, %s, %s' % (v(Sp[u] + 2 * k), v(Sp[u] + 2 * k), v(Sp[u] + 2 * k + 1), s(sMpar, 2)))
                e('v_cndmask_b32 %s, %s, %s, %s' % (v(Sc[u] + 2 * k), v(Sc[u] + 2 * k), v(Sc[u] + 2 * k + 1), s(sMpar, 2)))
                if t == 1:
                    e('v_cndmask_b32 %s, %s, %s, %s' % (v(Sp[u] + 2 * k), v(Sp[u] + 2 * k), v(vNeg), s(sFirst, 2)))
                e('v_cndmask_b32 %s, %s, %s, %s' % (v(Sp[u] + 2 * k), v(Sp[u] + 2 * k), v(Sc[u] + 2 * k), s(mc, 2)))
            e('v_max_f32 %s, %s, %s' % (v(Sp[u] + 1), v(Sp[u]), v(Sp[u] + 2)))
        m = [Sp[u] + 1 for u in range(4)]
        e('v_permlane32_swap_b32 %s, %s' % (v(m[0]), v(m[1])))
        e('v_permlane32_swap_b32 %s, %s' % (v(m[2]), v(m[3])))
        e('v_max_f32 %s, %s, %s' % (v(m[0]), v(m[0]), v(m[1])))
        e('v_max_f32 %s, %s, %s' % (v(m[2]), v(m[2]), v(m[3])))
        e('v_permlane16_swap_b32 %s, %s' % (v(m[0]), v(m[2])))
        e('v_max_f32 %s, %s, %s' % (v(m[0]), v(m[0]), v(m[2])))
        e('v_mul_f32 %s, %s, %s' % (v(m[0]), s(sC), v(m[0])))
        e('v_mov_b32 %s, %s' % (v(m[2]), v(m[0])))
        e('v_permlane16_swap_b32 %s, %s' % (v(m[0]), v(m[2])))
        e('v_mov_b32 %s, %s' % (v(m[1]), v(m[0])))
        e('v_mov_b32 %s, %s' % (v(m[3]), v(m[2])))
        e('v_permlane32_swap_b32 %s, %s' % (v(m[0]), v(m[1])))
        e('v_permlane32_swap_b32 %s, %s' % (v(m[2]), v(m[3])))
        for u in range(4):
            for k in range(2):
                e('v_fma_f32 %s, %s, %s, -%s' % (v(Sp[u] + 2 * k), v(Sp[u] + 2 * k), s(sC), v(m[u])))
        for u in range(4):
            for k in range(2):
                e('v_exp_f32 %s, %s' % (v(Sp[u] + 2 * k), v(Sp[u] + 2 * k)))
        P = Sc
        for u in range(4):
            for k, (pp, pc) in enumerate(((vPP0, vPC0), (vPP1, vPC1))):
                e('v_perm_b32 %s, %s, %s, %s' % (v(P[u] + k), v(Sp[u] + 2 * k), v(Sp[u] + 2 * k), v(pp)))
                e('v_perm_b32 %s, %s, %s, %s' % (v(P[u] + 2 + k), v(Sp[u] + 2 * k), v(Sp[u] + 2 * k), v(pc)))
        OR = Sp; O = [QB[t] + 4 * h for (t, h) in units]
        for u, (t, h) in enumerate(units):
            mf32(OR[u], VR + 2 * (t - 1), P[u])
        for u, (t, h) in enumerate(units):
            mf32(O[u], (VA, VB)[h] + 2 * (t - 1), P[u])
        for u, (t, h) in enumerate(units):
            e('v_mul_f32 %s, %s, %s' % (v(OR[u] + 2), v(OR[u] + 2), v(tg[t - 1])))
        for u in range(4):
            e('v_rcp_f32 %s, %s' % (v(OR[u] + 2), v(OR[u] + 2)))
        outR = P[0]
        for u, (t, h) in enumerate(units):
            for k in range(4):
                e('v_mul_f32 %s, %s, %s' % (v(O[u] + k), v(OR[u] + 2), v(O[u] + k)))
            o = P[2 + (u >> 1)]
            pk(o + 2 * h, O[u])
            if h == 1:
                e('s_add_u32 %s, %s, %d' % (s(sT0), s(sSt0), 36864 * (t - 1)))
                e('buffer_store_dwordx4 %s, %s, %s, %s offen' % (v(o, 4), v(vStM), s(SO, 4), s(sT0)))
                again.append(('buffer_store_dwordx4 %s, %s, %s, %s offen sc1' % (v(o, 4), v(vStM), s(SO, 4), s(sT0)), sSt0, 36864 * (t - 1)))
        for u in range(4):
            e('s_mov_b64 exec, %s' % s(sG[u], 2))
            e('v_mul_f32 %s, %s, %s' % (v(OR[u]), v(OR[u] + 2), v(OR[u])))
            e('v_mul_f32 %s, %s, %s' % (v(OR[u] + 1), v(OR[u] + 2), v(OR[u] + 1)))
            e('v_cvt_pk_bf16_f32 %s, %s, %s' % (v(outR), v(OR[u]), v(OR[u] + 1)))
        e('s_mov_b64 exec, -1')
        e('s_add_u32 %s, %s, %d' % (s(sT0), s(sSr0), 36864 * (ts[0] - 1)))
        e('buffer_store_dword %s, %s, %s, %s offen' % (v(outR), v(vStR), s(SO, 4), s(sT0)))
        again.append(('buffer_store_dword %s, %s, %s, %s offen sc1' % (v(outR), v(vStR), s(SO, 4), s(sT0)), sSr0, 36864 * (ts[0] - 1)))
    again = []
    S1 = [acc[t][n] for t in range(1, 5) for n in ('Qa', 'Qb')]
    def pre1():
        for t in range(5): vconv(t)
        for t in range(4):
            e('v_mul_f32 %s, %s, %s' % (v(tg[t]), s(sGs), v(tg[t])))
            e('v_exp_f32 %s, %s' % (v(tg[t]), v(tg[t])))
        for t in range(4):
            e('v_add_f32 %s, 1.0, %s' % (v(tg[t]), v(tg[t])))
    attn([1, 2], S1, pre1)
    S2 = [acc[t][n] for t in range(0, 3) for n in ('Va', 'Vb', 'R')][:8]
    attn([3, 4], S2, lambda: None)
    ST.mark()
    pv = acc[0]['Ka']; pa = acc[0]['Kb']; sPb = sRing
    def poll_setup(split):
        e('v_readfirstlane_b32 %s, %s' % (s(sNlo), v(vN)))
        e('v_readfirstlane_b32 %s, %s' % (s(sNhi), v(vN + 1)))
        e('s_add_u32 %s, %s, %d' % (s(sT1), s(sMb), NT - 1))
        e('s_lshr_b32 %s, %s, 3' % (s(sT0), s(sMb)))
        e('s_lshr_b32 %s, %s, 3' % (s(sT1), s(sT1)))
        e('s_sub_u32 %s, %s, %s' % (s(sT1), s(sT1), s(sT0)))
        e('s_lshl_b32 %s, %s, 11' % (s(sT0), s(sT0)))
        e('s_lshl_b32 %s, %s, 11' % (s(sT1), s(sT1)))
        e('v_and_b32 %s, 15, %s' % (v(pa), v(vLane)))
        e('v_lshlrev_b32 %s, 7, %s' % (v(pa), v(pa)))
        e('v_bfe_u32 %s, %s, 4, 1' % (v(pa + 1), v(vLane)))
        e('v_mad_u32_u24 %s, %s, %s, %s' % (v(pa), v(pa + 1), s(sT1), v(pa)))
        e('v_lshrrev_b32 %s, 5, %s' % (v(pa + 1), v(vLane)))
        e('v_lshl_add_u32 %s, %s, 4, %s' % (v(pa), v(pa + 1), v(pa)))
        e('s_mov_b32 %s, 0' % s(sSpin))
        e('s_add_u32 %s, %s, %s' % (s(sPb), s(sT0), s(cLf)))
        if split:
            e('s_lshl_b32 %s, %s, 2' % (s(sT1), s(sWv)))
            e('s_lshl_b32 %s, 0x000f000f, %s' % (s(sM), s(sT1)))
            e('s_mov_b32 %s, %s' % (s(sM + 1), s(sM)))
        else:
            e('s_mov_b64 %s, -1' % s(sM, 2))
    e('v_readfirstlane_b32 %s, %s' % (s(cMode), v(vDl)))
    e('s_lshl4_add_u32 %s, %s, %s' % (s(sDelta), s(sRb), s(sHgb)))
    e('s_lshl_b32 %s, %s, 7' % (s(sDelta), s(sDelta)))
    e('s_lshl3_add_u32 %s, %s, %s' % (s(sDelta), s(sWv), s(sDelta)))
    e('s_cmp_eq_u32 %s, 0' % s(cMode))
    e('s_cbranch_scc0 C_ACK')
    for txt, sb, off in again:
        e('s_add_u32 %s, %s, %d' % (s(sT0), s(sb), off + GOFF))
        e(txt)
    e('s_mov_b32 %s, 0' % s(sSpin))
    A.label('C_NSPIN')
    e('s_waitcnt vmcnt(0)')
    e('v_readfirstlane_b32 %s, %s' % (s(sNlo), v(vN)))
    e('s_cmp_lg_u32 %s, 0' % s(sNlo))
    e('s_cbranch_scc1 C_NOK')
    e('buffer_load_dwordx2 %s, %s, %s, 0 offen offset:%d sc1' % (v(vN, 2), v(vZ), s(SDb, 4), NONCE))
    e('s_add_u32 %s, %s, 1' % (s(sSpin), s(sSpin)))
    e('s_cmp_lt_u32 %s, %d' % (s(sSpin), SPIN))
    e('s_cbranch_scc1 C_NSPIN')
    e('s_waitcnt vmcnt(0)')
    A.label('C_NOK')
    e('s_mov_b64 exec, 1')
    e('buffer_store_dwordx2 %s, %s, %s, %s offen sc1' % (v(vN, 2), v(vZ), s(SF, 4), s(sDelta)))
    e('s_mov_b64 exec, -1')
    poll_setup(False)
    e('s_cmp_eq_u32 %s, 0' % s(cOk))
    e('s_cbranch_scc1 C_BW')
    e('s_branch C_LF')
    A.label('C_ACK')
    e('s_nop 1')
    poll_setup(True)
    e('s_waitcnt vmcnt(0)')
    A.label('C_LF')
    e('s_add_u32 %s, %s, %s' % (s(sDelta), s(sDelta), s(cLf)))
    e('s_mov_b64 exec, 1')
    e('buffer_store_dwordx2 %s, %s, %s, %s offen' % (v(vN, 2), v(vZ), s(SF, 4), s(sDelta)))
    e('s_mov_b64 exec, -1')
    A.label('C_BW')
    ST.mark()
    e('s_cmp_ge_u32 %s, 3' % s(sL2))
    e('s_cbranch_scc1 C_DONE')
    e('s_cmp_eq_u32 %s, 0' % s(cMode))
    e('s_cselect_b32 %s, %s, 0' % (s(sT1), s(sWv)))
    e('s_cmp_eq_u32 %s, 0' % s(sT1))
    e('s_cbranch_scc0 C_NOPOLL')
    e('s_mov_b64 exec, %s' % s(sM, 2))
    def chk():
        e('s_waitcnt vmcnt(0)')
        e('v_xor_b32 %s, %s, %s' % (v(pv), s(sNlo), v(pv)))
        e('v_xor_b32 %s, %s, %s' % (v(pv + 1), s(sNhi), v(pv + 1)))
        e('v_xor_b32 %s, %s, %s' % (v(pv + 2), s(sNlo), v(pv + 2)))
        e('v_xor_b32 %s, %s, %s' % (v(pv + 3), s(sNhi), v(pv + 3)))
        e('v_or3_b32 %s, %s, %s, %s' % (v(pv), v(pv), v(pv + 1), v(pv + 2)))
        e('v_or_b32 %s, %s, %s' % (v(pv), v(pv), v(pv + 3)))
        e('v_cmp_ne_u32 vcc, 0, %s' % v(pv))
    A.label('C_POLL')
    e('buffer_load_dwordx4 %s, %s, %s, %s offen %s' % (v(pv, 4), v(pa), s(SF, 4), s(sPb), OPT.get('pl', 'sc1')))
    e('v_mov_b32 %s, 0' % v(pa + 2))
    chk()
    e('s_add_u32 %s, %s, 1' % (s(sSpin), s(sSpin)))
    e('s_cbranch_vccz C_PSEL')
    e('s_cmp_eq_u32 %s, 0' % s(cMode))
    e('s_cbranch_scc0 C_PNXT')
    e('buffer_load_dwordx4 %s, %s, %s, %s offen sc1' % (v(pv, 4), v(pa), s(SF, 4), s(sT0)))
    e('v_mov_b32 %s, %d' % (v(pa + 2), GOFF))
    chk()
    e('s_nop 1')
    e('s_cbranch_vccz C_PSEL')
    A.label('C_PNXT')
    e('s_cmp_lt_u32 %s, %d' % (s(sSpin), SPIN))
    e('s_cbranch_scc1 C_POLL')
    A.label('C_PSEL')
    e('s_mov_b64 exec, -1')
    e('s_cmp_eq_u32 %s, 0' % s(cMode))
    e('s_cbranch_scc0 C_NOPOLL')
    e('v_mov_b32 %s, %d' % (v(pa + 3), MODEW + 4))
    e('ds_write_b32 %s, %s' % (v(pa + 3), v(pa + 2)))
    e('s_waitcnt lgkmcnt(0)')
    A.label('C_NOPOLL')
    e('s_mul_i32 %s, %s, %d' % (s(sOb), s(sMb), 36864))
    e('s_lshl_b32 %s, %s, 10' % (s(sLd), s(sWv)))
    e('s_add_u32 %s, %s, %s' % (s(sOb), s(sOb), s(sLd)))
    e('s_mov_b32 %s, %s' % (s(sCh), s(sRot2)))
    e('s_mov_b32 %s, 0' % s(sCnt))
    if OPT.get('p2oob'): e('v_add_u32 %s, %d, %s' % (v(vStM), OOB, v(vStM)))
    ST.mark()
    e('s_barrier')
    ST.mark()
    e('s_cmp_eq_u32 %s, 0' % s(cMode))
    e('s_cbranch_scc0 C_OL')
    e('v_mov_b32 %s, %d' % (v(pa + 3), MODEW + 4))
    e('ds_read_b32 %s, %s' % (v(pa + 2), v(pa + 3)))
    e('s_waitcnt lgkmcnt(0)')
    e('v_readfirstlane_b32 %s, %s' % (s(sT0), v(pa + 2)))
    e('s_and_b32 %s, %s, %d' % (s(sT0), s(sT0), GOFF))
    e('s_add_u32 %s, %s, %s' % (s(sOb), s(sOb), s(sT0)))
    A.label('C_OL')
    P2S = OPT.get('p2s', 0)
    if P2S == 0:
        e('s_cmp_lt_u32 %s, 3' % s(sCnt))
        e('s_cbranch_scc1 C_OI')
    else:
        e('s_cmp_eq_u32 %s, %d' % (s(sCnt), 3 - P2S))
        e('s_cbranch_scc0 C_OW')
        e('s_waitcnt vmcnt(%d)' % ((2 - P2S) * NT))
        e('s_barrier')
        A.label('C_OW')
        e('s_cmp_lt_u32 %s, 4' % s(sCnt))
        e('s_cbranch_scc1 C_OI')
    e('s_waitcnt vmcnt(%d)' % (2 * NT))
    e('s_barrier')
    A.label('C_OI')
    e('s_lshl_b32 %s, %s, 12' % (s(sT0), s(sCh)))
    e('s_add_u32 %s, %s, %s' % (s(sT0), s(sT0), s(sOb)))
    for t in range(NT):
        e('s_add_u32 %s, %s, %d' % (s(sT1), s(sT0), 36864 * t))
        e('s_add_u32 m0, %s, %d' % (s(sLd), 4096 * t))
        e('buffer_load_dwordx4 %s, %s, %s offen lds' % (v(vStM), s(SO, 4), s(sT1)))
    e('s_add_u32 %s, %s, 1' % (s(sCh), s(sCh)))
    e('s_cmp_eq_u32 %s, 9' % s(sCh))
    e('s_cselect_b32 %s, 0, %s' % (s(sCh), s(sCh)))
    e('s_add_u32 %s, %s, %d' % (s(sLd), s(sLd), CHB))
    e('s_cmp_eq_u32 %s, 5' % s(sCnt))
    e('s_cselect_b32 %s, %d, 0' % (s(sT0), 6 * CHB))
    e('s_sub_u32 %s, %s, %s' % (s(sLd), s(sLd), s(sT0)))
    e('s_add_u32 %s, %s, 1' % (s(sCnt), s(sCnt)))
    e('s_cmp_lt_u32 %s, 9' % s(sCnt))
    e('s_cbranch_scc1 C_OL')
    for n in (2 * NT, NT, 0):
        e('s_waitcnt vmcnt(%d)' % n)
        e('s_barrier')
    A.label('C_DONE')
    ST.finish(SD, pWs, vT[0], False)
    A.label('K_END')
    e('s_endpgm')

def desc(label, vg=256):
    return '''.amdhsa_kernel %s
  .amdhsa_next_free_vgpr %d
  .amdhsa_next_free_sgpr 102
  .amdhsa_accum_offset %d
  .amdhsa_group_segment_fixed_size 0
  .amdhsa_kernarg_size 80
  .amdhsa_user_sgpr_count 2
  .amdhsa_user_sgpr_kernarg_segment_ptr 1
  .amdhsa_system_sgpr_workgroup_id_x 1
.end_amdhsa_kernel
''' % (label, vg, vg)

def main(path):
    A = Asm(); lab = NAME + '_kernel'
    kernel(A, lab)
    hdr = '; @launch grid=(256,1,1) block=(512,1,1) lds=%d\n' % LDS
    hdr += '.amdgcn_target "amdgcn-amd-amdhsa--gfx950"\n.text\n'
    txt = hdr + A.text() + '.section .rodata,"a"\n.p2align 6\n' + desc(lab)
    open(path, 'w').write(txt)
    print('instrs', A.nins)

if __name__ == '__main__':
    for a in sys.argv[2:]:
        if '=' in a:
            k, val = a.split('='); OPT[k] = int(val)
        else: OPT[a] = True
    main(sys.argv[1] if len(sys.argv) > 1 else 'g2.s')
```

```python
import sys, math, struct, os
sys.path.insert(0, 'gen')
from asmlib import *

NAME = 'gated_mix__sliding_local_dilated__sliding_local_dilated__prompt'
OOB = 0x40000000
def f32(x): return '0x%08x' % struct.unpack('<I', struct.pack('<f', x))[0]
def lanemask(fn):
    m = 0
    for l in range(64):
        if fn(l): m |= 1 << l
    return m
def setmask(A, sr, fn):
    m = lanemask(fn)
    lo, hi = m & 0xffffffff, m >> 32
    A.e('s_mov_b32 %s, 0x%08x' % (s(sr), lo))
    A.e('s_mov_b32 %s, 0x%08x' % (s(sr + 1), hi))
def mksrd(A, sr, src, nbytes):
    A.e('s_mov_b32 %s, %s' % (s(sr), s(src)))
    A.e('s_and_b32 %s, %s, 0xffff' % (s(sr + 1), s(src + 1)))
    A.e('s_mov_b32 %s, %d' % (s(sr + 2), nbytes))
    A.e('s_mov_b32 %s, 0x00020000' % s(sr + 3))

OP_BYTES = 128 * 36864
S = 46080; WOFF = 18432
WO0 = 138240
GB = WO0 + 16384
LDS = 163840
NT = 6
CHB = 4096 * NT
MODEW = GB + 4672
NONCE = 192
SY = GB + 5120
SPIN = int(os.environ.get('SPIN', 200000))
FLAG_OFF = 12 << 20
GOFF = 5 << 20
STAMP_OFF = 16 << 20

OPT = {'stamp': False}

class Stamper:
    def __init__(self, A, vreg, sreg, slane):
        self.A = A; self.v = vreg; self.s = sreg; self.sl = slane
    def start(self):
        if not OPT['stamp']: return
        e = self.A.e
        e('v_mov_b32 %s, 0' % v(self.v))
        e('s_memrealtime %s' % s(self.s, 2)); e('s_waitcnt lgkmcnt(0)')
        e('v_writelane_b32 %s, %s, 63' % (v(self.v), s(self.s)))
        e('s_mov_b32 %s, 0' % s(self.sl))
        self.mark()
    def mark(self):
        if not OPT['stamp']: return
        e = self.A.e
        e('s_memtime %s' % s(self.s, 2)); e('s_waitcnt lgkmcnt(0)')
        e('s_mov_b32 m0, %s' % s(self.sl))
        e('v_writelane_b32 %s, %s, m0' % (v(self.v), s(self.s)))
        e('s_add_u32 %s, %s, 1' % (s(self.sl), s(self.sl)))
    def finish(self, srdreg, wsreg, vtmp, wait=True):
        if not OPT['stamp']: return
        e = self.A.e
        if wait: e('s_waitcnt vmcnt(0)')
        self.mark()
        e('s_memrealtime %s' % s(self.s, 2)); e('s_waitcnt lgkmcnt(0)')
        e('v_writelane_b32 %s, %s, 62' % (v(self.v), s(self.s)))
        mksrd(self.A, srdreg, wsreg, 64 << 20)
        e('s_lshl_b32 %s, s2, 11' % s(self.s))
        e('s_add_u32 %s, %s, %d' % (s(self.s), s(self.s), STAMP_OFF))
        e('v_lshlrev_b32 %s, 2, v0' % v(vtmp))
        e('buffer_store_dword %s, %s, %s, %s offen' % (v(self.v), v(vtmp), s(srdreg, 4), s(self.s)))

class DbgStamper:
    def __init__(self, A, vreg, sreg, slane):
        self.A = A; self.v = vreg; self.s = sreg; self.k = 0; self.base = 2
    def srd(self):
        mksrd(self.A, 100 - 8, 24, 256)
    def put(self, idx, inv=False):
        e = self.A.e
        e('s_and_b32 %s, s34, 3' % s(self.s))
        e('s_cbranch_scc1 DBG_%d' % idx)
        e('s_bfe_u32 %s, s2, 0x30003' % s(self.s))
        e('s_cmp_eq_u32 %s, 5' % s(self.s))
        e('s_cbranch_scc0 DBG_%d' % idx)
        e('s_memrealtime %s' % s(self.s, 2)); e('s_waitcnt lgkmcnt(0)')
        if inv: e('s_not_b32 %s, %s' % (s(self.s), s(self.s)))
        e('v_mov_b32 %s, %s' % (v(self.v), s(self.s)))
        e('v_mov_b32 %s, 0' % v(self.v - 1))
        mksrd(self.A, 4, 24, 256)
        e('s_mov_b64 exec, 1')
        e('buffer_atomic_umax %s, %s, %s, 0 offen offset:%d sc1' % (v(self.v), v(self.v - 1), s(4, 4), 4 * idx))
        e('s_mov_b64 exec, -1')
        self.A.label('DBG_%d' % idx)
    def start(self):
        self.k = 0
        self.base = 2 if self.base == 9 else 9
        self.put(self.base, True)
        self.sel = {9: (1, 3, 6, 7), 2: (2, 3, 4, 5, 7)}[self.base]
        self.n = 0
    def mark(self):
        if self.k in self.sel:
            self.n += 1
            self.put(self.base + self.n)
        self.k += 1
    def finish(self, srdreg, wsreg, vtmp):
        self.A.e('s_waitcnt vmcnt(0)')
        self.put(self.base + len(self.sel) + 1)

class LQ:
    def __init__(self, A): self.A = A; self.q = []
    def rd(self, text, dst, n):
        self.A.e(text); self.q.append(set(range(dst, dst + n)))
    def need(self, *rs):
        regs = set()
        for r, n in rs: regs |= set(range(r, r + n))
        last = -1
        for i, d in enumerate(self.q):
            if d & regs: last = i
        if last < 0: return
        cnt = len(self.q) - 1 - last
        cnt = min(cnt, 15)
        self.A.e('s_waitcnt lgkmcnt(%d)' % cnt)
        self.q = self.q[len(self.q) - cnt:] if cnt else []
    def drain(self):
        self.A.e('s_waitcnt lgkmcnt(0)'); self.q = []

def kernel(A, label):
    e = A.e
    pX, pWA, pWoA, pWB, pWoB, pG, pOut, pDbg, pWs = 8, 10, 12, 16, 18, 20, 22, 24, 26
    sXcd, sIdx, sRb, sHgb, sHg, sBr, sWv, sRot, sT0, sT1, sT2, sT3 = range(28, 40)
    sL2, sMb, sNb, sRot2 = range(40, 44)
    SA, SB, SC, SD = 44, 48, 52, 56
    sM = 60
    sx = 62
    ST = Stamper(A, 255, 96, 98) if not OPT.get('dbg') else DbgStamper(A, 255, 96, 98)
    A.raw('.globl %s' % label); A.raw('.p2align 8'); A.raw('.type %s,@function' % label); A.raw(label + ':')
    e('s_cmp_ge_u32 s2, 256')
    e('s_cbranch_scc1 K_END')
    e('s_load_dwordx16 s[8:23], s[0:1], 0')
    e('s_load_dwordx4 s[24:27], s[0:1], 64')
    e('v_lshrrev_b32 v2, 6, v0')
    e('v_and_b32 v1, 63, v0')
    e('v_readfirstlane_b32 %s, v2' % s(sWv))
    vLane = 1
    if OPT.get('perm'):
        e('s_bfe_u32 %s, s2, 0x%x' % (s(sT0), (OPT['perm'] << 16) | 3))
        e('s_xor_b32 s2, s2, %s' % s(sT0))
    e('s_and_b32 %s, s2, 7' % s(sXcd))
    e('s_lshr_b32 %s, s2, 3' % s(sIdx))
    e('s_and_b32 %s, %s, 1' % (s(sT0), s(sIdx)))
    e('s_lshl1_add_u32 %s, %s, %s' % (s(sRb), s(sXcd), s(sT0)))
    e('s_lshr_b32 %s, %s, 1' % (s(sHgb), s(sIdx)))
    e('s_mul_i32 %s, %s, %d' % (s(sRot), s(sHgb), OPT.get('ra', 1)))
    e('s_mul_i32 %s, %s, %d' % (s(sT0), s(sT0), OPT.get('rc', 0)))
    e('s_add_u32 %s, %s, %s' % (s(sRot), s(sRot), s(sT0)))
    e('s_add_u32 %s, %s, %s' % (s(sRot), s(sXcd), s(sRot)))
    e('s_mul_i32 %s, %s, 57' % (s(sT0), s(sRot)))
    e('s_lshr_b32 %s, %s, 9' % (s(sT0), s(sT0)))
    e('s_mul_i32 %s, %s, 9' % (s(sT0), s(sT0)))
    e('s_sub_u32 %s, %s, %s' % (s(sRot), s(sRot), s(sT0)))
    e('s_and_b32 %s, %s, 7' % (s(sHg), s(sHgb)))
    e('s_lshr_b32 %s, %s, 3' % (s(sBr), s(sHgb)))
    e('s_cmp_lt_u32 %s, 4' % s(sWv))
    e('s_cbranch_scc1 C_START')

    def phase2_ids():
        e('s_mul_i32 %s, %s, 57' % (s(sL2), s(sIdx)))
        e('s_lshr_b32 %s, %s, 9' % (s(sL2), s(sL2)))
        e('s_mul_i32 %s, %s, 9' % (s(sT0), s(sL2)))
        e('s_sub_u32 %s, %s, %s' % (s(sNb), s(sIdx), s(sT0)))
        e('s_mul_i32 %s, %s, 5' % (s(sT0), s(sL2)))
        e('s_lshl4_add_u32 %s, %s, %s' % (s(sMb), s(sXcd), s(sT0)))
        e('s_mul_i32 %s, %s, 3' % (s(sT0), s(sL2)))
        e('s_add_u32 %s, %s, %s' % (s(sRot2), s(sT0), s(sNb)))
        e('s_add_u32 %s, %s, %s' % (s(sRot2), s(sRot2), s(sXcd)))
        e('s_mul_i32 %s, %s, 57' % (s(sT0), s(sRot2)))
        e('s_lshr_b32 %s, %s, 9' % (s(sT0), s(sT0)))
        e('s_mul_i32 %s, %s, 9' % (s(sT0), s(sT0)))
        e('s_sub_u32 %s, %s, %s' % (s(sRot2), s(sRot2), s(sT0)))
    def xcc_ids(sLf, sOk):
        e('s_getreg_b32 %s, hwreg(HW_REG_XCC_ID, 0, 4)' % s(sLf))
        e('s_cmp_lt_u32 %s, 8' % s(sLf))
        e('s_cselect_b32 %s, 1, 0' % s(sOk))
        e('s_min_u32 %s, %s, 8' % (s(sLf), s(sLf)))
        e('s_lshl_b32 %s, %s, 15' % (s(sLf), s(sLf)))
        e('s_add_u32 %s, %s, 32768' % (s(sLf), s(sLf)))
    def flag_srd(sr):
        e('s_add_u32 %s, %s, %d' % (s(sT0), s(pWs), FLAG_OFF))
        e('s_addc_u32 %s, %s, 0' % (s(sT1), s(pWs + 1)))
        mksrd(A, sr, sT0, 10 * 32768)

    sJ, sKc, sXr0, sXrow, sWrow, sRing, sCnt, sLx, sLw, sSo, sEx, sCh, sPos, sStep, sWm, sWr = range(sx, sx + 16)
    sEx = sx + 16
    R = RegAlloc(2, 254)
    vT = [R.alloc() for _ in range(4)]
    vDX, vDXh, vDW, vDM, vDR, vDC = [R.alloc() for _ in range(6)]
    sLf, sOk, sMode = range(sx + 18, sx + 21)
    vLN = 100; vLZ = 104; vSn = 106
    ST.start()
    e('s_sub_u32 %s, %s, 4' % (s(sJ), s(sWv)))
    vFa, vF, vLa, vS = 110, 111, 112, 113
    if OPT.get('lprio', 0): e('s_setprio %d' % OPT['lprio'])
    sSpin, sNeed = sx + 21, sx + 22
    e('s_lshl_b32 %s, %s, 2' % (s(sT0), s(sJ)))
    e('s_add_u32 %s, %s, %d' % (s(sT0), s(sT0), SY))
    e('v_mov_b32 %s, %s' % (v(vLa), s(sT0)))
    e('v_mov_b32 %s, 0' % v(vS))
    e('ds_write_b32 %s, %s' % (v(vLa), v(vS)))
    e('s_and_b32 %s, %s, 1' % (s(sT0), s(sJ)))
    e('s_lshl_b32 %s, %s, 2' % (s(sT0), s(sT0)))
    e('v_lshrrev_b32 %s, 4, %s' % (v(vT[0]), v(vLane)))
    e('v_add_u32 %s, %s, %s' % (v(vT[0]), s(sT0), v(vT[0])))
    e('v_and_b32 %s, 7, %s' % (v(vT[1]), v(vLane)))
    e('v_xor_b32 %s, %s, %s' % (v(vT[0]), v(vT[0]), v(vT[1])))
    e('v_lshlrev_b32 %s, 4, %s' % (v(vT[0]), v(vT[0])))
    e('v_lshrrev_b32 %s, 3, %s' % (v(vT[1]), v(vLane)))
    e('s_movk_i32 %s, 1152' % s(sT1))
    e('v_mad_u32_u24 %s, %s, %s, %s' % (v(vDX), v(vT[1]), s(sT1), v(vT[0])))
    e('s_lshl_b32 %s, %s, 7' % (s(sT0), s(sRb)))
    e('s_lshl3_add_u32 %s, %s, %s' % (s(sT0), s(sJ), s(sT0)))
    e('s_sub_u32 %s, %s, 16' % (s(sT0), s(sT0)))
    e('s_mul_i32 %s, %s, 1152' % (s(sXrow), s(sT0)))
    e('s_max_i32 %s, %s, 0' % (s(sXr0), s(sXrow)))
    e('s_cmp_lt_i32 %s, 0' % s(sT0))
    e('s_cselect_b64 %s, -1, 0' % s(sM, 2))
    e('v_cndmask_b32 %s, %s, %s, %s' % (v(vDXh), v(vDX), v(vT[0]), s(sM, 2)))
    e('v_subrev_u32 %s, 27, %s' % (v(vT[0]), v(vLane)))
    e('v_cmp_lt_u32 vcc, 26, %s' % v(vLane))
    e('v_cndmask_b32 %s, %s, %s, vcc' % (v(vT[0]), v(vLane), v(vT[0])))
    e('v_mov_b32 %s, %d' % (v(vT[2]), 4 * 3456))
    e('v_cndmask_b32 %s, 0, %s, vcc' % (v(vT[2]), v(vT[2])))
    e('v_mul_u32_u24 %s, 57, %s' % (v(vT[1]), v(vT[0])))
    e('v_lshrrev_b32 %s, 9, %s' % (v(vT[1]), v(vT[1])))
    e('v_mul_u32_u24 %s, 1008, %s' % (v(vT[1]), v(vT[1])))
    e('v_lshl_add_u32 %s, %s, 4, %s' % (v(vT[1]), v(vT[0]), v(vT[1])))
    e('s_mul_i32 %s, %s, 144' % (s(sT0), s(sHg)))
    e('v_add3_u32 %s, %s, %s, %s' % (v(vDW), v(vT[1]), v(vT[2]), s(sT0)))
    e('s_mul_i32 %s, %s, 3456' % (s(sWrow), s(sJ)))
    e('s_lshl_b32 %s, %s, 10' % (s(sLx), s(sJ)))
    e('s_mul_i32 %s, %s, 864' % (s(sLw), s(sJ)))
    e('s_add_u32 %s, %s, %d' % (s(sLw), s(sLw), WOFF))
    setmask(A, sEx, lambda l: l < 54)
    CM = {0: '', 1: ' sc1', 2: ' nt', 3: ' sc0 sc1', 4: ' sc0'}
    e('s_mov_b32 %s, 0' % s(sSpin))
    e('v_and_b32 %s, 3, %s' % (v(vFa), v(vLane)))
    e('v_lshlrev_b32 %s, 2, %s' % (v(vFa), v(vFa)))
    e('v_add_u32 %s, %d, %s' % (v(vFa), SY + 16, v(vFa)))
    e('s_mov_b32 %s, %s' % (s(sKc), s(sRot)))
    e('s_mov_b32 %s, 0' % s(sRing))
    e('s_mov_b32 %s, 0' % s(sCnt))
    e('s_waitcnt lgkmcnt(0)')
    mksrd(A, SA, pX, 2048 * 1152)
    e('s_cmp_eq_u32 %s, 0' % s(sBr))
    e('s_cselect_b32 %s, %s, %s' % (s(sT0), s(pWA), s(pWB)))
    e('s_cselect_b32 %s, %s, %s' % (s(sT1), s(pWA + 1), s(pWB + 1)))
    mksrd(A, SB, sT0, 576 * 3456)
    ST.mark()
    ulab = [0]
    def wait_free(need):
        ulab[0] += 1; L = 'LW%d' % ulab[0]
        A.label(L)
        e('ds_read_b32 %s, %s' % (v(vF), v(vFa)))
        e('s_add_u32 %s, %s, 1' % (s(sSpin), s(sSpin)))
        e('s_waitcnt lgkmcnt(0)')
        e('v_cmp_gt_u32 vcc, %s, %s' % (need, v(vF)))
        e('s_cbranch_vccz %sd' % L)
        e('s_cmp_lt_u32 %s, %d' % (s(sSpin), 2 * SPIN))
        e('s_cbranch_scc1 %s' % L)
        A.label(L + 'd')
    LAG = OPT.get('lag', 2); SB6 = OPT.get('sb6', 0)
    def wait_x(n, k=1):
        ulab[0] += 1; L = 'LV%d' % ulab[0]
        e('s_cmp_lt_u32 %s, 2' % s(sJ))
        e('s_cbranch_scc1 %s' % L)
        e('s_waitcnt vmcnt(%d)' % (n + 4 * k))
        A.label(L)
        e('s_waitcnt vmcnt(%d)' % (n + 5 * k))
    def signal(val):
        e('v_mov_b32 %s, %s' % (v(vS), val))
        e('ds_write_b32 %s, %s' % (v(vLa), v(vS)))
    def xburst():
        e('s_lshl_b32 %s, %s, 7' % (s(sT0), s(sKc)))
        e('s_add_u32 %s, %s, %s' % (s(sT1), s(sRing), s(sLx)))
        for q in range(5):
            if q == 4:
                e('s_cmp_ge_u32 %s, 2' % s(sJ))
                e('s_cbranch_scc1 L_NOX4')
            if q == 0:
                e('s_add_u32 %s, %s, %s' % (s(sSo), s(sXr0), s(sT0)))
                e('s_mov_b32 m0, %s' % s(sT1))
                e('buffer_load_dwordx4 %s, %s, %s offen lds' % (v(vDXh), s(SA, 4), s(sSo)))
                e('s_add_u32 %s, %s, %s' % (s(sT0), s(sXrow), s(sT0)))
            else:
                e('s_add_u32 %s, %s, %d' % (s(sSo), s(sT0), 32 * 1152 * q))
                e('s_add_u32 m0, %s, %d' % (s(sT1), 4096 * q))
                e('buffer_load_dwordx4 %s, %s, %s offen lds' % (v(vDX), s(SA, 4), s(sSo)))
        A.label('L_NOX4')
    def wburst(ks):
        e('s_mul_i32 %s, %s, %d' % (s(sT0), s(sKc), 64 * 3456))
        e('s_add_u32 %s, %s, %s' % (s(sT0), s(sT0), s(sWrow)))
        e('s_add_u32 %s, %s, %s' % (s(sT1), s(sRing), s(sLw)))
        e('s_mov_b64 exec, %s' % s(sEx, 2))
        for q in range(4 * ks, 4 * ks + 4):
            e('s_add_u32 %s, %s, %d' % (s(sSo), s(sT0), 8 * 3456 * q))
            e('s_add_u32 m0, %s, %d' % (s(sT1), 3456 * q))
            e('buffer_load_dwordx4 %s, %s, %s offen lds' % (v(vDW), s(SB, 4), s(sSo)))
        e('s_mov_b64 exec, -1')
    def gate(tag):
        e('s_sub_u32 %s, %s, 5' % (s(sNeed), s(sCnt)))
        e('s_cmp_lt_i32 %s, 1' % s(sNeed))
        e('s_cbranch_scc1 L_NG' + tag)
        wait_free(s(sNeed))
        A.label('L_NG' + tag)
    def landed(odd):
        e('s_sub_u32 %s, %s, %d' % (s(sNeed), s(sCnt), LAG))
        e('s_max_i32 %s, %s, 0' % (s(sNeed), s(sNeed)))
        if SB6 and not odd:
            e('s_cmp_lt_u32 %s, 5' % s(sCnt))
            e('s_cbranch_scc1 L_NOSIG')
        if LAG == 1: wait_x(8, 1 if odd else 0)
        elif LAG == 2: wait_x(12)
        else: wait_x(16, 2 if odd else 1)
        signal(s(sNeed))
        if SB6 and not odd: A.label('L_NOSIG')
        e('s_add_u32 %s, %s, 1' % (s(sCnt), s(sCnt)))
    A.label('L_LOOP')
    gate('a')
    wburst(0)
    landed(0)
    gate('b')
    xburst()
    wburst(1)
    e('s_cmp_eq_u32 %s, %d' % (s(sCnt), 5 if SB6 else 3))
    e('s_cbranch_scc0 L_NOBAR')
    e('s_waitcnt lgkmcnt(0)')
    e('s_barrier')
    if SB6:
        wait_x(20, 2)
        signal(1)
    A.label('L_NOBAR')
    landed(1)
    e('s_lshl_b32 %s, %s, 5' % (s(sT0), s(sJ)))
    e('s_or_b32 %s, %s, %s' % (s(sT0), s(sT0), s(sCnt)))
    e('s_cmp_eq_u32 %s, %d' % (s(sT0), 2 * OPT.get('nld', 4) + 2))
    e('s_cbranch_scc0 L_NN1')
    mksrd(A, SD, pDbg, 256)
    e('v_mov_b32 %s, 0' % v(vLZ))
    e('buffer_load_dwordx2 %s, %s, %s, 0 offen offset:%d sc1' % (v(vLN + 2, 2), v(vLZ), s(SD, 4), NONCE))
    A.label('L_NN1')
    e('s_cmp_eq_u32 %s, %d' % (s(sT0), 2 * OPT.get('nld', 4) + 6))
    e('s_cbranch_scc0 L_NN2')
    flag_srd(SC)
    xcc_ids(sLf, sOk)
    e('s_lshl4_add_u32 %s, %s, %s' % (s(sT0), s(sRb), s(sHgb)))
    e('s_lshl_b32 %s, %s, 7' % (s(sT0), s(sT0)))
    e('s_add_u32 %s, %s, %s' % (s(sT0), s(sT0), s(sLf)))
    e('v_mov_b32 %s, 0' % v(vLZ))
    e('s_mov_b64 exec, 1')
    e('buffer_store_dwordx2 %s, %s, %s, %s offen offset:32' % (v(vLN + 2, 2), v(vLZ), s(SC, 4), s(sT0)))
    e('s_mov_b64 exec, -1')
    A.label('L_NN2')
    e('s_add_u32 %s, %s, 1' % (s(sKc), s(sKc)))
    e('s_cmp_eq_u32 %s, 9' % s(sKc))
    e('s_cselect_b32 %s, 0, %s' % (s(sKc), s(sKc)))
    e('s_add_u32 %s, %s, %d' % (s(sRing), s(sRing), S))
    e('s_cmp_eq_u32 %s, %d' % (s(sRing), 3 * S))
    e('s_cselect_b32 %s, 0, %s' % (s(sRing), s(sRing)))
    e('s_cmp_lt_u32 %s, 18' % s(sCnt))
    e('s_cbranch_scc1 L_LOOP')
    if LAG == 3:
        wait_x(12)
        signal(15)
    wait_x(8)
    signal(16)
    ST.mark()
    def snapshot(lab):
        e('s_cmp_eq_u32 %s, 0' % s(sJ))
        e('s_cbranch_scc0 ' + lab)
        flag_srd(SC)
        xcc_ids(sLf, sOk)
        e('s_lshl_b32 %s, %s, 12' % (s(sT0), s(sXcd)))
        e('s_add_u32 %s, %s, %s' % (s(sT0), s(sT0), s(sLf)))
        e('v_and_b32 %s, 31, %s' % (v(vLZ), v(vLane)))
        e('v_lshlrev_b32 %s, 7, %s' % (v(vLZ), v(vLZ)))
        e('buffer_load_dwordx2 %s, %s, %s, %s offen offset:32 sc1' % (v(vSn, 2), v(vLZ), s(SC, 4), s(sT0)))
        A.label(lab)
    def put_mode(lab):
        e('s_cmp_eq_u32 %s, 0' % s(sJ))
        e('s_cbranch_scc0 ' + lab)
        e('v_xor_b32 %s, %s, %s' % (v(vSn), v(vSn), v(vLN + 2)))
        e('v_xor_b32 %s, %s, %s' % (v(vSn + 1), v(vSn + 1), v(vLN + 3)))
        e('v_or_b32 %s, %s, %s' % (v(vSn), v(vSn), v(vSn + 1)))
        e('v_cmp_ne_u32 vcc, 0, %s' % v(vSn))
        e('v_and_b32 %s, %s, %s' % (v(vLN), s(sOk), v(vLN + 2)))
        e('s_cmp_eq_u64 vcc, 0')
        e('s_cselect_b32 %s, 1, 0' % s(sMode))
        if OPT.get('noloc'):
            e('s_bfe_u32 %s, %s, 0x%x' % (s(sT0), s(sIdx), 0x10000 | (OPT['noloc'] - 1)))
            e('s_and_b32 %s, %s, %s' % (s(sMode), s(sMode), s(sT0)))
        e('v_and_b32 %s, %s, %s' % (v(vLN), s(sMode), v(vLN)))
        e('v_mov_b32 %s, %d' % (v(vLZ), MODEW))
        e('ds_write_b128 %s, %s' % (v(vLZ), v(vLN, 4)))
        e('s_waitcnt lgkmcnt(0)')
        A.label(lab)
    phase2_ids()
    e('s_cmp_ge_u32 %s, 3' % s(sL2))
    e('s_cbranch_scc1 L_NOP2')
    mksrd(A, SA, pWoA, 576 * 1152)
    mksrd(A, SB, pWoB, 576 * 1152)
    q_, col = vT[0], vT[1]
    e('v_lshrrev_b32 %s, 3, %s' % (v(q_), v(vLane)))
    e('v_bfe_u32 %s, %s, 1, 2' % (v(vT[2]), v(vLane)))
    e('v_lshrrev_b32 %s, 4, %s' % (v(vT[3]), v(vLane)))
    e('v_xor_b32 %s, %s, %s' % (v(vT[2]), v(vT[2]), v(vT[3])))
    e('v_and_b32 %s, 1, %s' % (v(vT[3]), v(vLane)))
    e('v_lshl_add_u32 %s, %s, 1, %s' % (v(col), v(vT[2]), v(vT[3])))
    e('v_lshlrev_b32 %s, 4, %s' % (v(col), v(col)))
    e('s_lshl_b32 %s, %s, 7' % (s(sT0), s(sNb)))
    e('v_add_u32 %s, %s, %s' % (v(col), s(sT0), v(col)))
    e('s_movk_i32 %s, 1152' % s(sT1))
    e('v_mad_u32_u24 %s, %s, %s, %s' % (v(vDM), v(q_), s(sT1), v(col)))
    e('v_lshrrev_b32 %s, 2, %s' % (v(vT[2]), v(q_)))
    e('v_mul_u32_u24 %s, 68, %s' % (v(vT[2]), v(vT[2])))
    e('v_add_u32 %s, %s, %s' % (v(vT[2]), v(vT[2]), v(q_)))
    e('v_mad_u32_u24 %s, %s, %s, %s' % (v(vDR), v(vT[2]), s(sT1), v(col)))
    e('s_and_b32 %s, %s, 1' % (s(sT0), s(sJ)))
    e('s_lshr_b32 %s, %s, 1' % (s(sT2), s(sJ)))
    e('s_mul_i32 %s, %s, 20' % (s(sWm), s(sT0)))
    e('s_lshl3_add_u32 %s, %s, %s' % (s(sWm), s(sT2), s(sWm)))
    e('s_sub_u32 %s, %s, 72' % (s(sWm), s(sWm)))
    e('s_mul_i32 %s, %s, 1152' % (s(sWm), s(sWm)))
    e('s_mul_i32 %s, %s, 36' % (s(sWr), s(sT0)))
    e('s_mul_i32 %s, %s, 144' % (s(sT2), s(sT2)))
    e('s_add_u32 %s, %s, %s' % (s(sWr), s(sWr), s(sT2)))
    e('s_add_u32 %s, %s, 16' % (s(sWr), s(sWr)))
    e('s_mul_i32 %s, %s, 1152' % (s(sWr), s(sWr)))
    e('s_mov_b32 %s, %s' % (s(sCh), s(sRot2)))
    e('s_add_u32 %s, %s, %d' % (s(sPos), s(sLx), WO0))
    e('s_mov_b32 %s, 0' % s(sCnt))
    snapshot('L_WO')
    e('s_cmp_eq_u32 %s, 1' % s(sCnt))
    e('s_cbranch_scc0 L_G1')
    e('s_waitcnt vmcnt(8)')
    signal(17)
    wait_free(14)
    A.label('L_G1')
    e('s_cmp_eq_u32 %s, 3' % s(sCnt))
    e('s_cbranch_scc0 L_G2')
    e('s_waitcnt vmcnt(12)')
    put_mode('L_G3B')
    signal(19)
    wait_free(16)
    A.label('L_G2')
    e('s_cmp_eq_u32 %s, 6' % s(sCnt))
    e('s_cbranch_scc0 L_G3')
    wait_free(18)
    A.label('L_G3')
    e('s_mul_i32 %s, %s, %d' % (s(sT0), s(sCh), 72 * 1152))
    e('s_add_u32 %s, %s, %s' % (s(sT0), s(sT0), s(sWm)))
    e('s_cmp_eq_u32 %s, 0' % s(sCh))
    e('s_cselect_b32 %s, %s, %s' % (s(sT0), s(sWr), s(sT0)))
    e('s_cselect_b64 %s, -1, 0' % s(sM, 2))
    e('s_mov_b32 %s, %d' % (s(sStep), 36 * 1152))
    e('s_cselect_b32 %s, %d, %s' % (s(sStep), 288 * 1152, s(sStep)))
    e('v_cndmask_b32 %s, %s, %s, %s' % (v(vDC), v(vDM), v(vDR), s(sM, 2)))
    e('s_add_u32 %s, %s, %s' % (s(sT1), s(sT0), s(sStep)))
    for k2 in range(4):
        e('s_add_u32 m0, %s, %d' % (s(sPos), 4096 * k2))
        e('buffer_load_dwordx4 %s, %s, %s offen lds' % (v(vDC), s(SA if k2 < 2 else SB, 4), s(sT0 if k2 % 2 == 0 else sT1)))
    e('s_add_u32 %s, %s, 1' % (s(sCh), s(sCh)))
    e('s_cmp_eq_u32 %s, 9' % s(sCh))
    e('s_cselect_b32 %s, 0, %s' % (s(sCh), s(sCh)))
    e('s_add_u32 %s, %s, 16384' % (s(sPos), s(sPos)))
    e('s_cmp_eq_u32 %s, 0' % s(sCnt))
    e('s_cselect_b32 %s, %s, %s' % (s(sPos), s(sLx), s(sPos)))
    e('s_add_u32 %s, %s, 1' % (s(sCnt), s(sCnt)))
    e('s_cmp_lt_u32 %s, 9' % s(sCnt))
    e('s_cbranch_scc1 L_WO')
    ST.mark()
    sCp, sKh, sSt = sx + 3, sx + 1, sx + 2
    e('s_and_b32 %s, %s, 1' % (s(sT0), s(sJ)))
    e('s_lshr_b32 %s, %s, 1' % (s(sKh), s(sJ)))
    e('s_mov_b32 %s, %s' % (s(sCp), s(sT0)))
    vOa = [vDX, vDXh, vDW]; vSt = vDM; vXa = vDR
    acc2 = [[R.alloc(4) for c2 in range(2)] for t in range(NT)]
    Of = [[R.alloc(4) for t in range(NT)] for b in range(2)]
    vWa = [Of[1][4] + k for k in range(3)]; vWb = [Of[1][5] + k for k in range(3)]
    Wr = [[[R.alloc(4) for c2 in range(2)] for kb in range(2)] for i in range(9)]
    g, r4, c4 = vT[0], vT[1], vT[2]
    e('v_lshrrev_b32 %s, 4, %s' % (v(g), v(vLane)))
    e('v_bfe_u32 %s, %s, 2, 2' % (v(r4), v(vLane)))
    e('v_and_b32 %s, 3, %s' % (v(c4), v(vLane)))
    t3, t4_ = vT[3], vDC
    e('v_lshrrev_b32 %s, 1, %s' % (v(t3), v(g)))
    e('v_lshlrev_b32 %s, 4, %s' % (v(t3), v(t3)))
    e('v_and_b32 %s, 1, %s' % (v(t4_), v(g)))
    e('v_lshl_add_u32 %s, %s, 2, %s' % (v(t4_), v(t4_), v(r4)))
    e('v_add_u32 %s, %s, %s' % (v(t3), v(t3), v(t4_)))
    e('v_lshrrev_b32 %s, 1, %s' % (v(t4_), v(t4_)))
    e('s_lshl_b32 %s, %s, 1' % (s(sT0), s(sCp)))
    e('v_xor_b32 %s, %s, %s' % (v(t4_), s(sT0), v(t4_)))
    e('v_lshlrev_b32 %s, 5, %s' % (v(t4_), v(t4_)))
    e('v_lshl_add_u32 %s, %s, 7, %s' % (v(t3), v(t3), v(t4_)))
    e('v_lshl_add_u32 %s, %s, 3, %s' % (v(t3), v(c4), v(t3)))
    e('s_lshl_b32 %s, %s, 13' % (s(sT0), s(sKh)))
    e('v_add_u32 %s, %s, %s' % (v(vWa[0]), s(sT0), v(t3)))
    e('v_xor_b32 %s, 32, %s' % (v(vWb[0]), v(vWa[0])))
    for k in (1, 2):
        e('v_add_u32 %s, %d, %s' % (v(vWa[k]), 65536 * k, v(vWa[0])))
        e('v_add_u32 %s, %d, %s' % (v(vWb[k]), 65536 * k, v(vWb[0])))
    e('s_lshl_b32 %s, %s, 11' % (s(sT0), s(sKh)))
    e('v_lshlrev_b32 %s, 4, %s' % (v(t3), v(vLane)))
    e('v_add_u32 %s, %s, %s' % (v(vOa[0]), s(sT0), v(t3)))
    for k in (1, 2):
        e('v_add_u32 %s, %d, %s' % (v(vOa[k]), 61440 * k, v(vOa[0])))
    e('s_mul_i32 %s, %s, %d' % (s(sT0), s(sCp), CHB // 2))
    e('s_add_u32 %s, %s, %d' % (s(sT0), s(sT0), 3 * CHB))
    e('v_add_u32 %s, %s, %s' % (v(vXa), s(sT0), v(t3)))
    e('s_mul_i32 %s, %s, %d' % (s(sSt), s(sMb), 16 * 1152))
    e('s_lshl_b32 %s, %s, 7' % (s(sT0), s(sNb)))
    e('s_add_u32 %s, %s, %s' % (s(sSt), s(sSt), s(sT0)))
    e('s_lshl_b32 %s, %s, 6' % (s(sT0), s(sCp)))
    e('s_add_u32 %s, %s, %s' % (s(sSt), s(sSt), s(sT0)))
    e('v_and_b32 %s, 15, %s' % (v(t3), v(vLane)))
    e('v_mul_u32_u24 %s, 1152, %s' % (v(t3), v(t3)))
    e('v_and_b32 %s, 1, %s' % (v(t4_), v(g)))
    e('v_lshl_add_u32 %s, %s, 5, %s' % (v(t3), v(t4_), v(t3)))
    e('v_lshrrev_b32 %s, 1, %s' % (v(t4_), v(g)))
    e('v_lshl_add_u32 %s, %s, 4, %s' % (v(vSt), v(t4_), v(t3)))
    mksrd(A, SC, pOut, 2048 * 1152)
    for t in range(NT):
        for c2 in range(2):
            for k in range(0, 4, 2): e('v_mov_b64 %s, 0' % v(acc2[t][c2] + k, 2))
    if OPT.get('lprio', 0): e('s_setprio 0')
    w4 = Wr[8][1][1]
    e('s_lshl_b32 %s, %s, 2' % (s(sT0), s(sJ)))
    e('s_add_u32 %s, %s, %d' % (s(sT0), s(sT0), SY))
    e('v_mov_b32 %s, %s' % (v(w4), s(sT0)))
    e('v_mov_b32 %s, 20' % v(w4 + 1))
    e('v_and_b32 %s, 3, %s' % (v(w4 + 2), v(vLane)))
    e('v_lshlrev_b32 %s, 2, %s' % (v(w4 + 2), v(w4 + 2)))
    e('v_add_u32 %s, 0x20000, %s' % (v(w4 + 2), v(w4 + 2)))
    for ph, (cnt, val, rng) in enumerate(((12, 20, range(0, 6)), (0, 21, range(6, 9)))):
        e('v_mov_b32 %s, %d' % (v(w4 + 1), val))
        e('s_waitcnt vmcnt(%d)' % cnt)
        if ph: ST.mark()
        e('ds_write_b32 %s, %s' % (v(w4), v(w4 + 1)))
        A.label('L_BW%d' % ph)
        e('ds_read_b32 %s, %s offset:%d' % (v(w4 + 3), v(w4 + 2), SY - 131072))
        e('s_add_u32 %s, %s, 1' % (s(sSpin), s(sSpin)))
        e('s_waitcnt lgkmcnt(0)')
        e('v_cmp_gt_u32 vcc, %d, %s' % (val, v(w4 + 3)))
        e('s_cbranch_vccz L_BW%dd' % ph)
        e('s_cmp_lt_u32 %s, %d' % (s(sSpin), 2 * SPIN))
        e('s_cbranch_scc1 L_BW%d' % ph)
        A.label('L_BW%dd' % ph)
        if ph: ST.mark()
        for i in rng:
            pos = WO0 if i == 0 else 16384 * (i - 1)
            for kb in range(2):
                for c2 in range(2):
                    for j2 in range(2):
                        off = pos + kb * 4096 + j2 * 1024
                        e('ds_read_b64_tr_b16 %s, %s offset:%d' % (v(Wr[i][kb][c2] + 2 * j2, 2), v((vWa, vWb)[c2][off >> 16]), off & 65535))
    e('s_waitcnt lgkmcnt(0)')
    ST.mark()
    e('s_barrier')
    ST.mark()
    Q = LQ(A)
    def oread(i, kb, t):
        off = CHB * (i % 6) + t * 4096 + kb * 1024
        k = off // 61440
        if OPT.get('p2nord'): return
        Q.rd('ds_read_b128 %s, %s offset:%d' % (v(Of[kb][t], 4), v(vOa[k]), off - 61440 * k), Of[kb][t], 4)
    def omf(i, kb, fills):
        for t in range(NT):
            Q.need((Of[kb][t], 4))
            for c2 in range(2):
                if not OPT.get('p2nomf'): e('v_mfma_f32_16x16x32_bf16 %s, %s, %s, %s' % (v(acc2[t][c2], 4), v(Wr[i][kb][c2], 4), v(Of[kb][t], 4), v(acc2[t][c2], 4)))
                if fills: fills.pop(0)()
        while fills: fills.pop(0)()
    e('s_barrier')
    for t in range(NT): oread(0, 0, t)
    for i in range(9):
        omf(i, 0, [lambda t=t: oread(i, 1, t) for t in range(NT)])
        if i < 8:
            fl = [lambda: None, lambda: (Q.drain(), e('s_barrier'))] + [lambda t=t: oread(i + 1, 0, t) for t in range(NT)]
        else: fl = []
        omf(i, 1, fl)
    ST.mark()
    def finish(own, other, lab):
        for t in other:
            for c2 in range(2):
                e('ds_write_b128 %s, %s offset:%d' % (v(vXa), v(acc2[t][c2], 4), (2 * t + c2) * 1024))
        e('s_waitcnt lgkmcnt(0)')
        e('s_barrier')
        tmp = Of[0]
        Q.q = []
        for n, t in enumerate(own):
            for c2 in range(2):
                Q.rd('ds_read_b128 %s, %s offset:%d' % (v(tmp[2 * n + c2], 4), v(vXa), (2 * t + c2) * 1024), tmp[2 * n + c2], 4)
        for n, t in enumerate(own):
            o = Of[1][1 + n]
            for c2 in range(2):
                Q.need((tmp[2 * n + c2], 4))
                for k in range(4):
                    e('v_add_f32 %s, %s, %s' % (v(acc2[t][c2] + k), v(acc2[t][c2] + k), v(tmp[2 * n + c2] + k)))
                e('v_cvt_pk_bf16_f32 %s, %s, %s' % (v(o + 2 * c2), v(acc2[t][c2]), v(acc2[t][c2] + 1)))
                e('v_cvt_pk_bf16_f32 %s, %s, %s' % (v(o + 2 * c2 + 1), v(acc2[t][c2] + 2), v(acc2[t][c2] + 3)))
            e('v_permlane16_swap_b32 %s, %s' % (v(o), v(o + 2)))
            e('v_permlane16_swap_b32 %s, %s' % (v(o + 1), v(o + 3)))
            if t == 0:
                e('s_cmp_lg_u32 %s, 0' % s(sL2))
                e('s_cbranch_scc1 L_DONE')
            e('s_add_u32 %s, %s, %d' % (s(sT0), s(sSt), t * 16 * 1152))
            e('buffer_store_dwordx4 %s, %s, %s, %s offen' % (v(o, 4), v(vSt), s(SC, 4), s(sT0)))
    e('s_cmp_eq_u32 %s, 0' % s(sKh))
    e('s_cbranch_scc0 L_FIN1')
    finish([1, 2, 0], [3, 4, 5], 'a')
    e('s_branch L_DONE')
    A.label('L_FIN1')
    A.barrier_hazards()
    finish([3, 4, 5], [0, 1, 2], 'b')
    A.label('L_DONE')
    ST.finish(SD, pWs, vT[0])
    e('s_endpgm')
    A.label('L_NOP2')
    snapshot('L_NP2A')
    e('s_waitcnt vmcnt(4)')
    signal(17)
    e('s_waitcnt vmcnt(0)')
    put_mode('L_NP2B')
    signal(19)
    e('s_waitcnt lgkmcnt(0)')
    e('s_endpgm')

    A.label('C_START')
    A.hist = []
    sRg, sP, sCnt, sRing, sDelta, sC, sGs, sSt0, sSr0, sNlo, sNhi, sSpin, sCh, sOb, sLd = range(sx, sx + 15)
    sMpar, sMc0, sMc1, sFirst = 78, 80, 82, 84
    sG = [86, 88, 90, 92]
    SO, SG_, SDb, SF = SA, SB, SC, SD
    R = RegAlloc(2, 254)
    vT = [R.alloc() for _ in range(6)]
    vAX = [R.alloc(), R.alloc()]
    vAW = R.alloc(); vAR = [R.alloc() for _ in range(4)]
    vFlag = R.alloc(); vC512 = R.alloc(); vDl = R.alloc()
    vSel = R.alloc(2); vN = R.alloc(2)
    vPP0, vPC0, vPP1, vPC1, vMG0, vNeg, vBp, vStM, vStR, vZ = [R.alloc() for _ in range(10)]
    names = ['Ka', 'Kb', 'Va', 'Vb', 'R', 'Qa', 'Qb']
    acc = [{n: R.alloc(4) for n in (names[:5] if t == 0 else names)} for t in range(5)]
    acc_lo = acc[0]['Ka']; acc_hi = acc[4]['Qb'] + 4
    Wf = {n: R.alloc(4) for n in names}
    Xf = [[R.alloc(4) for t in range(5)] for b in range(2)]
    buf_lo = Wf['Ka']
    vAW = [vAW, R.alloc()]
    vSy, vFa, vLand, vStg = [R.alloc() for _ in range(4)]
    ST.start()
    if OPT.get('prio', 2): e('s_setprio %d' % OPT.get('prio', 2))
    e('v_mov_b32 %s, 0' % v(vStg))
    e('s_lshl_b32 %s, %s, 2' % (s(sT0), s(sWv)))
    e('s_add_u32 %s, %s, %d' % (s(sT0), s(sT0), SY + 16))
    e('v_mov_b32 %s, %s' % (v(vFa), s(sT0)))
    e('ds_write_b32 %s, %s' % (v(vFa), v(vStg)))
    e('s_and_b32 %s, %s, 1' % (s(sRg), s(sWv)))
    e('s_lshr_b32 %s, %s, 1' % (s(sP), s(sWv)))
    e('v_lshlrev_b32 %s, 3, v0' % v(vT[5]))
    e('v_mov_b32 %s, 0' % v(vZ))
    e('s_waitcnt lgkmcnt(0)')
    mksrd(A, SG_, pG, 1152)
    vG = Xf[1][0]
    e('buffer_load_dwordx2 %s, %s, %s, 0 offen' % (v(vG, 2), v(vT[5]), s(SG_, 4)))
    mksrd(A, SDb, pDbg, 256)
    e('v_mov_b32 %s, 0' % v(vN))
    e('s_or_b32 %s, s2, %s' % (s(sT0), s(sWv)))
    e('s_cmp_eq_u32 %s, 0' % s(sT0))
    e('s_cbranch_scc0 C_NONONCE')
    e('s_memrealtime %s' % s(sM, 2))
    e('s_waitcnt lgkmcnt(0)')
    e('s_or_b32 %s, %s, 1' % (s(sM), s(sM)))
    e('v_mov_b32 %s, %s' % (v(vN), s(sM)))
    e('v_mov_b32 %s, %s' % (v(vN + 1), s(sM + 1)))
    e('buffer_store_dwordx2 %s, %s, %s, 0 offen offset:%d sc1' % (v(vN, 2), v(vZ), s(SDb, 4), NONCE))
    A.label('C_NONONCE')
    cLf, cOk, cMode = 4, 5, 6
    xcc_ids(cLf, cOk)
    mksrd(A, SO, pWs, GOFF + OP_BYTES)
    flag_srd(SF)
    i15, g, r4, c4 = vT[0], vT[1], vT[2], vT[3]
    e('v_and_b32 %s, 15, %s' % (v(i15), v(vLane)))
    e('v_lshrrev_b32 %s, 4, %s' % (v(g), v(vLane)))
    e('v_bfe_u32 %s, %s, 2, 2' % (v(r4), v(vLane)))
    e('v_and_b32 %s, 3, %s' % (v(c4), v(vLane)))
    e('v_lshrrev_b32 %s, 1, %s' % (v(vT[4]), v(i15)))
    e('v_xor_b32 %s, %s, %s' % (v(vT[4]), v(vT[4]), v(g)))
    e('v_lshlrev_b32 %s, 4, %s' % (v(vT[4]), v(vT[4])))
    e('v_lshl_add_u32 %s, %s, 7, %s' % (v(vT[4]), v(i15), v(vT[4])))
    e('s_lshl_b32 %s, %s, 13' % (s(sT0), s(sRg)))
    e('v_add_u32 %s, %s, %s' % (v(vAX[0]), s(sT0), v(vT[4])))
    e('v_xor_b32 %s, 64, %s' % (v(vAX[1]), v(vAX[0])))
    e('v_lshlrev_b32 %s, 3, %s' % (v(vT[4]), v(g)))
    e('v_lshl_add_u32 %s, %s, 1, %s' % (v(vT[4]), v(r4), v(vT[4])))
    e('v_mul_u32_u24 %s, 432, %s' % (v(vT[4]), v(vT[4])))
    e('s_mul_i32 %s, %s, 72' % (s(sT0), s(sP)))
    e('s_add_u32 %s, %s, %d' % (s(sT0), s(sT0), WOFF))
    e('v_add_u32 %s, %s, %s' % (v(vT[4]), s(sT0), v(vT[4])))
    e('v_lshl_add_u32 %s, %s, 3, %s' % (v(vAW[0]), v(c4), v(vT[4])))
    e('v_mov_b32 %s, %s' % (v(vAW[1]), v(vAW[0])))
    e('v_lshlrev_b32 %s, 2, %s' % (v(vSy), v(c4)))
    e('v_add_u32 %s, %d, %s' % (v(vSy), SY, v(vSy)))
    setmask(A, sM, lambda l: (l & 3) == 1)
    e('v_mov_b32 %s, 32' % v(vT[5]))
    e('v_mov_b32 %s, %d' % (v(vDl), 320))
    e('v_cndmask_b32 %s, %s, %s, %s' % (v(vT[5]), v(vT[5]), v(vDl), s(sM, 2)))
    setmask(A, sM, lambda l: (l & 3) == 2)
    e('v_mov_b32 %s, %d' % (v(vDl), 176))
    e('v_cndmask_b32 %s, %s, %s, %s' % (v(vT[5]), v(vT[5]), v(vDl), s(sM, 2)))
    e('v_add_u32 %s, %s, %s' % (v(vT[4]), v(vT[4]), v(vT[5])))
    e('v_lshl_add_u32 %s, %s, 3, %s' % (v(vT[5]), v(g), v(r4)))
    e('v_lshlrev_b32 %s, 3, %s' % (v(vT[5]), v(vT[5])))
    setmask(A, sM, lambda l: (l & 3) == 3)
    for ks in range(2):
        for j2 in range(2):
            a = vAR[ks * 2 + j2]
            e('v_add_u32 %s, %d, %s' % (v(a), ks * 13824 + j2 * 432, v(vT[4])))
            e('v_add_u32 %s, %d, %s' % (v(vDl), GB + (32 * ks + 4 * j2) * 8, v(vT[5])))
            e('v_cndmask_b32 %s, %s, %s, %s' % (v(a), v(a), v(vDl), s(sM, 2)))
    e('v_cndmask_b32 %s, 1, 0, %s' % (v(vFlag), s(sM, 2)))
    e('v_mov_b32 %s, 512' % v(vDl))
    e('v_cndmask_b32 %s, 0, %s, %s' % (v(vC512), v(vDl), s(sM, 2)))
    lo, hi = vT[4], vT[5]
    e('v_mov_b32 %s, 0x3f80' % v(lo)); e('v_mov_b32 %s, 1.0' % v(hi))
    def sel2(dst, f_lo, f_hi):
        e('v_mov_b32 %s, 0' % v(dst))
        if f_lo:
            setmask(A, sM, f_lo); e('v_cndmask_b32 %s, %s, %s, %s' % (v(dst), v(dst), v(lo), s(sM, 2)))
        if f_hi:
            setmask(A, sM, f_hi); e('v_cndmask_b32 %s, %s, %s, %s' % (v(dst), v(dst), v(hi), s(sM, 2)))
    sel2(vSel, lambda l: ((l >> 4) == 1 and (l & 7) == 0) or ((l >> 4) == 2 and (l & 3) >= 2), lambda l: (l >> 4) == 1 and (l & 7) == 1)
    sel2(vSel + 1, lambda l: (l >> 4) == 1 and (l & 7) == 4, lambda l: (l >> 4) == 1 and (l & 7) == 5)
    setmask(A, sMpar, lambda l: l & 1)
    setmask(A, sMc0, lambda l: 4 * (l >> 4) + (l & 1) <= (l & 15))
    setmask(A, sMc1, lambda l: 4 * (l >> 4) + 2 + (l & 1) <= (l & 15))
    e('v_mov_b32 %s, 0x0c0c0302' % v(lo)); e('v_mov_b32 %s, 0x03020c0c' % v(hi))
    e('v_cndmask_b32 %s, %s, %s, %s' % (v(lo), v(lo), v(hi), s(sMpar, 2)))
    e('v_mov_b32 %s, 0x0c0c0c0c' % v(hi))
    e('v_cndmask_b32 %s, %s, %s, %s' % (v(vPC0), v(hi), v(lo), s(sMc0, 2)))
    e('v_cndmask_b32 %s, %s, %s, %s' % (v(vPP0), v(lo), v(hi), s(sMc0, 2)))
    e('v_cndmask_b32 %s, %s, %s, %s' % (v(vPC1), v(hi), v(lo), s(sMc1, 2)))
    e('v_cndmask_b32 %s, %s, %s, %s' % (v(vPP1), v(lo), v(hi), s(sMc1, 2)))
    for k in range(4): setmask(A, sG[k], lambda l: (l >> 4) == k)
    e('v_cndmask_b32 %s, 0, -1, %s' % (v(vMG0), s(sG[0], 2)))
    e('v_mov_b32 %s, %s' % (v(vNeg), f32(-1e9 * math.sqrt(18.0))))
    e('v_lshlrev_b32 %s, 2, %s' % (v(vBp), v(i15)))
    e('v_add_u32 %s, 192, %s' % (v(vBp), v(vBp)))
    e('s_or_b32 %s, %s, %s' % (s(sT0), s(sRb), s(sRg)))
    e('s_cmp_eq_u32 %s, 0' % s(sT0))
    e('s_cselect_b64 %s, -1, 0' % s(sFirst, 2))
    e('s_mov_b32 %s, %s' % (s(sC), f32(18.0 ** -0.5 * math.log2(math.e))))
    e('s_cmp_eq_u32 %s, 0' % s(sBr))
    e('s_mov_b32 %s, %s' % (s(sGs), f32(math.log2(math.e))))
    e('s_cselect_b32 %s, %s, %s' % (s(sGs), f32(-math.log2(math.e)), s(sGs)))
    e('s_lshl_b32 %s, %s, 3' % (s(sT0), s(sRb)))
    e('s_lshl2_add_u32 %s, %s, %s' % (s(sT0), s(sRg), s(sT0)))
    e('s_mul_i32 %s, %s, 36864' % (s(sT0), s(sT0)))
    e('s_lshl_b32 %s, %s, 2' % (s(sT1), s(sHg)))
    e('s_lshl1_add_u32 %s, %s, %s' % (s(sT1), s(sBr), s(sT1)))
    e('s_add_u32 %s, %s, %s' % (s(sT1), s(sT1), s(sP)))
    e('s_add_u32 %s, %s, 4' % (s(sT1), s(sT1)))
    e('s_lshl_b32 %s, %s, 10' % (s(sT1), s(sT1)))
    e('s_add_u32 %s, %s, %s' % (s(sSt0), s(sT0), s(sT1)))
    e('s_lshl_b32 %s, %s, 8' % (s(sT1), s(sHgb)))
    e('s_lshl3_add_u32 %s, %s, %s' % (s(sT1), s(sP), s(sT1)))
    e('s_add_u32 %s, %s, %s' % (s(sSr0), s(sT0), s(sT1)))
    e('v_lshlrev_b32 %s, 4, %s' % (v(vStM), v(vLane)))
    e('v_lshrrev_b32 %s, 1, %s' % (v(lo), v(g)))
    e('v_mul_u32_u24 %s, 36864, %s' % (v(lo), v(lo)))
    e('v_lshl_add_u32 %s, %s, 4, %s' % (v(lo), v(i15), v(lo)))
    e('v_and_b32 %s, 1, %s' % (v(hi), v(g)))
    e('v_lshl_add_u32 %s, %s, 2, %s' % (v(vStR), v(hi), v(lo)))
    vPA, vPD = 250, 251
    e('s_sub_u32 %s, %s, %s' % (s(sT1), s(sSr0), s(sSt0)))
    e('s_mul_i32 %s, %s, 120' % (s(sT0), s(sP)))
    e('s_add_u32 %s, %s, %s' % (s(sT1), s(sT1), s(sT0)))
    e('v_and_b32 %s, 7, %s' % (v(lo), v(vLane)))
    e('v_lshlrev_b32 %s, 7, %s' % (v(lo), v(lo)))
    e('v_lshrrev_b32 %s, 3, %s' % (v(hi), v(vLane)))
    e('v_mov_b32 %s, %s' % (v(vPA), s(sT1)))
    e('v_cmp_gt_u32 vcc, 32, %s' % v(vLane))
    e('v_cndmask_b32 %s, %s, %s, vcc' % (v(lo), v(vPA), v(lo)))
    e('v_cndmask_b32 %s, %s, %s, vcc' % (v(hi), v(c4), v(hi)))
    e('v_mul_u32_u24 %s, 36864, %s' % (v(hi), v(hi)))
    e('v_add3_u32 %s, %s, %s, %s' % (v(vPA), v(lo), v(hi), s(sSt0)))
    phase2_ids()
    assert acc_lo % 2 == 0
    for r in range(acc_lo, acc_hi, 2):
        e('v_mov_b64 %s, 0' % v(r, 2))
    e('s_lshl_b32 %s, %s, 4' % (s(sT0), s(sRot)))
    e('v_subrev_u32 %s, %s, v0' % (v(lo), s(sT0)))
    e('v_add_u32 %s, 144, %s' % (v(hi), v(lo)))
    e('v_cmp_gt_i32 vcc, 0, %s' % v(lo))
    e('v_cndmask_b32 %s, %s, %s, vcc' % (v(lo), v(lo), v(hi)))
    e('v_mov_b32 %s, 144' % v(hi))
    e('v_cmp_gt_u32 vcc, 144, v0')
    e('v_cndmask_b32 %s, %s, %s, vcc' % (v(lo), v(hi), v(lo)))
    e('v_lshlrev_b32 %s, 5, %s' % (v(lo), v(lo)))
    e('v_add_u32 %s, %d, %s' % (v(lo), GB, v(lo)))
    ST.mark()
    e('s_or_b32 %s, s2, %s' % (s(sT0), s(sWv)))
    e('s_cbranch_scc0 C_GW0')
    e('s_waitcnt vmcnt(0)')
    A.label('C_GW0')
    e('s_waitcnt vmcnt(1)')
    gq = Xf[1][1]
    e('s_mov_b32 %s, 0x01000100' % s(sT0)); e('s_mov_b32 %s, 0x03020302' % s(sT1))
    for k in range(2):
        e('v_perm_b32 %s, %s, %s, %s' % (v(gq + 4 * k), v(vG + k), v(vG + k), s(sT0)))
        e('v_perm_b32 %s, %s, %s, %s' % (v(gq + 4 * k + 2), v(vG + k), v(vG + k), s(sT1)))
        e('v_mov_b32 %s, %s' % (v(gq + 4 * k + 1), v(gq + 4 * k)))
        e('v_mov_b32 %s, %s' % (v(gq + 4 * k + 3), v(gq + 4 * k + 2)))
    e('ds_write_b128 %s, %s' % (v(lo), v(gq, 4)))
    e('ds_write_b128 %s, %s offset:16' % (v(lo), v(gq + 4, 4)))
    e('s_mov_b32 %s, 0' % s(sCnt)); e('s_mov_b32 %s, 0' % s(sRing))
    if OPT.get('tw'):
        e('s_mov_b64 exec, 1')
        e('buffer_load_dword %s, %s, %s, 0 offen sc1' % (v(vPD), v(vPA), s(SO, 4)))
        e('buffer_load_dword %s, %s, %s, %s offen offset:64' % (v(vPD), v(vZ), s(SF, 4), s(cLf)))
        e('s_mov_b64 exec, -1')
    e('s_waitcnt lgkmcnt(0)')
    ST.mark()
    e('s_barrier')
    e('s_mov_b32 %s, 0' % s(sSpin))
    def spin(L, back):
        A.label(L)
        e('ds_read_b32 %s, %s' % (v(vLand), v(vSy)))
        e('s_add_u32 %s, %s, 1' % (s(sSpin), s(sSpin)))
        e('s_waitcnt lgkmcnt(0)')
        e('v_cmp_le_u32 vcc, %s, %s' % (v(vLand), v(vStg)))
        e('s_cbranch_vccz %s' % back)
        e('s_cmp_lt_u32 %s, %d' % (s(sSpin), 2 * SPIN))
        e('s_cbranch_scc1 %s' % L)
    spin('C_SPIN0', 'C_GO')
    A.label('C_GO')
    ST.mark()
    toff = {'Qa': 0, 'Qb': 40, 'Ka': 144, 'Kb': 184, 'Va': 288, 'Vb': 328}
    G = names
    def xread(Q, ks, t):
        Q.rd('ds_read_b128 %s, %s offset:%d' % (v(Xf[ks][t], 4), v(vAX[ks]), 2048 * t), Xf[ks][t], 4)
    def wread(Q, ks, n, j2):
        if n == 'R': Q.rd('ds_read_b64_tr_b16 %s, %s' % (v(Wf[n] + 2 * j2, 2), v(vAR[ks * 2 + j2])), Wf[n] + 2 * j2, 2)
        else: Q.rd('ds_read_b64_tr_b16 %s, %s offset:%d' % (v(Wf[n] + 2 * j2, 2), v(vAW[ks]), ks * 13824 + j2 * 432 + toff[n]), Wf[n] + 2 * j2, 2)
    seq = [(n, t) for n in G for t in range(5) if n in acc[t]]
    def mf_text(ks, n, t):
        d = acc[t][n]; x = Xf[ks][t]
        a, b = (x, Wf[n]) if n[0] == 'V' else (Wf[n], x)
        return 'v_mfma_f32_16x16x32_bf16 %s, %s, %s, %s' % (v(d, 4), v(a, 4), v(b, 4), v(d, 4))
    XPOS = [3, 7, 11, 16, 20]
    def half(A_, Q, ks):
        e = A_.e
        fill = {}
        def at(p, f): fill.setdefault(p, []).append(f)
        o = ks ^ 1
        at(0, lambda: wread(Q, ks, G[-1], 1))
        for k, (n, t) in enumerate(seq):
            if k + 1 == len(seq) or seq[k + 1][0] != n:
                at(k, lambda n=n: wread(Q, o, n, 0))
                if k + 1 < len(seq): at(k + 1, lambda n=n: wread(Q, o, n, 1))
        for t, p in enumerate(XPOS): at(p, lambda t=t: xread(Q, o, t))
        if ks == 0:
            at(0, lambda: e('s_cmp_eq_u32 %s, %d' % (s(sRing), 2 * S)))
            at(1, lambda: e('s_mov_b32 %s, %d' % (s(sDelta), S)))
            at(1, lambda: e('s_cselect_b32 %s, %d, %s' % (s(sDelta), -2 * S, s(sDelta))))
            at(2, lambda: e('s_add_u32 %s, %s, %s' % (s(sRing), s(sRing), s(sDelta))))
            at(2, lambda: e('v_mad_i32_i24 %s, %s, %s, %s' % (v(vDl), v(vFlag), s(sDelta), v(vC512))))
        else:
            at(30, lambda: e('s_add_u32 %s, %s, 1' % (s(sCnt), s(sCnt))))
            at(31, lambda: e('s_cmp_lt_u32 %s, 9' % s(sCnt)))
        at(29, lambda: Q.rd('ds_read_b32 %s, %s' % (v(vLand), v(vSy)), vLand, 1))
        at(1, lambda: Q.rd('ds_write_b32 %s, %s' % (v(vFa), v(vStg)), 0, 0))
        def chk():
            Q.need((vLand, 1))
            e('v_cmp_le_u32 vcc, %s, %s' % (v(vLand), v(vStg)))
            e('s_cbranch_vccnz C_SPIN%d' % (ks + 1))
            A_.label('C_BACK%d' % (ks + 1))
        at(2, chk)
        at(7, lambda: e('v_add_u32 %s, 1, %s' % (v(vStg), v(vStg))))
        at(6, lambda: e('v_add_u32 %s, %s, %s' % (v(vAX[ks]), s(sDelta), v(vAX[ks]))))
        at(8, lambda: e('v_add_u32 %s, %s, %s' % (v(vAW[ks]), s(sDelta), v(vAW[ks]))))
        at(12, lambda: e('v_add_u32 %s, %s, %s' % (v(vAR[2 * ks]), v(vDl), v(vAR[2 * ks]))))
        at(15, lambda: e('v_add_u32 %s, %s, %s' % (v(vAR[2 * ks + 1]), v(vDl), v(vAR[2 * ks + 1]))))
        for k, (n, t) in enumerate(seq):
            Q.need((Wf[n], 4), (Xf[ks][t], 4))
            e(mf_text(ks, n, t))
            for f in fill.get(k, []): f()
    state = []
    for it in range(3):
        A2 = Asm(); Q2 = LQ(A2); Q2.q = [set(x) for x in state]
        half(A2, Q2, 0); half(A2, Q2, 1)
        new = [set(x) for x in Q2.q]
        if new == state: break
        state = new
    else:
        raise Exception('no fixed point')
    Q = LQ(A)
    for t in range(5): xread(Q, 0, t)
    for n in G:
        wread(Q, 0, n, 0)
        if n != G[-1]: wread(Q, 0, n, 1)
    e('v_mov_b32 %s, 1' % v(vStg))
    Q.drain()
    Q.q = [set(x) for x in state]
    A.barrier_hazards()
    A.label('C_LOOP')
    half(A, Q, 0)
    half(A, Q, 1)
    assert [set(x) for x in Q.q] == state
    e('s_cbranch_scc1 C_LOOP')
    e('s_branch C_EPI')
    for k in (1, 2):
        spin('C_SPIN%d' % k, 'C_BACK%d' % k)
        e('s_branch C_BACK%d' % k)
    A.label('C_EPI')
    A.barrier_hazards()
    ST.mark()
    Q.drain()
    if OPT.get('pt', 9) == 9:
        e('s_mov_b32 exec_hi, 15')
        e('buffer_load_dword %s, %s, %s, 0 offen sc1' % (v(vPD), v(vPA), s(SO, 4)))
        e('s_mov_b64 exec, -1')
    E = RegAlloc(buf_lo, 250)
    KB = [E.alloc(6) for _ in range(5)]
    VA = E.alloc(10); VB = E.alloc(10); VR = E.alloc(10)
    tg = [E.alloc() for _ in range(4)]
    Tq = [E.alloc(2) for _ in range(5)]
    def pk(dst, src):
        e('v_cvt_pk_bf16_f32 %s, %s, %s' % (v(dst), v(src), v(src + 1)))
        e('v_cvt_pk_bf16_f32 %s, %s, %s' % (v(dst + 1), v(src + 2), v(src + 3)))
    e('v_mov_b32 %s, %d' % (v(vDl), MODEW))
    e('ds_read_b64 %s, %s offset:8' % (v(vN, 2), v(vDl)))
    e('ds_read_b32 %s, %s' % (v(vDl), v(vDl)))
    for t in range(4):
        e('ds_bpermute_b32 %s, %s, %s' % (v(tg[t]), v(vBp), v(acc[t + 1]['R'])))
    e('s_mov_b32 %s, 0x3f803f80' % s(sT0))
    for t in range(5):
        pk(Tq[t], acc[t]['R'])
        e('v_mov_b32 %s, %s' % (v(KB[t] + 2), s(sT0))); e('v_mov_b32 %s, %s' % (v(KB[t] + 3), s(sT0)))
    e('s_waitcnt lgkmcnt(0)')
    for t in range(5):
        e('v_permlane32_swap_b32 %s, %s' % (v(Tq[t]), v(KB[t] + 2)))
        e('v_permlane32_swap_b32 %s, %s' % (v(Tq[t] + 1), v(KB[t] + 3)))
    for t in range(5):
        e('v_mfma_f32_16x16x16_bf16 %s, %s, %s, 0' % (v(acc[t]['R'], 4), v(Tq[t], 2), v(vSel, 2)))
        pk(KB[t], acc[t]['Ka']); pk(KB[t] + 4, acc[t]['Kb'])
    QB = [None] + [acc[t]['Ka'] for t in range(1, 5)]
    for t in range(1, 5):
        assert acc[t]['Kb'] == acc[t]['Ka'] + 4
        pk(QB[t], acc[t]['Qa']); pk(QB[t] + 6, acc[t]['Qb'])
        e('v_and_b32 %s, %s, %s' % (v(QB[t] + 2), v(vMG0), v(Tq[t])))
        e('v_mov_b32 %s, 0' % v(QB[t] + 3)); e('v_mov_b32 %s, 0' % v(QB[t] + 4))
        e('v_and_b32 %s, %s, %s' % (v(QB[t] + 5), v(vMG0), v(Tq[t] + 1)))
    def mf32(d, a, b):
        e('v_mfma_f32_16x16x32_bf16 %s, %s, %s, 0' % (v(d, 4), v(a, 4), v(b, 4)))
    def touch():
        e('s_mov_b32 exec_hi, 15')
        e('buffer_load_dword %s, %s, %s, 0 offen sc1' % (v(vPD), v(vPA), s(SO, 4)))
        e('s_mov_b64 exec, -1')
    if OPT.get('pt') == 10: touch()
    def vconv(t):
        pk(VA + 2 * t, acc[t]['Va']); pk(VB + 2 * t, acc[t]['Vb']); pk(VR + 2 * t, acc[t]['R'])
    def attn(ts, Sreg, pre):
        units = [(t, h) for t in ts for h in range(2)]
        Sp = Sreg[0:4]; Sc = Sreg[4:8]
        for u, (t, h) in enumerate(units):
            mf32(Sp[u], KB[t - 1] + 2 * h, QB[t] + 4 * h); mf32(Sc[u], KB[t] + 2 * h, QB[t] + 4 * h)
        pre()
        for u, (t, h) in enumerate(units):
            for k, mc in ((0, sMc0), (1, sMc1)):
                e('v_cndmask_b32 %s, %s, %s, %s' % (v(Sp[u] + 2 * k), v(Sp[u] + 2 * k), v(Sp[u] + 2 * k + 1), s(sMpar, 2)))
                e('v_cndmask_b32 %s, %s, %s, %s' % (v(Sc[u] + 2 * k), v(Sc[u] + 2 * k), v(Sc[u] + 2 * k + 1), s(sMpar, 2)))
                if t == 1:
                    e('v_cndmask_b32 %s, %s, %s, %s' % (v(Sp[u] + 2 * k), v(Sp[u] + 2 * k), v(vNeg), s(sFirst, 2)))
                e('v_cndmask_b32 %s, %s, %s, %s' % (v(Sp[u] + 2 * k), v(Sp[u] + 2 * k), v(Sc[u] + 2 * k), s(mc, 2)))
            e('v_max_f32 %s, %s, %s' % (v(Sp[u] + 1), v(Sp[u]), v(Sp[u] + 2)))
        m = [Sp[u] + 1 for u in range(4)]
        e('v_permlane32_swap_b32 %s, %s' % (v(m[0]), v(m[1])))
        e('v_permlane32_swap_b32 %s, %s' % (v(m[2]), v(m[3])))
        e('v_max_f32 %s, %s, %s' % (v(m[0]), v(m[0]), v(m[1])))
        e('v_max_f32 %s, %s, %s' % (v(m[2]), v(m[2]), v(m[3])))
        e('v_permlane16_swap_b32 %s, %s' % (v(m[0]), v(m[2])))
        e('v_max_f32 %s, %s, %s' % (v(m[0]), v(m[0]), v(m[2])))
        e('v_mul_f32 %s, %s, %s' % (v(m[0]), s(sC), v(m[0])))
        e('v_mov_b32 %s, %s' % (v(m[2]), v(m[0])))
        e('v_permlane16_swap_b32 %s, %s' % (v(m[0]), v(m[2])))
        e('v_mov_b32 %s, %s' % (v(m[1]), v(m[0])))
        e('v_mov_b32 %s, %s' % (v(m[3]), v(m[2])))
        e('v_permlane32_swap_b32 %s, %s' % (v(m[0]), v(m[1])))
        e('v_permlane32_swap_b32 %s, %s' % (v(m[2]), v(m[3])))
        for u in range(4):
            for k in range(2):
                e('v_fma_f32 %s, %s, %s, -%s' % (v(Sp[u] + 2 * k), v(Sp[u] + 2 * k), s(sC), v(m[u])))
        for u in range(4):
            for k in range(2):
                e('v_exp_f32 %s, %s' % (v(Sp[u] + 2 * k), v(Sp[u] + 2 * k)))
        P = Sc
        for u in range(4):
            for k, (pp, pc) in enumerate(((vPP0, vPC0), (vPP1, vPC1))):
                e('v_perm_b32 %s, %s, %s, %s' % (v(P[u] + k), v(Sp[u] + 2 * k), v(Sp[u] + 2 * k), v(pp)))
                e('v_perm_b32 %s, %s, %s, %s' % (v(P[u] + 2 + k), v(Sp[u] + 2 * k), v(Sp[u] + 2 * k), v(pc)))
        OR = Sp; O = [QB[t] + 4 * h for (t, h) in units]
        for u, (t, h) in enumerate(units):
            mf32(OR[u], VR + 2 * (t - 1), P[u])
        for u, (t, h) in enumerate(units):
            mf32(O[u], (VA, VB)[h] + 2 * (t - 1), P[u])
        for u, (t, h) in enumerate(units):
            e('v_mul_f32 %s, %s, %s' % (v(OR[u] + 2), v(OR[u] + 2), v(tg[t - 1])))
        for u in range(4):
            e('v_rcp_f32 %s, %s' % (v(OR[u] + 2), v(OR[u] + 2)))
        outR = P[0]
        for u, (t, h) in enumerate(units):
            for k in range(4):
                e('v_mul_f32 %s, %s, %s' % (v(O[u] + k), v(OR[u] + 2), v(O[u] + k)))
            o = P[2 + (u >> 1)]
            pk(o + 2 * h, O[u])
            if h == 1:
                e('s_add_u32 %s, %s, %d' % (s(sT0), s(sSt0), 36864 * (t - 1)))
                e('buffer_store_dwordx4 %s, %s, %s, %s offen' % (v(o, 4), v(vStM), s(SO, 4), s(sT0)))
                again.append(('buffer_store_dwordx4 %s, %s, %s, %s offen sc1' % (v(o, 4), v(vStM), s(SO, 4), s(sT0)), sSt0, 36864 * (t - 1)))
        for u in range(4):
            e('s_mov_b64 exec, %s' % s(sG[u], 2))
            e('v_mul_f32 %s, %s, %s' % (v(OR[u]), v(OR[u] + 2), v(OR[u])))
            e('v_mul_f32 %s, %s, %s' % (v(OR[u] + 1), v(OR[u] + 2), v(OR[u] + 1)))
            e('v_cvt_pk_bf16_f32 %s, %s, %s' % (v(outR), v(OR[u]), v(OR[u] + 1)))
        e('s_mov_b64 exec, -1')
        e('s_add_u32 %s, %s, %d' % (s(sT0), s(sSr0), 36864 * (ts[0] - 1)))
        e('buffer_store_dword %s, %s, %s, %s offen' % (v(outR), v(vStR), s(SO, 4), s(sT0)))
        again.append(('buffer_store_dword %s, %s, %s, %s offen sc1' % (v(outR), v(vStR), s(SO, 4), s(sT0)), sSr0, 36864 * (ts[0] - 1)))
    again = []
    S1 = [acc[t][n] for t in range(1, 5) for n in ('Qa', 'Qb')]
    def pre1():
        for t in range(5): vconv(t)
        for t in range(4):
            e('v_mul_f32 %s, %s, %s' % (v(tg[t]), s(sGs), v(tg[t])))
            e('v_exp_f32 %s, %s' % (v(tg[t]), v(tg[t])))
        for t in range(4):
            e('v_add_f32 %s, 1.0, %s' % (v(tg[t]), v(tg[t])))
    attn([1, 2], S1, pre1)
    S2 = [acc[t][n] for t in range(0, 3) for n in ('Va', 'Vb', 'R')][:8]
    attn([3, 4], S2, lambda: None)
    ST.mark()
    pv = acc[0]['Ka']; pa = acc[0]['Kb']; sPb = sRing
    def poll_setup(split):
        e('v_readfirstlane_b32 %s, %s' % (s(sNlo), v(vN)))
        e('v_readfirstlane_b32 %s, %s' % (s(sNhi), v(vN + 1)))
        e('s_add_u32 %s, %s, %d' % (s(sT1), s(sMb), NT - 1))
        e('s_lshr_b32 %s, %s, 3' % (s(sT0), s(sMb)))
        e('s_lshr_b32 %s, %s, 3' % (s(sT1), s(sT1)))
        e('s_sub_u32 %s, %s, %s' % (s(sT1), s(sT1), s(sT0)))
        e('s_lshl_b32 %s, %s, 11' % (s(sT0), s(sT0)))
        e('s_lshl_b32 %s, %s, 11' % (s(sT1), s(sT1)))
        e('v_and_b32 %s, 15, %s' % (v(pa), v(vLane)))
        e('v_lshlrev_b32 %s, 7, %s' % (v(pa), v(pa)))
        e('v_bfe_u32 %s, %s, 4, 1' % (v(pa + 1), v(vLane)))
        e('v_mad_u32_u24 %s, %s, %s, %s' % (v(pa), v(pa + 1), s(sT1), v(pa)))
        e('v_lshrrev_b32 %s, 5, %s' % (v(pa + 1), v(vLane)))
        e('v_lshl_add_u32 %s, %s, 4, %s' % (v(pa), v(pa + 1), v(pa)))
        e('s_mov_b32 %s, 0' % s(sSpin))
        e('s_add_u32 %s, %s, %s' % (s(sPb), s(sT0), s(cLf)))
        if split:
            e('s_lshl_b32 %s, %s, 2' % (s(sT1), s(sWv)))
            e('s_lshl_b32 %s, 0x000f000f, %s' % (s(sM), s(sT1)))
            e('s_mov_b32 %s, %s' % (s(sM + 1), s(sM)))
        else:
            e('s_mov_b64 %s, -1' % s(sM, 2))
    e('v_readfirstlane_b32 %s, %s' % (s(cMode), v(vDl)))
    e('s_lshl4_add_u32 %s, %s, %s' % (s(sDelta), s(sRb), s(sHgb)))
    e('s_lshl_b32 %s, %s, 7' % (s(sDelta), s(sDelta)))
    e('s_lshl3_add_u32 %s, %s, %s' % (s(sDelta), s(sWv), s(sDelta)))
    e('s_cmp_eq_u32 %s, 0' % s(cMode))
    e('s_cbranch_scc0 C_ACK')
    for txt, sb, off in again:
        e('s_add_u32 %s, %s, %d' % (s(sT0), s(sb), off + GOFF))
        e(txt)
    e('s_mov_b32 %s, 0' % s(sSpin))
    A.label('C_NSPIN')
    e('s_waitcnt vmcnt(0)')
    e('v_readfirstlane_b32 %s, %s' % (s(sNlo), v(vN)))
    e('s_cmp_lg_u32 %s, 0' % s(sNlo))
    e('s_cbranch_scc1 C_NOK')
    e('buffer_load_dwordx2 %s, %s, %s, 0 offen offset:%d sc1' % (v(vN, 2), v(vZ), s(SDb, 4), NONCE))
    e('s_add_u32 %s, %s, 1' % (s(sSpin), s(sSpin)))
    e('s_cmp_lt_u32 %s, %d' % (s(sSpin), SPIN))
    e('s_cbranch_scc1 C_NSPIN')
    e('s_waitcnt vmcnt(0)')
    A.label('C_NOK')
    e('s_mov_b64 exec, 1')
    e('buffer_store_dwordx2 %s, %s, %s, %s offen sc1' % (v(vN, 2), v(vZ), s(SF, 4), s(sDelta)))
    e('s_mov_b64 exec, -1')
    poll_setup(False)
    e('s_cmp_eq_u32 %s, 0' % s(cOk))
    e('s_cbranch_scc1 C_BW')
    e('s_branch C_LF')
    A.label('C_ACK')
    e('s_nop 1')
    if OPT.get('cp2', 0): e('s_setprio %d' % OPT['cp2'])
    poll_setup(True)
    e('s_waitcnt vmcnt(0)')
    A.label('C_LF')
    e('s_add_u32 %s, %s, %s' % (s(sDelta), s(sDelta), s(cLf)))
    e('s_mov_b64 exec, 1')
    e('buffer_store_dwordx2 %s, %s, %s, %s offen' % (v(vN, 2), v(vZ), s(SF, 4), s(sDelta)))
    e('s_mov_b64 exec, -1')
    A.label('C_BW')
    ST.mark()
    e('s_cmp_ge_u32 %s, 3' % s(sL2))
    e('s_cbranch_scc1 C_DONE')
    e('s_cmp_eq_u32 %s, 0' % s(cMode))
    e('s_cselect_b32 %s, %s, 0' % (s(sT1), s(sWv)))
    e('s_cmp_eq_u32 %s, 0' % s(sT1))
    e('s_cbranch_scc0 C_NOPOLL')
    e('s_mov_b64 exec, %s' % s(sM, 2))
    def chk():
        e('s_waitcnt vmcnt(0)')
        e('v_xor_b32 %s, %s, %s' % (v(pv), s(sNlo), v(pv)))
        e('v_xor_b32 %s, %s, %s' % (v(pv + 1), s(sNhi), v(pv + 1)))
        e('v_xor_b32 %s, %s, %s' % (v(pv + 2), s(sNlo), v(pv + 2)))
        e('v_xor_b32 %s, %s, %s' % (v(pv + 3), s(sNhi), v(pv + 3)))
        e('v_or3_b32 %s, %s, %s, %s' % (v(pv), v(pv), v(pv + 1), v(pv + 2)))
        e('v_or_b32 %s, %s, %s' % (v(pv), v(pv), v(pv + 3)))
        e('v_cmp_ne_u32 vcc, 0, %s' % v(pv))
    A.label('C_POLL')
    e('buffer_load_dwordx4 %s, %s, %s, %s offen %s' % (v(pv, 4), v(pa), s(SF, 4), s(sPb), OPT.get('pl', 'sc1')))
    e('v_mov_b32 %s, 0' % v(pa + 2))
    chk()
    e('s_add_u32 %s, %s, 1' % (s(sSpin), s(sSpin)))
    e('s_cbranch_vccz C_PSEL')
    e('s_cmp_eq_u32 %s, 0' % s(cMode))
    e('s_cbranch_scc0 C_PNXT')
    e('buffer_load_dwordx4 %s, %s, %s, %s offen sc1' % (v(pv, 4), v(pa), s(SF, 4), s(sT0)))
    e('v_mov_b32 %s, %d' % (v(pa + 2), GOFF))
    chk()
    e('s_nop 1')
    e('s_cbranch_vccz C_PSEL')
    A.label('C_PNXT')
    e('s_cmp_lt_u32 %s, %d' % (s(sSpin), SPIN))
    e('s_cbranch_scc1 C_POLL')
    A.label('C_PSEL')
    e('s_mov_b64 exec, -1')
    e('s_cmp_eq_u32 %s, 0' % s(cMode))
    e('s_cbranch_scc0 C_NOPOLL')
    e('v_mov_b32 %s, %d' % (v(pa + 3), MODEW + 4))
    e('ds_write_b32 %s, %s' % (v(pa + 3), v(pa + 2)))
    e('s_waitcnt lgkmcnt(0)')
    A.label('C_NOPOLL')
    e('s_mul_i32 %s, %s, %d' % (s(sOb), s(sMb), 36864))
    e('s_lshl_b32 %s, %s, 10' % (s(sLd), s(sWv)))
    e('s_add_u32 %s, %s, %s' % (s(sOb), s(sOb), s(sLd)))
    e('s_mov_b32 %s, %s' % (s(sCh), s(sRot2)))
    e('s_mov_b32 %s, 0' % s(sCnt))
    if OPT.get('p2oob'): e('v_add_u32 %s, %d, %s' % (v(vStM), OOB, v(vStM)))
    ST.mark()
    e('s_barrier')
    ST.mark()
    e('s_cmp_eq_u32 %s, 0' % s(cMode))
    e('s_cbranch_scc0 C_OL')
    e('v_mov_b32 %s, %d' % (v(pa + 3), MODEW + 4))
    e('ds_read_b32 %s, %s' % (v(pa + 2), v(pa + 3)))
    e('s_waitcnt lgkmcnt(0)')
    e('v_readfirstlane_b32 %s, %s' % (s(sT0), v(pa + 2)))
    e('s_and_b32 %s, %s, %d' % (s(sT0), s(sT0), GOFF))
    e('s_add_u32 %s, %s, %s' % (s(sOb), s(sOb), s(sT0)))
    A.label('C_OL')
    P2S = OPT.get('p2s', 0)
    if P2S == 0:
        e('s_cmp_lt_u32 %s, 3' % s(sCnt))
        e('s_cbranch_scc1 C_OI')
    else:
        e('s_cmp_eq_u32 %s, %d' % (s(sCnt), 3 - P2S))
        e('s_cbranch_scc0 C_OW')
        e('s_waitcnt vmcnt(%d)' % ((2 - P2S) * NT))
        e('s_barrier')
        A.label('C_OW')
        e('s_cmp_lt_u32 %s, 4' % s(sCnt))
        e('s_cbranch_scc1 C_OI')
    e('s_waitcnt vmcnt(%d)' % (2 * NT))
    e('s_barrier')
    A.label('C_OI')
    e('s_lshl_b32 %s, %s, 12' % (s(sT0), s(sCh)))
    e('s_add_u32 %s, %s, %s' % (s(sT0), s(sT0), s(sOb)))
    for t in range(NT):
        e('s_add_u32 %s, %s, %d' % (s(sT1), s(sT0), 36864 * t))
        e('s_add_u32 m0, %s, %d' % (s(sLd), 4096 * t))
        e('buffer_load_dwordx4 %s, %s, %s offen lds' % (v(vStM), s(SO, 4), s(sT1)))
    e('s_add_u32 %s, %s, 1' % (s(sCh), s(sCh)))
    e('s_cmp_eq_u32 %s, 9' % s(sCh))
    e('s_cselect_b32 %s, 0, %s' % (s(sCh), s(sCh)))
    e('s_add_u32 %s, %s, %d' % (s(sLd), s(sLd), CHB))
    e('s_cmp_eq_u32 %s, 5' % s(sCnt))
    e('s_cselect_b32 %s, %d, 0' % (s(sT0), 6 * CHB))
    e('s_sub_u32 %s, %s, %s' % (s(sLd), s(sLd), s(sT0)))
    e('s_add_u32 %s, %s, 1' % (s(sCnt), s(sCnt)))
    e('s_cmp_lt_u32 %s, 9' % s(sCnt))
    e('s_cbranch_scc1 C_OL')
    for n in (2 * NT, NT, 0):
        e('s_waitcnt vmcnt(%d)' % n)
        e('s_barrier')
    A.label('C_DONE')
    ST.finish(SD, pWs, vT[0], False)
    A.label('K_END')
    e('s_endpgm')

def desc(label, vg=256):
    return '''.amdhsa_kernel %s
  .amdhsa_next_free_vgpr %d
  .amdhsa_next_free_sgpr 102
  .amdhsa_accum_offset %d
  .amdhsa_group_segment_fixed_size 0
  .amdhsa_kernarg_size 80
  .amdhsa_user_sgpr_count 2
  .amdhsa_user_sgpr_kernarg_segment_ptr 1
  .amdhsa_system_sgpr_workgroup_id_x 1
.end_amdhsa_kernel
''' % (label, vg, vg)

def main(path):
    A = Asm(); lab = NAME + '_kernel'
    kernel(A, lab)
    hdr = '; @launch grid=(256,1,1) block=(512,1,1) lds=%d\n' % LDS
    hdr += '.amdgcn_target "amdgcn-amd-amdhsa--gfx950"\n.text\n'
    txt = hdr + A.text() + '.section .rodata,"a"\n.p2align 6\n' + desc(lab)
    open(path, 'w').write(txt)
    print('instrs', A.nins)

if __name__ == '__main__':
    for a in sys.argv[2:]:
        if '=' in a:
            k, val = a.split('='); OPT[k] = int(val)
        else: OPT[a] = True
    main(sys.argv[1] if len(sys.argv) > 1 else 'g2.s')
```
